```python
import torch

def _softmax(x, axis=-1):
    return torch.softmax(x, dim=axis)
def _gelu(x):
    return torch.nn.functional.gelu(x, approximate="tanh")
def _silu(x):
    return torch.nn.functional.silu(x)
def _sigmoid(x):
    return torch.sigmoid(x)
def _layernorm(x, axis=-1, eps=1e-5):
    m = x.mean(dim=axis, keepdim=True)
    v = x.var(dim=axis, keepdim=True, unbiased=False)
    return (x - m) / torch.sqrt(v + eps)
def _scatter_add(tgt, idx, src, axis=0):
    return tgt.clone().index_add_(axis, idx, src)
def _segment_sum(src, seg, n):
    out = torch.zeros((n,) + src.shape[1:], dtype=src.dtype)
    return out.index_add_(0, seg, src)
def _pad(x, pw):
    flat = tuple(v for pair in reversed(pw) for v in pair)
    return torch.nn.functional.pad(x, flat)

kernel_name = 'sequential_preLN__linear_attn_block__dense_activation_silu__prompt'

def setup_inputs():

    _w = (lambda a: (lambda t: t.to(torch.bfloat16) if t.is_floating_point() else t)(torch.as_tensor(a)))
    def _A_setup():
        B, S, D = 1, 2048, 640
        return {
            "x": _w((lambda *s: torch.randn(*s, dtype=torch.bfloat16) * 0.05)(B, S, D)),
            "wqkv": _w((lambda *s: torch.randn(*s, dtype=torch.bfloat16) * 0.05)(D, 3 * D)),
            "wo": _w((lambda *s: torch.randn(*s, dtype=torch.bfloat16) * 0.05)(D, D)),
        }
    _A_in = _A_setup()

    def _B_setup():
        B, S, D, F = 1, 2048, 640, 1728
        return {
            "x": _w((lambda *s: torch.randn(*s, dtype=torch.bfloat16) * 0.05)(B, S, D)),
            "w1": _w((lambda *s: torch.randn(*s, dtype=torch.bfloat16) * 0.8)(D, F) * (D ** -0.5)),
            "w2": _w((lambda *s: torch.randn(*s, dtype=torch.bfloat16) * 0.1)(F, D) * (F ** -0.5)),
        }
    _B_in = _B_setup()

    return {
        "A_x": _A_in["x"],
        "A_wqkv": _A_in["wqkv"],
        "A_wo": _A_in["wo"],
        "B_x": _B_in["x"],
        "B_w1": _B_in["w1"],
        "B_w2": _B_in["w2"],
    }

def reference(A_x, A_wqkv, A_wo, B_x, B_w1, B_w2):
    def _A_ref(x, wqkv, wo):
        B, S, D = x.shape
        H = 32; Dh = D // H
        qkv = (lambda x, *d: x.permute(*d))((x @ wqkv).reshape(B, S, 3, H, Dh), 2, 0, 3, 1, 4)
        q, k, v = qkv[0], qkv[1], qkv[2]
        phi = lambda t: torch.where(t > 0, t + 1, torch.exp(t)) + 1e-6
        pq, pk = phi(q), phi(k)
        kv = torch.einsum("bhsd,bhse->bhde", pk, v)
        z = torch.einsum("bhsd->bhd", pk)
        num = torch.einsum("bhqd,bhde->bhqe", pq, kv)
        den = torch.einsum("bhqd,bhd->bhq", pq, z)[..., None] + 1e-6
        o = num / den
        return (lambda x, *d: x.permute(*d))(o, 0, 2, 1, 3).reshape(B, S, D) @ wo

    def _B_ref(x, w1, w2):
        h = torch.einsum("bsd,df->bsf", x, w1)
        h = _silu(h)
        out = torch.einsum("bsf,fd->bsd", h, w2)
        return out

    x = A_x
    h = x + _A_ref(_layernorm(x, axis=-1), A_wqkv, A_wo)
    h2 = h + _B_ref(_layernorm(h, axis=-1), B_w1, B_w2)
    return h2
```

```python
import sys
NAME = "sequential_preLN__linear_attn_block__dense_activation_silu__prompt"
PQ_OFF = 0
KV_OFF = 0x280000
H_OFF = 0x290000
H1_OFF = 0x510000
WS_BYTES = H1_OFF + 2048 * 1728 * 2
out = []
def E(s=""):
    out.append(s)
def vr(b, n=1):
    return f"v{b}" if n == 1 else f"v[{b}:{b+n-1}]"
def sr(b, n=1):
    return f"s{b}" if n == 1 else f"s[{b}:{b+n-1}]"

def srd(dst, lo, nbytes, add=0):
    if add:
        E(f"  s_add_u32 s{dst}, s{lo}, {add}")
        E(f"  s_addc_u32 s{dst+1}, s{lo+1}, 0")
    else:
        E(f"  s_mov_b32 s{dst}, s{lo}")
        E(f"  s_mov_b32 s{dst+1}, s{lo+1}")
    E(f"  s_mov_b32 s{dst+2}, {nbytes}")
    E(f"  s_mov_b32 s{dst+3}, 0x00020000")

def kernel_head(name):
    E(f".globl {name}")
    E(".p2align 8")
    E(f".type {name},@function")
    E(f"{name}:")

def kernel_desc(name, vgpr=256, sgpr=96):
    return f""".p2align 6
.amdhsa_kernel {name}
  .amdhsa_next_free_vgpr {vgpr}
  .amdhsa_next_free_sgpr {sgpr}
  .amdhsa_accum_offset {min(256,(vgpr+3)//4*4)}
  .amdhsa_group_segment_fixed_size 0
  .amdhsa_kernarg_size 72
  .amdhsa_user_sgpr_count 2
  .amdhsa_user_sgpr_kernarg_segment_ptr 1
  .amdhsa_system_sgpr_workgroup_id_x 1
.end_amdhsa_kernel"""

NS = 5
SLOT = 32768
NST = 10

V_LANE = 0
V_DA = 2
V_DB = 6
V_RA = 10
V_RB = 12
V_ST = 16
V_T = 22
V_X = 32
V_Y = 64
V_ACC = 96
V_E = 160

def acc(mt, t):
    return V_ACC + (mt * 4 + t) * 4

def ln_gemm(name, which):
    k1 = which == 1
    ldb = 3840 if k1 else 3456
    swapped = [False, False, False, True] if k1 else [True] * 4
    kernel_head(name)
    E("  s_cmp_ge_u32 s2, 256")
    E(f"  s_cbranch_scc1 L{which}_done")
    E("  s_load_dwordx2 s[4:5], s[0:1], 0" if k1 else "  s_load_dwordx2 s[4:5], s[0:1], 64")
    E(f"  s_load_dwordx2 s[6:7], s[0:1], {8 if k1 else 32}")
    E("  s_load_dwordx4 s[36:39], s[0:1], 56")
    E("  s_and_b32 s40, s2, 7")
    E("  s_lshr_b32 s41, s2, 3")
    E("  s_lshr_b32 s24, s40, 1")
    E("  s_lshl_b32 s24, s24, 2")
    E("  s_and_b32 s42, s41, 3")
    E("  s_add_u32 s24, s24, s42")
    E("  s_and_b32 s25, s40, 1")
    E("  s_lshl_b32 s25, s25, 3")
    E("  s_lshr_b32 s42, s41, 2")
    E("  s_add_u32 s25, s25, s42")
    E("  v_lshrrev_b32 v1, 6, v0")
    E("  v_and_b32 v0, 63, v0")
    E("  s_nop 0")
    E("  v_readfirstlane_b32 s26, v1")
    E("  s_nop 3")
    E("  s_lshr_b32 s27, s26, 1")
    E("  s_and_b32 s28, s26, 1")
    E("  s_waitcnt lgkmcnt(0)")
    if k1:
        srd(8, 4, 2048 * 1280)
    else:
        srd(8, 4, 2048 * 1280, H_OFF)
    srd(12, 6, 640 * ldb)
    srd(16, 38, WS_BYTES)
    srd(20, 36, 256)
    t0, t1, t2, t3, t4 = V_T, V_T + 1, V_T + 2, V_T + 3, V_T + 4
    E(f"  v_lshrrev_b32 v{t0}, 3, v0")
    E(f"  v_and_b32 v{t1}, 7, v0")
    E(f"  v_xor_b32 v{t1}, v{t1}, v{t0}")
    E(f"  v_lshlrev_b32 v{t1}, 4, v{t1}")
    E("  s_lshl_b32 s40, s24, 7")
    E("  s_lshl_b32 s41, s26, 5")
    E("  s_add_u32 s40, s40, s41")
    E(f"  v_add_u32 v{t0}, s40, v{t0}")
    E("  s_movk_i32 s41, 1280")
    E(f"  v_mad_u32_u24 v{V_DA}, v{t0}, s41, v{t1}")
    for j in range(1, 4):
        E(f"  v_add_u32 v{V_DA+j}, {j*(8*1280-1024)}, v{V_DA}")
    E(f"  v_lshrrev_b32 v{t0}, 4, v0")
    E(f"  v_and_b32 v{t1}, 15, v0")
    E("  s_lshl_b32 s40, s26, 4")
    E(f"  v_add_u32 v{t4}, s40, v{t0}")
    E(f"  s_movk_i32 s41, {ldb}")
    for jj in range(2):
        E(f"  v_lshrrev_b32 v{t2}, 1, v{t1}")
        E(f"  v_xor_b32 v{t2}, v{t2}, v{t0}")
        if jj:
            E(f"  v_xor_b32 v{t2}, 4, v{t2}")
        E(f"  v_lshlrev_b32 v{t2}, 1, v{t2}")
        E(f"  v_and_b32 v{t3}, 1, v{t1}")
        E(f"  v_or_b32 v{t2}, v{t2}, v{t3}")
        if k1:
            E(f"  v_min_u32 v{t2}, 14, v{t2}")
            E(f"  v_lshlrev_b32 v{t3}, 4, v{t2}")
            E(f"  v_add_u32 v{V_E}, 1280, v{t3}")
            E(f"  v_add_u32 v{V_E+1}, {2560-80}, v{t3}")
            E(f"  v_subrev_u32 v{V_E+2}, 160, v{t3}")
            E(f"  v_cmp_gt_u32 vcc, 5, v{t2}")
            E("  s_nop 1")
            E(f"  v_cndmask_b32 v{V_E+1}, v{V_E+1}, v{V_E}, vcc")
            E(f"  v_cmp_gt_u32 vcc, 10, v{t2}")
            E("  s_nop 1")
            E(f"  v_cndmask_b32 v{t3}, v{V_E+2}, v{V_E+1}, vcc")
            E("  s_mul_i32 s42, s25, 80")
        else:
            E(f"  v_lshlrev_b32 v{t3}, 4, v{t2}")
            E("  s_mul_i32 s42, s25, 224")
        E(f"  v_add_u32 v{t3}, s42, v{t3}")
        E(f"  v_mad_u32_u24 v{V_DB+2*jj}, v{t4}, s41, v{t3}")
        E(f"  v_add_u32 v{V_DB+2*jj}, {(2*jj)*(4*ldb-1024)}, v{V_DB+2*jj}")
        E(f"  v_add_u32 v{V_DB+2*jj+1}, {4*ldb-1024}, v{V_DB+2*jj}")
    E(f"  v_and_b32 v{t0}, 15, v0")
    E(f"  v_lshrrev_b32 v{t1}, 4, v0")
    E(f"  v_and_b32 v{t2}, 7, v{t0}")
    E(f"  v_xor_b32 v{t2}, v{t2}, v{t1}")
    E(f"  v_lshlrev_b32 v{t2}, 4, v{t2}")
    E(f"  v_lshl_add_u32 v{t2}, v{t0}, 7, v{t2}")
    E("  s_lshl_b32 s40, s27, 13")
    E(f"  v_add_u32 v{V_RA}, s40, v{t2}")
    E(f"  v_xor_b32 v{V_RA+1}, 64, v{V_RA}")
    E(f"  v_lshrrev_b32 v{t2}, 2, v{t0}")
    E(f"  v_and_b32 v{t3}, 1, v{t1}")
    E(f"  v_lshl_add_u32 v{t3}, v{t3}, 2, v{t2}")
    E(f"  v_lshl_add_u32 v{t2}, v{t1}, 3, v{t2}")
    E(f"  v_lshlrev_b32 v{t2}, 8, v{t2}")
    E(f"  v_add_u32 v{t2}, 16384, v{t2}")
    E(f"  v_and_b32 v{t0}, 3, v{t0}")
    for t in range(4):
        u = V_E
        if k1:
            E("  s_mul_i32 s40, s28, 5")
            if t == 0:
                E(f"  v_add_u32 v{u}, s40, v{t0}")
            elif t == 1:
                E("  s_add_u32 s40, s40, 10")
                E(f"  v_add_u32 v{u}, s40, v{t0}")
            elif t == 3:
                E("  s_lshl_b32 s40, s28, 2")
                E("  s_add_u32 s40, s40, 20")
                E(f"  v_add_u32 v{u}, s40, v{t0}")
            else:
                E(f"  v_mul_u32_u24 v{u}, 10, v{t0}")
                E("  s_add_u32 s40, s40, 4")
                E(f"  v_add_u32 v{u}, s40, v{u}")
                E(f"  v_add_u32 v{u+1}, 26, v{t0}")
                E(f"  v_cmp_gt_u32 vcc, 2, v{t0}")
                E("  s_nop 1")
                E(f"  v_cndmask_b32 v{u}, v{u+1}, v{u}, vcc")
        else:
            E("  s_lshl_b32 s40, s28, 4")
            E(f"  s_add_u32 s40, s40, {4*t}")
            E(f"  v_add_u32 v{u}, s40, v{t0}")
        E(f"  v_lshrrev_b32 v{u+1}, 2, v{u}")
        E(f"  v_xor_b32 v{u+1}, v{u+1}, v{t3}")
        E(f"  v_lshl_add_u32 v{u+1}, v{u+1}, 5, v{t2}")
        E(f"  v_and_b32 v{u}, 3, v{u}")
        E(f"  v_lshl_add_u32 v{V_RB+t}, v{u}, 3, v{u+1}")
    for i in range(64):
        E(f"  v_mov_b32 v{V_ACC+i}, 0")
    for i in range(6):
        E(f"  v_mov_b32 v{V_ST+i}, 0")
    E("  s_mov_b32 s44, 0x3f803f80")
    E("  s_lshl_b32 s34, s26, 12")
    E("  s_mov_b32 s31, 0")
    E(f"  s_mov_b32 s52, {SLOT}")
    E("  s_mov_b32 s32, 0")
    E("  s_mov_b32 s33, 0")

    def dma_stage():
        E("  s_add_u32 s35, s31, s34")
        E("  s_mov_b32 m0, s35")
        E("  s_add_u32 s35, s35, 16384")
        for j in range(4):
            E(f"  buffer_load_dwordx4 v{V_DA+j}, s[8:11], s32 offen offset:{j*1024} lds")
        E("  s_mov_b32 m0, s35")
        E("  s_add_u32 s32, s32, 128")
        for j in range(4):
            E(f"  buffer_load_dwordx4 v{V_DB+j}, s[12:15], s33 offen offset:{j*1024} lds")
        E(f"  s_add_u32 s33, s33, {64*ldb}")
        E(f"  s_add_u32 s31, s31, {SLOT}")
        E(f"  s_cmp_eq_u32 s31, {NS*SLOT}")
        E("  s_cselect_b32 s31, 0, s31")

    def read_frags(base, kk):
        for mt in range(4):
            E(f"  ds_read_b128 {vr(base+mt*4,4)}, v{V_RA+kk} offset:{mt*2048}")
        for t in range(4):
            for h in range(2):
                E(f"  ds_read_b64_tr_b16 {vr(base+16+t*4+h*2,2)}, v{V_RB+t} offset:{kk*8192+h*1024}")

    def mfmas(base):
        seq = []
        for mt in range(4):
            for t in range(4):
                a, b = vr(base + mt * 4, 4), vr(base + 16 + t * 4, 4)
                if swapped[t]:
                    a, b = b, a
                seq.append(f"  v_mfma_f32_16x16x32_bf16 {vr(acc(mt,t),4)}, {a}, {b}, {vr(acc(mt,t),4)}")
        return seq

    for s in range(NS - 1):
        dma_stage()
    if k1:
        E("  s_cmp_ge_u32 s2, 16")
        E("  s_cbranch_scc1 L1_nozero")
        E("  s_mul_i32 s40, s2, 3360")
        E(f"  s_add_u32 s40, s40, {KV_OFF}")
        E("  v_lshlrev_b32 v1, 6, v1")
        E("  v_or_b32 v1, v1, v0")
        E(f"  v_lshlrev_b32 v{t0}, 4, v1")
        E(f"  v_mov_b32 v{V_E}, 0")
        E(f"  v_mov_b32 v{V_E+1}, 0")
        E(f"  v_mov_b32 v{V_E+2}, 0")
        E(f"  v_mov_b32 v{V_E+3}, 0")
        E("  v_cmp_gt_u32 vcc, 210, v1")
        E("  s_and_saveexec_b64 s[46:47], vcc")
        E(f"  buffer_store_dwordx4 {vr(V_E,4)}, v{t0}, s[16:19], s40 offen sc0 sc1")
        E("  s_mov_b64 exec, s[46:47]")
        E("  s_waitcnt vmcnt(0)")
        E("  s_barrier")
        E("  s_lshl_b32 s40, s2, 2")
        E(f"  v_mov_b32 v{t0}, s40")
        E(f"  v_mov_b32 v{t1}, 1")
        E("  v_cmp_eq_u32 vcc, 0, v1")
        E("  s_and_saveexec_b64 s[46:47], vcc")
        E("  s_cbranch_execz L1_nz2")
        E(f"  buffer_store_dword v{t1}, v{t0}, s[20:23], 0 offen sc0 sc1")
        E("L1_nz2:")
        E("  s_mov_b64 exec, s[46:47]")
        E("L1_nozero:")
    E(f"  s_waitcnt vmcnt({8*(NS-2)})" if not k1 else f"  s_waitcnt vmcnt({8*(NS-2)})")
    E("  s_barrier")
    read_frags(V_X, 0)
    E("  s_mov_b32 s29, 0")
    E("  s_mov_b32 s30, 0")

    def compute_block(base, WM, WN):
        seq = mfmas(base)
        da = []
        for q in range(2):
            mt = 2 * WN + q
            for r in range(4):
                x = base + mt * 4 + r
                da.append(f"  v_dot2_f32_bf16 v{V_ST+q}, v{x}, s44, v{V_ST+q}")
                da.append(f"  v_dot2_f32_bf16 v{V_ST+2+q}, v{x}, v{x}, v{V_ST+2+q}")
        for q in range(2):
            t = 2 * WM + q
            for r in range(4):
                x = base + 16 + t * 4 + r
                da.append(f"  v_dot2_f32_bf16 v{V_ST+4+q}, v{x}, s44, v{V_ST+4+q}")
        for i, m in enumerate(seq):
            E(m)
            for _ in range(2 if (i % 2 == 0) else 1):
                if da:
                    E(da.pop(0))
        for d in da:
            E(d)

    L = f"L{which}"
    E("  s_cmp_eq_u32 s26, 1")
    E(f"  s_cbranch_scc1 {L}_loop1")
    E("  s_cmp_eq_u32 s26, 2")
    E(f"  s_cbranch_scc1 {L}_loop2")
    E("  s_cmp_eq_u32 s26, 3")
    E(f"  s_cbranch_scc1 {L}_loop3")
    for w in range(4):
        WM, WN = w >> 1, w & 1
        E(f"{L}_loop{w}:")
        read_frags(V_Y, 1)
        E("  s_waitcnt lgkmcnt(12)")
        compute_block(V_X, WM, WN)
        E(f"  s_cmp_eq_u32 s29, {NST-1}")
        E(f"  s_cbranch_scc1 {L}_last{w}")
        E(f"  s_cmp_gt_u32 s29, {NST-NS+1}")
        E(f"  s_cbranch_scc1 {L}_tw{w}")
        E(f"  s_waitcnt vmcnt({8*(NS-3)})")
        E(f"  s_branch {L}_tw_e{w}")
        E(f"{L}_tw{w}:")
        for q in range(NS - 4, -1, -1):
            s_val = NST - 2 - q
            if q > 0:
                E(f"  s_cmp_lg_u32 s29, {s_val}")
                E(f"  s_cbranch_scc1 {L}_tw{w}_{q}")
                E(f"  s_waitcnt vmcnt({8*q})")
                E(f"  s_branch {L}_tw_e{w}")
                E(f"{L}_tw{w}_{q}:")
            else:
                E("  s_waitcnt vmcnt(0)")
        E(f"{L}_tw_e{w}:")
        E("  s_barrier")
        E(f"  s_cmp_gt_u32 s29, {NST-NS}")
        E(f"  s_cbranch_scc1 {L}_nodma{w}")
        dma_stage()
        E(f"{L}_nodma{w}:")
        E(f"  s_add_u32 s30, s30, {SLOT}")
        E(f"  s_cmp_eq_u32 s30, {NS*SLOT}")
        E(f"  s_cselect_b32 s40, {-(NS-1)*SLOT}, s52")
        E("  s_cselect_b32 s30, 0, s30")
        for r in (V_RA, V_RA + 1, V_RB, V_RB + 1, V_RB + 2, V_RB + 3):
            E(f"  v_add_u32 v{r}, s40, v{r}")
        read_frags(V_X, 0)
        E("  s_waitcnt lgkmcnt(12)")
        compute_block(V_Y, WM, WN)
        E("  s_add_u32 s29, s29, 1")
        E(f"  s_branch {L}_loop{w}")
        E(f"{L}_last{w}:")
        E("  s_waitcnt lgkmcnt(0)")
        compute_block(V_Y, WM, WN)
        E(f"  s_branch {L}_epi")
    E(f"{L}_epi:")
    E("  s_barrier")
    E(f"  v_and_b32 v{t0}, 15, v0")
    E(f"  v_lshrrev_b32 v{t1}, 4, v0")
    E("  s_lshl_b32 s40, s27, 6")
    E("  s_lshl_b32 s41, s28, 5")
    E("  s_add_u32 s40, s40, s41")
    E(f"  v_add_u32 v{t2}, s40, v{t0}")
    E(f"  v_lshlrev_b32 v{t2}, 4, v{t2}")
    E(f"  v_lshl_add_u32 v{t2}, v{t1}, 2, v{t2}")
    E(f"  ds_write_b32 v{t2}, v{V_ST}")
    E(f"  ds_write_b32 v{t2}, v{V_ST+1} offset:256")
    E(f"  ds_write_b32 v{t2}, v{V_ST+2} offset:2048")
    E(f"  ds_write_b32 v{t2}, v{V_ST+3} offset:2304")
    E("  s_lshl_b32 s40, s28, 6")
    E("  s_lshl_b32 s41, s27, 5")
    E("  s_add_u32 s40, s40, s41")
    E(f"  v_add_u32 v{t2}, s40, v{t0}")
    E(f"  v_lshlrev_b32 v{t2}, 4, v{t2}")
    E(f"  v_lshl_add_u32 v{t2}, v{t1}, 2, v{t2}")
    E(f"  ds_write_b32 v{t2}, v{V_ST+4} offset:4096")
    E(f"  ds_write_b32 v{t2}, v{V_ST+5} offset:4352")
    E(f"  v_lshl_or_b32 v{t3}, s26, 6, v0")
    if k1:
        E(f"  v_mov_b32 v{V_E}, 0")
        E(f"  v_mov_b32 v{V_E+1}, 0")
        E(f"  v_mov_b32 v{V_E+2}, 0")
        E(f"  v_mov_b32 v{V_E+3}, 0")
        E(f"  v_lshlrev_b32 v{t4}, 4, v{t3}")
        E(f"  ds_write_b128 v{t4}, {vr(V_E,4)} offset:8192")
    E("  s_waitcnt lgkmcnt(0)")
    E("  s_barrier")
    E(f"  v_lshlrev_b32 v{t4}, 4, v{t3}")
    E("  s_cmp_ge_u32 s26, 2")
    E(f"  s_cbranch_scc1 {L}_fin_cs")
    E(f"  ds_read_b128 {vr(V_E,4)}, v{t4}")
    E(f"  ds_read_b128 {vr(V_E+4,4)}, v{t4} offset:2048")
    E("  s_waitcnt lgkmcnt(0)")
    E(f"  v_add_f32 v{V_E}, v{V_E}, v{V_E+1}")
    E(f"  v_add_f32 v{V_E+2}, v{V_E+2}, v{V_E+3}")
    E(f"  v_add_f32 v{V_E+4}, v{V_E+4}, v{V_E+5}")
    E(f"  v_add_f32 v{V_E+6}, v{V_E+6}, v{V_E+7}")
    E(f"  v_add_f32 v{V_E}, v{V_E}, v{V_E+2}")
    E(f"  v_add_f32 v{V_E+4}, v{V_E+4}, v{V_E+6}")
    E("  s_mov_b32 s40, 0x3acccccd")
    E(f"  v_mul_f32 v{V_E}, s40, v{V_E}")
    E(f"  v_mul_f32 v{V_E+4}, s40, v{V_E+4}")
    E(f"  v_fma_f32 v{V_E+4}, -v{V_E}, v{V_E}, v{V_E+4}")
    E(f"  v_max_f32 v{V_E+4}, 0, v{V_E+4}")
    E(f"  v_add_f32 v{V_E+4}, 0x3727c5ac, v{V_E+4}")
    E(f"  v_rsq_f32 v{V_E+4}, v{V_E+4}")
    E(f"  v_lshlrev_b32 v{t4}, 2, v{t3}")
    E(f"  ds_write_b32 v{t4}, v{V_E} offset:6144")
    E(f"  ds_write_b32 v{t4}, v{V_E+4} offset:6656")
    E(f"  s_branch {L}_fin_e")
    E(f"{L}_fin_cs:")
    E(f"  ds_read_b128 {vr(V_E,4)}, v{t4} offset:2048")
    E("  s_waitcnt lgkmcnt(0)")
    E(f"  v_add_f32 v{V_E}, v{V_E}, v{V_E+1}")
    E(f"  v_add_f32 v{V_E+2}, v{V_E+2}, v{V_E+3}")
    E(f"  v_add_f32 v{V_E}, v{V_E}, v{V_E+2}")
    E(f"  v_lshlrev_b32 v{t4}, 2, v{t3}")
    E(f"  ds_write_b32 v{t4}, v{V_E} offset:{7168-512}")
    E(f"{L}_fin_e:")
    E("  s_waitcnt lgkmcnt(0)")
    E("  s_barrier")
    MS, RS = V_X, V_X + 4
    CSV = V_X + 8
    MN, RN = V_X + 24, V_X + 40
    CSN = V_X + 56
    E("  s_lshl_b32 s40, s27, 8")
    E("  s_lshl_b32 s41, s28, 8")
    E(f"  v_lshl_add_u32 v{t2}, v{t0}, 2, s40")
    E(f"  v_lshl_add_u32 v{t3}, v{t1}, 4, s41")
    for mt in range(4):
        E(f"  ds_read_b32 v{MS+mt}, v{t2} offset:{6144+64*mt}")
        E(f"  ds_read_b32 v{RS+mt}, v{t2} offset:{6656+64*mt}")
    for t in range(4):
        if swapped[t]:
            E(f"  ds_read_b128 {vr(CSV+4*t,4)}, v{t3} offset:{7168+64*t}")
    if k1:
        E(f"  v_lshl_add_u32 v{t2}, v{t1}, 4, s40")
        E(f"  v_lshl_add_u32 v{t3}, v{t0}, 2, s41")
        for mt in range(4):
            E(f"  ds_read_b128 {vr(MN+4*mt,4)}, v{t2} offset:{6144+64*mt}")
            E(f"  ds_read_b128 {vr(RN+4*mt,4)}, v{t2} offset:{6656+64*mt}")
        for t in range(3):
            E(f"  ds_read_b32 v{CSN+t}, v{t3} offset:{7168+64*t}")
    E("  s_waitcnt lgkmcnt(0)")
    for mt in range(4):
        for t in range(4):
            for r in range(4):
                a = acc(mt, t) + r
                if swapped[t]:
                    E(f"  v_fma_f32 v{a}, -v{MS+mt}, v{CSV+4*t+r}, v{a}")
                    E(f"  v_mul_f32 v{a}, v{RS+mt}, v{a}")
                else:
                    E(f"  v_fma_f32 v{a}, -v{MN+4*mt+r}, v{CSN+t}, v{a}")
                    E(f"  v_mul_f32 v{a}, v{RN+4*mt+r}, v{a}")
    E("  s_mov_b32 s45, 0x3fb8aa3b")
    if k1:
        k1_epilogue()
    else:
        k3_epilogue()
    E(f"{L}_done:")
    E("  s_endpgm")

def k1_epilogue():
    t0, t1, t2, t3, t4 = V_T, V_T + 1, V_T + 2, V_T + 3, V_T + 4
    E("  s_mov_b32 s46, 0x358637bd")
    E(f"  v_and_b32 v{t2}, 12, v{t0}")
    E(f"  v_cmp_eq_u32 s[48:49], 4, v{t2}")
    def phi(a, tmp):
        E(f"  v_min_f32 v{tmp}, 0, v{a}")
        E(f"  v_mul_f32 v{tmp}, s45, v{tmp}")
        E(f"  v_exp_f32 v{tmp}, v{tmp}")
        E(f"  v_max_f32 v{a}, 0, v{a}")
        E(f"  v_add_f32 v{tmp}, s46, v{tmp}")
        E(f"  v_add_f32 v{a}, v{a}, v{tmp}")
    PK = V_E
    for mt in range(4):
        for t in (0, 3):
            for r in range(4):
                phi(acc(mt, t) + r, V_E + 40 + r)
        for r in range(4):
            a = acc(mt, 2) + r
            E(f"  v_mov_b32 v{V_E+44+r}, v{a}")
            phi(a, V_E + 40 + r)
            E(f"  v_cndmask_b32 v{a}, v{a}, v{V_E+44+r}, s[48:49]")
        for t in range(4):
            a = acc(mt, t)
            E(f"  v_cvt_pk_bf16_f32 v{PK+8*t+2*mt}, v{a}, v{a+1}")
            E(f"  v_cvt_pk_bf16_f32 v{PK+8*t+2*mt+1}, v{a+2}, v{a+3}")
    E("  s_lshl_b32 s40, s24, 7")
    E("  s_lshl_b32 s41, s27, 6")
    E("  s_add_u32 s40, s40, s41")
    E(f"  v_add_u32 v{t2}, s40, v{t0}")
    E("  s_movk_i32 s42, 1280")
    E(f"  v_mul_lo_u32 v{t2}, v{t2}, s42")
    E(f"  v_lshl_add_u32 v{t2}, v{t1}, 3, v{t2}")
    E("  s_mul_i32 s41, s25, 80")
    E("  s_lshl_b32 s43, s28, 5")
    E("  s_add_u32 s43, s43, s41")
    for mt in range(4):
        E(f"  s_add_u32 s47, s43, {mt*16*1280+PQ_OFF}")
        E(f"  buffer_store_dwordx2 {vr(PK+24+2*mt,2)}, v{t2}, s[16:19], s47 offen")
    E("  s_cmp_eq_u32 s28, 1")
    E("  s_cbranch_scc1 L1_noq2")
    E(f"  v_lshl_add_u32 v{t2}, v{t1}, 2, s40")
    E(f"  v_mul_lo_u32 v{t2}, v{t2}, s42")
    E(f"  v_lshl_add_u32 v{t2}, v{t0}, 1, v{t2}")
    E(f"  v_cmp_lt_u32 vcc, 7, v{t0}")
    E("  s_and_saveexec_b64 s[50:51], vcc")
    for mt in range(4):
        E(f"  s_add_u32 s47, s41, {mt*16*1280+PQ_OFF+64-16}")
        E(f"  buffer_store_short v{PK+16+2*mt}, v{t2}, s[16:19], s47 offen")
        E(f"  buffer_store_short_d16_hi v{PK+16+2*mt}, v{t2}, s[16:19], s47 offen offset:1280")
        E(f"  buffer_store_short v{PK+16+2*mt+1}, v{t2}, s[16:19], s47 offen offset:2560")
        E(f"  buffer_store_short_d16_hi v{PK+16+2*mt+1}, v{t2}, s[16:19], s47 offen offset:3840")
    E("  s_mov_b64 exec, s[50:51]")
    E("L1_noq2:")
    M = V_ACC
    ON = V_E + 40
    for i in range(4):
        E(f"  v_mov_b32 v{ON+i}, s44")
    E("  s_nop 1")
    for p in range(2):
        P0, V1, X2 = PK + 4 * p, PK + 8 + 4 * p, PK + 16 + 4 * p
        for i, (a, b) in enumerate(((P0, V1), (P0, X2), (X2, V1), (X2, X2), (P0, ON), (X2, ON))):
            c = "0" if p == 0 else vr(M + 4 * i, 4)
            E(f"  v_mfma_f32_16x16x32_bf16 {vr(M+4*i,4)}, {vr(a,4)}, {vr(b,4)}, {c}")
    E("  s_nop 7")
    E("  s_nop 7")
    E("  s_mul_i32 s40, s28, 1680")
    E("  s_add_u32 s40, s40, 8192")
    E(f"  v_mul_u32_u24 v{t2}, 80, v{t0}")
    E(f"  v_lshl_add_u32 v{t2}, v{t1}, 4, v{t2}")
    E(f"  v_add_u32 v{t2}, s40, v{t2}")
    for r in range(4):
        E(f"  ds_add_f32 v{t2}, v{M+r} offset:{4*r}")
    E("  s_mov_b64 exec, s[48:49]")
    for r in range(4):
        E(f"  ds_add_f32 v{t2}, v{M+4+r} offset:{960+4*r}")
    E("  s_mov_b64 exec, 0xffff")
    for r in range(4):
        E(f"  ds_add_f32 v{t2}, v{M+8+r} offset:{64+4*r}")
    E("  s_mov_b64 exec, 0xf0")
    for r in range(4):
        E(f"  ds_add_f32 v{t2}, v{M+12+r} offset:{960+64+4*r}")
    E("  s_mov_b32 s50, 0x00010001")
    E("  s_mov_b32 s51, 0x00010001")
    E("  s_mov_b64 exec, s[50:51]")
    for r in range(4):
        E(f"  ds_add_f32 v{t2}, v{M+16+r} offset:{1600+4*r}")
    E("  s_mov_b64 exec, 1")
    for r in range(4):
        E(f"  ds_add_f32 v{t2}, v{M+20+r} offset:{1600+64+4*r}")
    E("  s_cmp_lg_u32 s26, 0")
    E("  s_cbranch_scc1 L1_nopoll")
    E("  s_lshl_b32 s40, s25, 2")
    E(f"  v_mov_b32 v{t3}, s40")
    E("L1_poll:")
    E(f"  buffer_load_dword v{t4}, v{t3}, s[20:23], 0 offen sc0 sc1")
    E("  s_waitcnt vmcnt(0)")
    E(f"  v_readfirstlane_b32 s41, v{t4}")
    E("  s_nop 3")
    E("  s_cmp_eq_u32 s41, 0")
    E("  s_cbranch_scc1 L1_poll")
    E("L1_nopoll:")
    E("  s_mov_b64 exec, -1")
    E("  s_waitcnt lgkmcnt(0)")
    E("  s_barrier")
    E(f"  v_lshl_or_b32 v{t3}, s26, 6, v0")
    E(f"  v_lshlrev_b32 v{t3}, 2, v{t3}")
    for j in range(4):
        E(f"  ds_read_b32 v{V_E+j}, v{t3} offset:{8192+1024*j}")
    E("  s_mul_i32 s40, s25, 3360")
    E(f"  s_add_u32 s40, s40, {KV_OFF}")
    E("  s_waitcnt lgkmcnt(0)")
    for j in range(3):
        E(f"  buffer_atomic_add_f32 v{V_E+j}, v{t3}, s[16:19], s40 offen offset:{1024*j}")
    E(f"  v_cmp_gt_u32 vcc, {3360-3072}, v{t3}")
    E("  s_and_saveexec_b64 s[50:51], vcc")
    E("  s_cbranch_execz L1_done")
    E(f"  buffer_atomic_add_f32 v{V_E+3}, v{t3}, s[16:19], s40 offen offset:3072")

def k3_epilogue():
    t0, t1, t2, t3, t4 = V_T, V_T + 1, V_T + 2, V_T + 3, V_T + 4
    PK = V_E
    for mt in range(4):
        for t in range(4):
            a = acc(mt, t)
            tm = V_E + 40
            for r in range(4):
                E(f"  v_mul_f32 v{tm+r}, s45, v{a+r}")
            for r in range(4):
                E(f"  v_exp_f32 v{tm+r}, -v{tm+r}")
            for r in range(4):
                E(f"  v_add_f32 v{tm+r}, 1.0, v{tm+r}")
            for r in range(4):
                E(f"  v_rcp_f32 v{tm+r}, v{tm+r}")
            for r in range(4):
                E(f"  v_mul_f32 v{a+r}, v{a+r}, v{tm+r}")
            E(f"  v_cvt_pk_bf16_f32 v{PK+(mt*4+t)*2}, v{a}, v{a+1}")
            E(f"  v_cvt_pk_bf16_f32 v{PK+(mt*4+t)*2+1}, v{a+2}, v{a+3}")
    E("  s_lshl_b32 s40, s24, 7")
    E("  s_lshl_b32 s41, s27, 6")
    E("  s_add_u32 s40, s40, s41")
    E(f"  v_add_u32 v{t2}, s40, v{t0}")
    E("  s_movk_i32 s42, 3456")
    E(f"  v_mul_lo_u32 v{t2}, v{t2}, s42")
    E(f"  v_lshl_add_u32 v{t2}, v{t1}, 3, v{t2}")
    E("  s_mul_i32 s41, s25, 224")
    E("  s_lshl_b32 s43, s28, 7")
    E("  s_add_u32 s43, s43, s41")
    for t in range(4):
        E(f"  s_add_u32 s46, s43, {32*t}")
        E("  s_cmp_ge_u32 s46, 3456")
        E(f"  s_cbranch_scc1 L3_skip")
        if t == 3:
            E("  s_cmp_eq_u32 s28, 1")
            E(f"  s_cbranch_scc1 L3_skip")
        for mt in range(4):
            E(f"  s_add_u32 s47, s46, {mt*16*3456+H1_OFF}")
            E(f"  buffer_store_dwordx2 {vr(PK+(mt*4+t)*2,2)}, v{t2}, s[16:19], s47 offen")
    E("L3_skip:")

def head_6480(which):
    E("  s_cmp_ge_u32 s2, 256")
    E(f"  s_cbranch_scc1 L{which}_done")
    E("  s_load_dwordx4 s[36:39], s[0:1], 56")
    E("  s_load_dwordx2 s[4:5], s[0:1], 48")
    E(f"  s_load_dwordx2 s[6:7], s[0:1], {16 if which == 2 else 40}")
    E("  s_load_dwordx2 s[42:43], s[0:1], 0")
    E("  s_and_b32 s40, s2, 7")
    E("  s_lshr_b32 s41, s2, 3")
    E("  s_lshl_b32 s24, s40, 2")
    E("  s_and_b32 s44, s41, 3")
    E("  s_add_u32 s24, s24, s44")
    E("  s_lshr_b32 s25, s41, 2")
    E("  v_lshrrev_b32 v1, 6, v0")
    E("  v_mov_b32 v2, v0")
    E("  v_and_b32 v0, 63, v0")
    E("  v_readfirstlane_b32 s26, v1")
    E("  s_nop 3")
    E("  s_waitcnt lgkmcnt(0)")

def final_reduce(which, accf, RES, res_srd, dst_srd, dst_add, wbase_stride):
    E("  v_and_b32 v3, 15, v0")
    E("  v_lshrrev_b32 v4, 4, v0")
    E(f"  s_mul_i32 s40, s26, {wbase_stride}")
    E("  v_mul_u32_u24 v5, 320, v3")
    E("  v_lshl_add_u32 v5, v4, 4, v5")
    E("  v_add_u32 v5, s40, v5")
    E("  s_nop 7")
    E("  s_nop 7")
    for mt in range(4):
        for nt in range(5):
            E(f"  ds_write_b128 v5, {vr(accf(mt,nt),4)} offset:{mt*16*320+nt*64}")
    E("  s_waitcnt lgkmcnt(0)")
    E("  s_barrier")
    E("  v_lshrrev_b32 v3, 2, v2")
    E("  v_and_b32 v4, 3, v2")
    E("  v_mul_u32_u24 v5, 320, v3")
    E("  v_mul_u32_u24 v6, 80, v4")
    E("  v_add_u32 v5, v5, v6")
    B = 32
    for w in range(4):
        for j in range(5):
            a = w * wbase_stride + j * 16
            if a < 65536:
                E(f"  ds_read_b128 {vr(B+w*20+j*4,4)}, v5 offset:{a}")
            else:
                if j == 0 and (w * wbase_stride >= 65536) and ((w - 1) * wbase_stride < 65536):
                    E(f"  v_add_u32 v6, {w*wbase_stride}, v5")
                    base_w = w
                E(f"  ds_read_b128 {vr(B+w*20+j*4,4)}, v6 offset:{a-base_w*wbase_stride}")
    E("  s_waitcnt lgkmcnt(0)")
    for i in range(20):
        E(f"  v_add_f32 v{B+i}, v{B+i}, v{B+20+i}")
        E(f"  v_add_f32 v{B+40+i}, v{B+40+i}, v{B+60+i}")
    for i in range(20):
        E(f"  v_add_f32 v{B+i}, v{B+i}, v{B+40+i}")
    E("  s_waitcnt vmcnt(0)")
    for i in range(10):
        E(f"  v_lshlrev_b32 v{B+20}, 16, v{RES+i}")
        E(f"  v_and_b32 v{B+21}, 0xffff0000, v{RES+i}")
        if which == 2:
            E(f"  v_cvt_pk_bf16_f32 v{B+22}, v{B+2*i}, v{B+2*i+1}")
            E(f"  v_lshlrev_b32 v{B+2*i}, 16, v{B+22}")
            E(f"  v_and_b32 v{B+2*i+1}, 0xffff0000, v{B+22}")
        E(f"  v_add_f32 v{B+2*i}, v{B+2*i}, v{B+20}")
        E(f"  v_add_f32 v{B+2*i+1}, v{B+2*i+1}, v{B+21}")
        E(f"  v_cvt_pk_bf16_f32 v{B+24+i}, v{B+2*i}, v{B+2*i+1}")
    for j in range(5):
        E(f"  buffer_store_dwordx2 {vr(B+24+2*j,2)}, v7, {sr(dst_srd,4)}, 0 offen offset:{8*j}")

def res_addr():
    E("  v_lshrrev_b32 v3, 2, v2")
    E("  s_lshl_b32 s40, s24, 6")
    E("  v_add_u32 v3, s40, v3")
    E("  s_movk_i32 s41, 1280")
    E("  v_mul_lo_u32 v7, v3, s41")
    E("  v_and_b32 v4, 3, v2")
    E("  v_mad_u32_u24 v7, v4, 40, v7")
    E("  s_mul_i32 s40, s25, 160")
    E("  v_add_u32 v7, s40, v7")

def k4(name):
    kernel_head(name)
    head_6480(4)
    srd(8, 38, 2048 * 3456, H1_OFF)
    srd(12, 6, 1728 * 1280)
    srd(16, 38, 2048 * 1280, H_OFF)
    srd(20, 4, 2048 * 1280)
    res_addr()
    RES = 240
    for j in range(5):
        E(f"  buffer_load_dwordx2 {vr(RES+2*j,2)}, v7, s[16:19], 0 offen offset:{8*j}")
    E("  v_lshrrev_b32 v3, 2, v0")
    E("  v_lshrrev_b32 v4, 4, v0")
    E("  v_sub_u32 v4, 0, v4")
    E("  v_xor_b32 v4, v4, v0")
    E("  v_and_b32 v4, 3, v4")
    E("  v_lshlrev_b32 v4, 4, v4")
    E("  s_lshl_b32 s40, s24, 6")
    E("  v_add_u32 v3, s40, v3")
    E("  s_movk_i32 s41, 3456")
    E("  v_mad_u32_u24 v8, v3, s41, v4")
    for j in range(1, 4):
        E(f"  v_add_u32 v{8+j}, {j*(16*3456-1024)}, v8")
    E("  s_movk_i32 s41, 6554")
    E("  s_mul_i32 s42, s25, 160")
    for j in range(5):
        E(f"  v_add_u32 v3, {64*j}, v0")
        E("  v_mul_u32_u24 v4, s41, v3")
        E("  v_lshrrev_b32 v4, 16, v4")
        E("  v_mul_u32_u24 v5, 10, v4")
        E("  v_sub_u32 v5, v3, v5")
        E("  v_and_b32 v6, 0x13, v4")
        E("  v_bfe_u32 v3, v4, 2, 1")
        E("  v_lshl_or_b32 v6, v3, 3, v6")
        E("  v_bfe_u32 v3, v4, 3, 1")
        E("  v_lshl_or_b32 v6, v3, 2, v6")
        E("  v_mul_u32_u24 v6, 1280, v6")
        E("  v_lshl_add_u32 v6, v5, 4, v6")
        E(f"  v_add_u32 v{12+j}, s42, v6")
        if 0 < j < 4:
            E(f"  v_subrev_u32 v{12+j}, {j*1024}, v{12+j}")
    E("  s_mul_i32 s34, s26, 36864")
    E("  v_and_b32 v3, 15, v0")
    E("  v_lshrrev_b32 v4, 4, v0")
    E("  v_lshrrev_b32 v5, 2, v3")
    E("  v_sub_u32 v6, 0, v5")
    E("  v_xor_b32 v6, v6, v4")
    E("  v_and_b32 v6, 3, v6")
    E("  v_lshlrev_b32 v6, 4, v6")
    E("  v_lshl_add_u32 v6, v3, 6, v6")
    E("  v_add_u32 v17, s34, v6")
    E("  v_lshrrev_b32 v6, 1, v4")
    E("  v_lshl_add_u32 v6, v6, 4, v5")
    E("  v_and_b32 v4, 1, v4")
    E("  v_lshl_add_u32 v6, v4, 2, v6")
    E("  v_mul_u32_u24 v6, 160, v6")
    E("  v_and_b32 v3, 3, v3")
    E("  v_lshl_add_u32 v6, v3, 3, v6")
    E("  v_add_u32 v6, 4096, v6")
    E("  v_add_u32 v18, s34, v6")
    E("  s_mul_i32 s32, s26, 896")
    E(f"  s_mul_i32 s33, s26, {14*32*1280}")
    ACC = 32
    def accf(mt, nt):
        return ACC + (mt * 5 + nt) * 4
    for i in range(80):
        E(f"  v_mov_b32 v{ACC+i}, 0")
    X, Y = 112, 152
    def dma(step):
        sl = step % 4
        E(f"  s_add_u32 s35, s34, {sl*9216}")
        E("  s_mov_b32 m0, s35")
        E("  s_add_u32 s35, s35, 4096")
        for j in range(4):
            E(f"  buffer_load_dwordx4 v{8+j}, s[8:11], s32 offen offset:{j*1024} lds")
        E("  s_mov_b32 m0, s35")
        E("  s_add_u32 s35, s35, 4096")
        for j in range(4):
            E(f"  buffer_load_dwordx4 v{12+j}, s[12:15], s33 offen offset:{j*1024} lds")
        E("  s_mov_b32 m0, s35")
        E("  s_add_u32 s32, s32, 64")
        E("  buffer_load_dwordx4 v16, s[12:15], s33 offen lds")
        E(f"  s_add_u32 s33, s33, {32*1280}")
    def reads(step, base):
        sl = step % 4
        for mt in range(4):
            E(f"  ds_read_b128 {vr(base+4*mt,4)}, v17 offset:{sl*9216+mt*1024}")
        for nt in range(5):
            for h in range(2):
                E(f"  ds_read_b64_tr_b16 {vr(base+16+4*nt+2*h,2)}, v18 offset:{sl*9216+h*1280+nt*32}")
    NSTEP = 14
    for s in range(3):
        dma(s)
    E("  s_waitcnt vmcnt(18)")
    reads(0, X)
    for i in range(NSTEP):
        cur, nxt = (X, Y) if i % 2 == 0 else (Y, X)
        if i + 1 < NSTEP:
            E(f"  s_waitcnt vmcnt({9 if i+2 < NSTEP else 0})")
            reads(i + 1, nxt)
        if i + 3 < NSTEP:
            dma(i + 3)
        E(f"  s_waitcnt lgkmcnt({14 if i+1 < NSTEP else 0})")
        for mt in range(4):
            for nt in range(5):
                E(f"  v_mfma_f32_16x16x32_bf16 {vr(accf(mt,nt),4)}, {vr(cur+16+4*nt,4)}, {vr(cur+4*mt,4)}, {vr(accf(mt,nt),4)}")
    final_reduce(4, accf, RES, 16, 20, 0, 36864)
    E("L4_done:")
    E("  s_endpgm")

def k2(name):
    kernel_head(name)
    head_6480(2)
    srd(8, 38, 2048 * 1280, PQ_OFF)
    srd(12, 6, 640 * 1280)
    srd(16, 42, 2048 * 1280)
    srd(20, 38, 2048 * 1280, H_OFF)
    srd(28, 38, 53760, KV_OFF)
    res_addr()
    RES = 242
    E("  s_mul_i32 s34, s26, 40960")
    E("  s_movk_i32 s41, 3121")
    E("  s_lshl_b32 s40, s24, 6")
    E("  s_mul_i32 s42, s26, 320")
    E("  s_movk_i32 s43, 1280")
    E("  s_mov_b32 m0, s34")
    for j in range(21):
        E(f"  v_add_u32 v3, {64*j}, v0")
        E("  v_mul_u32_u24 v4, s41, v3")
        E("  v_lshrrev_b32 v4, 16, v4")
        E("  v_mul_u32_u24 v5, 21, v4")
        E("  v_sub_u32 v5, v3, v5")
        E("  v_add_u32 v4, s40, v4")
        E("  v_mul_lo_u32 v4, v4, s43")
        E("  v_lshl_add_u32 v4, v5, 4, v4")
        E("  buffer_load_dwordx4 v4, s[8:11], s42 offen lds")
        E("  s_add_u32 m0, m0, 1024")
    E("  v_lshlrev_b32 v3, 4, v0")
    E("  s_mul_i32 s42, s26, 13440")
    for j in range(14):
        E("  buffer_load_dwordx4 v3, s[28:31], s42 offen lds")
        E("  s_add_u32 m0, m0, 1024")
        E("  s_add_u32 s42, s42, 1024")
    E("  s_movk_i32 s41, 6554")
    E("  s_mul_i32 s42, s26, 204800")
    E("  s_mul_i32 s44, s25, 160")
    E("  s_add_u32 s42, s42, s44")
    for j in range(25):
        E(f"  v_add_u32 v3, {64*j}, v0")
        E("  v_mul_u32_u24 v4, s41, v3")
        E("  v_lshrrev_b32 v4, 16, v4")
        E("  v_mul_u32_u24 v5, 10, v4")
        E("  v_sub_u32 v5, v3, v5")
        E("  v_mul_u32_u24 v4, 1280, v4")
        E("  v_lshl_add_u32 v4, v5, 4, v4")
        E(f"  buffer_load_dwordx4 a[{4*j}:{4*j+3}], v4, s[12:15], s42 offen")
    for j in range(5):
        E(f"  buffer_load_dwordx2 {vr(RES+2*j,2)}, v7, s[16:19], 0 offen offset:{8*j}")
    E("  v_and_b32 v3, 15, v0")
    E("  v_lshrrev_b32 v4, 4, v0")
    E("  v_cmp_eq_u32 s[46:47], 0, v4")
    E("  v_lshrrev_b32 v5, 2, v3")
    for q in range(4):
        E(f"  v_cmp_eq_u32 s[{48+2*q}:{49+2*q}], {q}, v5")
        E(f"  v_cmp_eq_u32 s[{56+2*q}:{57+2*q}], {q}, v4")
    E("  s_add_u32 s35, s34, 21504")
    E("  v_mul_u32_u24 v8, 80, v3")
    E("  v_add_u32 v8, s35, v8")
    E("  v_lshl_add_u32 v9, v4, 4, v8")
    E("  v_and_b32 v10, 3, v3")
    E("  v_mul_u32_u24 v10, 80, v10")
    E("  v_add_u32 v10, s35, v10")
    E("  v_add_u32 v10, 1280, v10")
    E("  v_lshl_add_u32 v11, v4, 4, v10")
    E("  v_mov_b32 v12, s35")
    E("  v_add_u32 v12, 1600, v12")
    E("  v_lshl_add_u32 v13, v4, 4, v12")
    E("  s_waitcnt vmcnt(30)")
    KF = 32
    T = 208
    for hh in range(8):
        o = hh * 1680
        E(f"  ds_read_b128 {vr(T,4)}, v9 offset:{o}")
        E(f"  ds_read_b128 {vr(T+4,4)}, v8 offset:{o+64}")
        E(f"  ds_read_b128 {vr(T+8,4)}, v11 offset:{o}")
        E(f"  ds_read_b128 {vr(T+12,4)}, v10 offset:{o+64}")
        E(f"  ds_read_b128 {vr(T+16,4)}, v13 offset:{o}")
        E(f"  ds_read_b128 {vr(T+20,4)}, v12 offset:{o+64}")
        E("  s_waitcnt lgkmcnt(0)")
        f = KF + 12 * hh
        for tt in range(3):
            for p in range(4):
                E(f"  v_cvt_pk_bf16_f32 v{f+4*tt+p}, v{T+8*tt+2*p}, v{T+8*tt+2*p+1}")
        m = f"s[{48+2*(hh%4)}:{49+2*(hh%4)}]"
        for tt in range(3):
            E(f"  v_cndmask_b32 v{f+4*tt+2}, 0, v{f+4*tt+2}, s[46:47]")
            E(f"  v_cndmask_b32 v{f+4*tt+3}, 0, v{f+4*tt+3}, s[46:47]")
        for p in range(4):
            E(f"  v_cndmask_b32 v{f+4+p}, 0, v{f+4+p}, {m}")
    E("  v_mul_u32_u24 v14, 336, v3")
    E("  v_add_u32 v14, s34, v14")
    E("  v_add_u32 v15, 32, v14")
    E("  v_lshl_add_u32 v14, v4, 3, v14")
    OF = 128
    def of(mt, ks):
        return OF + mt * 20 + ks * 4
    PQ, N0, D, N1, RS = 208, 216, 224, 232, 240
    E("  s_mov_b32 s45, 0x358637bd")
    for mp in range(2):
        for hh in range(8):
            f = KF + 12 * hh
            for u in range(2):
                mt = 2 * mp + u
                E(f"  ds_read_b64 {vr(PQ+4*u,2)}, v14 offset:{mt*16*336+40*hh}")
                E(f"  ds_read_b64 {vr(PQ+4*u+2,2)}, v15 offset:{mt*16*336+40*hh}")
            E("  s_waitcnt lgkmcnt(0)")
            for u in range(2):
                E(f"  v_mfma_f32_16x16x32_bf16 {vr(D+4*u,4)}, {vr(f+8,4)}, {vr(PQ+4*u,4)}, 0")
            for u in range(2):
                E(f"  v_mfma_f32_16x16x32_bf16 {vr(N0+4*u,4)}, {vr(f,4)}, {vr(PQ+4*u,4)}, 0")
            for u in range(2):
                c = "0" if hh % 4 == 0 else vr(N1 + 4 * u, 4)
                E(f"  v_mfma_f32_16x16x32_bf16 {vr(N1+4*u,4)}, {vr(f+4,4)}, {vr(PQ+4*u,4)}, {c}")
            E("  s_nop 4")
            for u in range(2):
                E(f"  v_add_f32 v{D+4*u}, s45, v{D+4*u}")
                E(f"  v_rcp_f32 v{D+4*u}, v{D+4*u}")
            E("  s_nop 1")
            for u in range(2):
                mt = 2 * mp + u
                for r in range(4):
                    E(f"  v_mul_f32 v{N0+4*u+r}, v{N0+4*u+r}, v{D+4*u}")
                dst = of(mt, hh // 2) + 2 * (hh % 2)
                E(f"  v_cvt_pk_bf16_f32 v{dst}, v{N0+4*u}, v{N0+4*u+1}")
                E(f"  v_cvt_pk_bf16_f32 v{dst+1}, v{N0+4*u+2}, v{N0+4*u+3}")
                gm = f"s[{56+2*(hh%4)}:{57+2*(hh%4)}]"
                E(f"  v_cndmask_b32 v{RS+u}, v{RS+u}, v{D+4*u}, {gm}")
            if hh % 4 == 3:
                E("  s_nop 4")
                for u in range(2):
                    mt = 2 * mp + u
                    for r in range(4):
                        E(f"  v_mul_f32 v{D+4*u+r}, v{N1+4*u+r}, v{RS+u}")
                    dst = of(mt, 4) + 2 * (hh // 4)
                    E(f"  v_cvt_pk_bf16_f32 v{dst}, v{D+4*u}, v{D+4*u+1}")
                    E(f"  v_cvt_pk_bf16_f32 v{dst+1}, v{D+4*u+2}, v{D+4*u+3}")
    E("  s_waitcnt vmcnt(5)")
    E("  v_lshlrev_b32 v16, 4, v0")
    E("  v_add_u32 v16, s34, v16")
    for j in range(25):
        E(f"  ds_write_b128 v16, a[{4*j}:{4*j+3}] offset:{1024*j}")
    E("  v_lshl_add_u32 v17, v4, 2, v5")
    E("  v_mul_u32_u24 v17, 160, v17")
    E("  v_and_b32 v6, 3, v3")
    E("  v_lshl_add_u32 v17, v6, 3, v17")
    E("  v_add_u32 v17, s34, v17")
    E("  v_mul_u32_u24 v18, 20, v4")
    E("  v_add_u32 v18, v18, v5")
    E("  v_add_u32 v18, 16, v18")
    E("  v_mul_u32_u24 v18, 160, v18")
    E("  v_lshl_add_u32 v18, v6, 3, v18")
    E("  v_add_u32 v18, s34, v18")
    ACC = 32
    def accf(mt, nt):
        return ACC + (mt * 5 + nt) * 4
    WF = 208
    E("  s_waitcnt lgkmcnt(0)")
    for ks in range(5):
        for nt in range(5):
            for h in range(2):
                if ks < 4:
                    E(f"  ds_read_b64_tr_b16 {vr(WF+4*nt+2*h,2)}, v17 offset:{ks*6400+h*3200+nt*32}")
                else:
                    E(f"  ds_read_b64_tr_b16 {vr(WF+4*nt+2*h,2)}, v18 offset:{h*12800+nt*32}")
        E("  s_waitcnt lgkmcnt(0)")
        for nt in range(5):
            for mt in range(4):
                c = "0" if ks == 0 else vr(accf(mt, nt), 4)
                E(f"  v_mfma_f32_16x16x32_bf16 {vr(accf(mt,nt),4)}, {vr(WF+4*nt,4)}, {vr(of(mt,ks),4)}, {c}")
    final_reduce(2, accf, RES, 16, 20, 0, 40960)
    E("L2_done:")
    E("  s_endpgm")

def main():
    N = ["k1_qkv_kernel", "k2_attn_kernel", "k3_ffn1_kernel", "k4_ffn2_kernel"]
    hdr = open('cdna_kernels/' + NAME + '.s.ref').read().split("; Override")[0]
    E(hdr.rstrip())
    lds = [NS * SLOT, 163840, NS * SLOT, 4 * 36864]
    sel = sys.argv[2].split(",") if len(sys.argv) > 2 else ["1", "2", "3", "4"]
    for i, n in enumerate(N):
        if str(i + 1) in sel:
            E(f"; @launch kernel={n} grid=(256,1,1) block=(256,1,1) lds={lds[i]}")
    E('.amdgcn_target "amdgcn-amd-amdhsa--gfx950"')
    E(".text")
    ln_gemm(N[0], 1)
    k2(N[1])
    ln_gemm(N[2], 3)
    k4(N[3])
    E('.section .rodata,"a"')
    E(kernel_desc(N[0]))
    E(kernel_desc(N[1], vgpr=360))
    E(kernel_desc(N[2]))
    E(kernel_desc(N[3]))
    open(sys.argv[1], 'w').write("\n".join(out) + "\n")

main()
```

```python
import sys, os
NAME = "sequential_preLN__linear_attn_block__dense_activation_silu__prompt"
PQ_OFF = 0
KV_OFF = 0x280000
H_OFF = 0x290000
H1_OFF = 0x510000
RS_OFF = H1_OFF + 2048 * 1728 * 2
W1T_OFF = RS_OFF + 2048 * 64
W2T_OFF = W1T_OFF + 16 * 163840
WOT_OFF = W2T_OFF + 8 * 276480
PQT_OFF = WOT_OFF + 8 * 102400
WS_BYTES = PQT_OFF + 128 * 21504
out = []
def E(s=""):
    out.append(s)
def vr(b, n=1):
    return f"v{b}" if n == 1 else f"v[{b}:{b+n-1}]"
def sr(b, n=1):
    return f"s{b}" if n == 1 else f"s[{b}:{b+n-1}]"
def srd(dst, lo, nbytes, add=0):
    if add:
        E(f"  s_add_u32 s{dst}, s{lo}, {add}")
        E(f"  s_addc_u32 s{dst+1}, s{lo+1}, 0")
    else:
        E(f"  s_mov_b32 s{dst}, s{lo}")
        E(f"  s_mov_b32 s{dst+1}, s{lo+1}")
    E(f"  s_mov_b32 s{dst+2}, {nbytes}")
    E(f"  s_mov_b32 s{dst+3}, 0x00020000")
STAMP = os.environ.get("STAMP", "")
stamp_n = [0]
SB0 = 64 if STAMP == "2" else 60
def stamp(which):
    if STAMP != str(which): return
    i = stamp_n[0]; stamp_n[0] += 1
    E(f"  s_memtime s[{SB0+2*i}:{SB0+1+2*i}]")
def stamp_flush(which, dbg_lo, wave=0):
    if STAMP != str(which): return
    n = stamp_n[0]
    E("  s_waitcnt lgkmcnt(0) vmcnt(0)")
    E("  s_mov_b64 exec, -1")
    E(f"  s_cmp_lg_u32 s2, {os.environ.get('STAMPWG','0')}")
    E(f"  s_cbranch_scc1 LS{which}_skip")
    E(f"  s_mov_b32 s92, s{dbg_lo}")
    E(f"  s_mov_b32 s93, s{dbg_lo+1}")
    E("  s_mov_b32 s94, 256")
    E("  s_mov_b32 s95, 0x00020000")
    E("  s_mov_b64 exec, 1")
    E("  v_mov_b32 v1, 0")
    for i in range(n):
        E(f"  s_sub_u32 s58, s{SB0+2*i}, s{SB0}")
        E("  v_mov_b32 v2, s58")
        E(f"  buffer_store_dword v2, v1, s[92:95], 0 offen offset:{128+4*i}")
    E(f"LS{which}_skip:")
    stamp_n[0] = 0
def kernel_head(name):
    E(f".globl {name}")
    E(".p2align 8")
    E(f".type {name},@function")
    E(f"{name}:")
def kernel_desc(name, vgpr=168, sgpr=96, accoff=None):
    return f""".p2align 6
.amdhsa_kernel {name}
  .amdhsa_next_free_vgpr {vgpr}
  .amdhsa_next_free_sgpr {sgpr}
  .amdhsa_accum_offset {accoff or (vgpr+3)//4*4}
  .amdhsa_group_segment_fixed_size 0
  .amdhsa_kernarg_size 72
  .amdhsa_user_sgpr_count 2
  .amdhsa_user_sgpr_kernarg_segment_ptr 1
  .amdhsa_system_sgpr_workgroup_id_x 1
.end_amdhsa_kernel"""

def interleave(mf, other, per=int(os.environ.get("PER","1"))):
    other = list(other)
    for m in mf:
        E(m)
        for _ in range(per):
            if other: E(other.pop(0))
    for o in other: E(o)

NS = 4
SLOT = 32768
NST = 10
AUX = NS * SLOT
A_SUM, A_SQ, A_CS = AUX, AUX + 512, AUX + 1024
A_MEAN, A_RSTD = AUX + 2048, AUX + 2560
A_KV = AUX + 4096
A_CP = AUX + 12288
U2 = 62

V_RA, V_RB = 2, 4
V_T = 8
V_X, V_Y, V_ACC, V_E = 16, 48, 80, 144
def acc(mt, t): return V_ACC + (mt * 4 + t) * 4

def ln_gemm(name, which):
    k1 = which == 1
    L = f"L{which}"
    ldb = 3840 if k1 else 3456
    swapped = [False, False, False, True] if k1 else [True] * 4
    t0, t1, t2, t3, t4 = V_T, V_T + 1, V_T + 2, V_T + 3, V_T + 4
    kernel_head(name)
    E("  s_cmp_ge_u32 s2, 256")
    E(f"  s_cbranch_scc1 {L}_done")
    E("  s_load_dwordx2 s[4:5], s[0:1], 0" if k1 else "  s_load_dwordx2 s[4:5], s[0:1], 64")
    E(f"  s_load_dwordx2 s[6:7], s[0:1], {8 if k1 else 32}")
    E("  s_load_dwordx4 s[36:39], s[0:1], 56")
    stamp(which)
    E("  s_and_b32 s40, s2, 7")
    E("  s_lshr_b32 s41, s2, 3")
    E("  s_lshr_b32 s24, s40, 1")
    E("  s_lshl_b32 s24, s24, 2")
    E("  s_and_b32 s42, s41, 3")
    E("  s_add_u32 s24, s24, s42")
    E("  s_and_b32 s25, s40, 1")
    E("  s_lshl_b32 s25, s25, 3")
    E("  s_lshr_b32 s42, s41, 2")
    E("  s_add_u32 s25, s25, s42")
    E("  v_lshrrev_b32 v1, 6, v0")
    E("  v_and_b32 v0, 63, v0")
    E("  v_readfirstlane_b32 s26, v1")
    E("  s_nop 3")
    E("  s_cmp_ge_u32 s26, 4")
    E(f"  s_cbranch_scc1 {L}_loader")
    E("  s_lshr_b32 s27, s26, 1")
    E("  s_and_b32 s28, s26, 1")
    E(f"  v_and_b32 v{t0}, 15, v0")
    E(f"  v_lshrrev_b32 v{t1}, 4, v0")
    E(f"  v_and_b32 v{t2}, 7, v{t0}")
    E(f"  v_xor_b32 v{t2}, v{t2}, v{t1}")
    E(f"  v_lshlrev_b32 v{t2}, 4, v{t2}")
    E(f"  v_lshl_add_u32 v{t2}, v{t0}, 7, v{t2}")
    E("  s_lshl_b32 s40, s27, 13")
    E(f"  v_add_u32 v{V_RA}, s40, v{t2}")
    E(f"  v_xor_b32 v{V_RA+1}, 64, v{V_RA}")
    E(f"  v_lshrrev_b32 v{t2}, 2, v{t0}")
    E(f"  v_and_b32 v{t3}, 1, v{t1}")
    E(f"  v_lshl_add_u32 v{t3}, v{t3}, 2, v{t2}")
    E(f"  v_lshl_add_u32 v{t2}, v{t1}, 3, v{t2}")
    E(f"  v_lshlrev_b32 v{t2}, 8, v{t2}")
    E(f"  v_add_u32 v{t2}, 16384, v{t2}")
    E(f"  v_and_b32 v{t4}, 3, v{t0}")
    for t in range(4):
        u = V_E
        if k1:
            E("  s_mul_i32 s40, s28, 5")
            if t == 0:
                E(f"  v_add_u32 v{u}, s40, v{t4}")
            elif t == 1:
                E("  s_add_u32 s40, s40, 10")
                E(f"  v_add_u32 v{u}, s40, v{t4}")
            elif t == 3:
                E("  s_lshl_b32 s40, s28, 2")
                E("  s_add_u32 s40, s40, 20")
                E(f"  v_add_u32 v{u}, s40, v{t4}")
            else:
                E(f"  v_mul_u32_u24 v{u}, 10, v{t4}")
                E("  s_add_u32 s40, s40, 4")
                E(f"  v_add_u32 v{u}, s40, v{u}")
                E(f"  v_add_u32 v{u+1}, 26, v{t4}")
                E(f"  v_cmp_gt_u32 vcc, 2, v{t4}")
                E("  s_nop 1")
                E(f"  v_cndmask_b32 v{u}, v{u+1}, v{u}, vcc")
        else:
            E("  s_lshl_b32 s40, s28, 4")
            E(f"  s_add_u32 s40, s40, {4*t}")
            E(f"  v_add_u32 v{u}, s40, v{t4}")
        E(f"  v_lshrrev_b32 v{u+1}, 2, v{u}")
        E(f"  v_xor_b32 v{u+1}, v{u+1}, v{t3}")
        E(f"  v_lshl_add_u32 v{u+1}, v{u+1}, 5, v{t2}")
        E(f"  v_and_b32 v{u}, 3, v{u}")
        E(f"  v_lshl_add_u32 v{V_RB+t}, v{u}, 3, v{u+1}")
    for i in range(64):
        E(f"  v_mov_b32 v{V_ACC+i}, 0")
    E(f"  s_mov_b32 s52, {SLOT}")
    E("  s_waitcnt lgkmcnt(0)")
    srd(16, 38, WS_BYTES)
    srd(20, 36, 256)
    E(f"  v_lshl_or_b32 v{t3}, s26, 6, v0")
    if k1:
        relayout(t3)
        for i in range(4):
            E(f"  v_mov_b32 v{V_E+i}, 0")
        E(f"  v_lshlrev_b32 v{t4}, 4, v{t3}")
        E(f"  v_add_u32 v{t2}, {A_KV}, v{t4}")
        E(f"  ds_write_b128 v{t2}, {vr(V_E,4)}")
        E("  s_cmp_ge_u32 s2, 16")
        E(f"  s_cbranch_scc1 {L}_nozero")
        E("  s_mul_i32 s40, s2, 3360")
        E(f"  s_add_u32 s40, s40, {KV_OFF}")
        E(f"  v_cmp_gt_u32 vcc, 210, v{t3}")
        E("  s_and_saveexec_b64 s[46:47], vcc")
        E(f"  buffer_store_dwordx4 {vr(V_E,4)}, v{t4}, s[16:19], s40 offen sc0 sc1")
        E("  s_mov_b64 exec, s[46:47]")
        E("  s_waitcnt vmcnt(0)")
        E("  s_lshl_b32 s40, s2, 2")
        E(f"  v_mov_b32 v{t2}, s40")
        E(f"  v_mov_b32 v{t4}, 1")
        E("  s_mov_b64 exec, 1")
        E(f"  buffer_atomic_add v{t4}, v{t2}, s[20:23], 0 offen sc1")
        E("  s_mov_b64 exec, -1")
        E(f"{L}_nozero:")
    else:
        E("  s_cmp_ge_u32 s26, 2")
        E(f"  s_cbranch_scc1 {L}_nors")
        E("  s_lshl_b32 s40, s24, 13")
        E(f"  s_add_u32 s40, s40, {RS_OFF}")
        E(f"  v_lshlrev_b32 v{t4}, 6, v{t3}")
        for i in range(4):
            E(f"  buffer_load_dwordx4 {vr(V_X+4*i,4)}, v{t4}, s[16:19], s40 offen offset:{16*i}")
        E("  s_waitcnt vmcnt(0)")
        for i in range(1, 8):
            E(f"  v_add_f32 v{V_X}, v{V_X}, v{V_X+2*i}")
            E(f"  v_add_f32 v{V_X+1}, v{V_X+1}, v{V_X+2*i+1}")
        fin_stats(V_X, V_X + 1, t3, t4)
        E(f"{L}_nors:")
    E("  s_waitcnt lgkmcnt(0)")
    stamp(which)
    E("  s_barrier")
    stamp(which)
    def rd(base, kk):
        r = []
        for mt in range(4):
            r.append(f"  ds_read_b128 {vr(base+mt*4,4)}, v{V_RA+kk} offset:{mt*2048}")
        for t in range(4):
            for h in range(2):
                r.append(f"  ds_read_b64_tr_b16 {vr(base+16+t*4+h*2,2)}, v{V_RB+t} offset:{kk*8192+h*1024}")
        return r
    def mf(base):
        seq = []
        for mt in range(4):
            for t in range(4):
                a, b = vr(base + mt * 4, 4), vr(base + 16 + t * 4, 4)
                if swapped[t]: a, b = b, a
                seq.append(f"  v_mfma_f32_16x16x32_bf16 {vr(acc(mt,t),4)}, {a}, {b}, {vr(acc(mt,t),4)}")
        return seq
    for r in rd(V_X, 0): E(r)
    E("  s_mov_b32 s29, 0")
    E("  s_mov_b32 s30, 0")
    E(f"{L}_loop:")
    E(f"  s_add_u32 s30, s30, {SLOT}")
    E(f"  s_cmp_eq_u32 s30, {NS*SLOT}")
    E(f"  s_cselect_b32 s40, {-(NS-1)*SLOT}, s52")
    E("  s_cselect_b32 s30, 0, s30")
    E("  s_waitcnt lgkmcnt(0)")
    adds = [f"  v_add_u32 v{r}, s40, v{r}" for r in (V_RA, V_RA + 1, V_RB, V_RB + 1, V_RB + 2, V_RB + 3)]
    interleave(mf(V_X), rd(V_Y, 1) + adds)
    E(f"  s_cmp_eq_u32 s29, {NST-1}")
    E(f"  s_cbranch_scc1 {L}_last")
    E("  s_add_u32 s29, s29, 1")
    E("  s_waitcnt lgkmcnt(0)")
    E("  s_barrier")
    interleave(mf(V_Y), rd(V_X, 0))
    E(f"  s_branch {L}_loop")
    E(f"{L}_last:")
    E("  s_waitcnt lgkmcnt(0)")
    for m in mf(V_Y): E(m)
    stamp(which)
    E("  s_barrier")
    E("  s_barrier")
    stamp(which)
    E("  s_mov_b32 s45, 0x3fb8aa3b")
    if k1: k1_epilogue()
    else: k3_epilogue()
    stamp(which)
    stamp_flush(which, 36)
    E(f"  s_branch {L}_done")
    E(f"{L}_loader:")
    E("  s_sub_u32 s27, s26, 4")
    LA, LB = 2, 4
    E(f"  v_lshrrev_b32 v{t0}, 3, v0")
    E(f"  v_and_b32 v{t1}, 7, v0")
    E(f"  v_xor_b32 v{t1}, v{t1}, v{t0}")
    E(f"  v_lshlrev_b32 v{t1}, 4, v{t1}")
    E("  s_lshl_b32 s40, s24, 7")
    E("  s_lshl_b32 s41, s27, 4")
    E("  s_add_u32 s40, s40, s41")
    E(f"  v_add_u32 v{t0}, s40, v{t0}")
    E("  s_movk_i32 s41, 1280")
    E(f"  v_mad_u32_u24 v{LA}, v{t0}, s41, v{t1}")
    E(f"  v_add_u32 v{LA+1}, {8*1280-1024}, v{LA}")
    E(f"  v_lshrrev_b32 v{t0}, 4, v0")
    E(f"  v_and_b32 v{t1}, 15, v0")
    E("  s_lshl_b32 s40, s27, 3")
    E(f"  v_add_u32 v{t4}, s40, v{t0}")
    E("  s_and_b32 s40, s27, 1")
    E("  s_lshl_b32 s40, s40, 2")
    E(f"  v_add_u32 v{t0}, s40, v{t0}")
    E(f"  v_lshrrev_b32 v{t2}, 1, v{t1}")
    E(f"  v_xor_b32 v{t2}, v{t2}, v{t0}")
    E(f"  v_lshlrev_b32 v{t2}, 1, v{t2}")
    E(f"  v_and_b32 v{t3}, 1, v{t1}")
    E(f"  v_or_b32 v{t2}, v{t2}, v{t3}")
    if k1:
        E(f"  v_min_u32 v{t2}, 14, v{t2}")
        E(f"  v_lshlrev_b32 v{t3}, 4, v{t2}")
        E(f"  v_add_u32 v20, 1280, v{t3}")
        E(f"  v_add_u32 v21, {2560-80}, v{t3}")
        E(f"  v_subrev_u32 v22, 160, v{t3}")
        E(f"  v_cmp_gt_u32 vcc, 5, v{t2}")
        E("  s_nop 1")
        E("  v_cndmask_b32 v21, v21, v20, vcc")
        E(f"  v_cmp_gt_u32 vcc, 10, v{t2}")
        E("  s_nop 1")
        E(f"  v_cndmask_b32 v{t3}, v22, v21, vcc")
        E("  s_mul_i32 s42, s25, 80")
    else:
        E(f"  v_lshlrev_b32 v{t3}, 4, v{t2}")
        E("  s_mul_i32 s42, s25, 224")
    if k1:
        E(f"  v_add_u32 v{t3}, s42, v{t3}")
        E(f"  s_movk_i32 s41, {ldb}")
        E(f"  v_mad_u32_u24 v{LB}, v{t4}, s41, v{t3}")
        E(f"  v_add_u32 v{LB+1}, {4*ldb-1024}, v{LB}")
    else:
        E("  s_mul_i32 s42, s25, 163840")
        E("  s_lshl_b32 s41, s27, 11")
        E("  s_add_u32 s42, s42, s41")
        E(f"  v_lshlrev_b32 v{LB}, 4, v0")
        E(f"  v_add_u32 v{LB}, s42, v{LB}")
        E(f"  v_mov_b32 v{LB+1}, v{LB}")
    E("  s_lshl_b32 s34, s27, 11")
    E("  s_mov_b32 s31, 0")
    E("  s_mov_b32 s32, 0")
    E("  s_mov_b32 s33, 0")
    E("  s_waitcnt lgkmcnt(0)")
    if k1: srd(8, 4, 2048 * 1280)
    else: srd(8, 4, 2048 * 1280, H_OFF)
    if k1: srd(12, 6, 640 * ldb)
    else: srd(12, 4, 16 * 163840, W1T_OFF)
    def dma_stage():
        E("  s_add_u32 s35, s31, s34")
        E("  s_mov_b32 m0, s35")
        E("  s_add_u32 s35, s35, 16384")
        for j in range(2):
            E(f"  buffer_load_dwordx4 v{LA+j}, s[8:11], s32 offen offset:{j*1024} lds")
        E("  s_mov_b32 m0, s35")
        E("  s_add_u32 s32, s32, 128")
        for j in range(2):
            E(f"  buffer_load_dwordx4 v{LB+j}, s[12:15], s33 offen offset:{j*1024} lds")
        E(f"  s_add_u32 s33, s33, {64*ldb if k1 else 16384}")
        E(f"  s_add_u32 s31, s31, {SLOT}")
        E(f"  s_cmp_eq_u32 s31, {NS*SLOT}")
        E("  s_cselect_b32 s31, 0, s31")
    for s in range(NS):
        dma_stage()
    SA, SB = 6, 13
    AS = 24
    E(f"  v_lshrrev_b32 v{t0}, 2, v0")
    E(f"  v_and_b32 v{t1}, 3, v0")
    E(f"  v_and_b32 v{t2}, 7, v{t0}")
    E(f"  v_xor_b32 v{t1}, v{t1}, v{t2}")
    E(f"  v_lshlrev_b32 v{t1}, 4, v{t1}")
    E(f"  v_lshl_add_u32 v{t1}, v{t0}, 7, v{t1}")
    E(f"  v_add_u32 v{SA}, s34, v{t1}")
    E(f"  v_xor_b32 v{SA+1}, 64, v{SA}")
    E(f"  v_lshrrev_b32 v{t0}, 4, v0")
    E(f"  v_and_b32 v{t1}, 15, v0")
    E(f"  v_add_u32 v{t2}, s40, v{t0}")
    E(f"  v_lshrrev_b32 v{t3}, 1, v{t1}")
    E(f"  v_xor_b32 v{t3}, v{t3}, v{t2}")
    E(f"  v_lshlrev_b32 v{t3}, 5, v{t3}")
    E(f"  v_and_b32 v{t1}, 1, v{t1}")
    E(f"  v_lshl_add_u32 v{t3}, v{t1}, 4, v{t3}")
    E(f"  v_lshl_add_u32 v{t3}, v{t0}, 8, v{t3}")
    E(f"  v_add_u32 v{t3}, s34, v{t3}")
    E(f"  v_add_u32 v{SB}, 16384, v{t3}")
    for i in range(12):
        E(f"  v_mov_b32 v{AS+i}, 0")
    E("  s_mov_b32 s30, 0")
    E("  s_mov_b32 s44, 0xffff0000")
    D = 40
    def stats_stage():
        if os.environ.get("NOSTATS"): return
        E(f"  v_add_u32 v{t0}, s30, v{SB}")
        E(f"  ds_read_b128 {vr(D+8,4)}, v{t0}")
        E(f"  ds_read_b128 {vr(D+12,4)}, v{t0} offset:1024")
        if k1:
            E(f"  v_add_u32 v{t1}, s30, v{SA}")
            E(f"  v_add_u32 v{t2}, s30, v{SA+1}")
            E(f"  ds_read_b128 {vr(D,4)}, v{t1}")
            E(f"  ds_read_b128 {vr(D+4,4)}, v{t2}")
        E(f"  s_add_u32 s30, s30, {SLOT}")
        E(f"  s_cmp_eq_u32 s30, {NS*SLOT}")
        E("  s_cselect_b32 s30, 0, s30")
        E("  s_waitcnt lgkmcnt(0)")
        U = 60
        for i in range(8):
            E(f"  v_lshlrev_b32 v{U}, 16, v{D+8+i}")
            E(f"  v_and_b32 v{U+1}, s44, v{D+8+i}")
            E(f"  v_pk_add_f32 {vr(AS+4+2*(i%4),2)}, {vr(AS+4+2*(i%4),2)}, {vr(U,2)}")
        if k1:
            for i in range(8):
                E(f"  v_lshlrev_b32 v{U+2}, 16, v{D+i}")
                E(f"  v_and_b32 v{U+3}, s44, v{D+i}")
                E(f"  v_pk_add_f32 {vr(AS,2)}, {vr(AS,2)}, {vr(U+2,2)}")
                E(f"  v_pk_fma_f32 {vr(AS+2,2)}, {vr(U+2,2)}, {vr(U+2,2)}, {vr(AS+2,2)}")
    E(f"  s_waitcnt vmcnt({4*(NS-1)})")
    E("  s_barrier")
    E(f"  v_lshlrev_b32 v{t0}, 2, v0")
    E(f"  v_add_u32 v{t0}, {A_CS}, v{t0}")
    E(f"  ds_write_b32 v{t0}, v{AS}")
    E(f"  ds_write_b32 v{t0}, v{AS} offset:256")
    stats_stage()
    E("  s_mov_b32 s29, 0")
    E(f"{L}_lloop:")
    E(f"  s_cmp_gt_u32 s29, {NST-NS}")
    E(f"  s_cbranch_scc1 {L}_ltail")
    E(f"  s_waitcnt vmcnt({4*(NS-2)})")
    E(f"  s_branch {L}_lw")
    E(f"{L}_ltail:")
    for s_val in range(NST - NS + 1, NST - 1):
        al = NST - 1 - (s_val + 1)
        if s_val < NST - 2:
            E(f"  s_cmp_lg_u32 s29, {s_val}")
            E(f"  s_cbranch_scc1 {L}_lt{s_val}")
            E(f"  s_waitcnt vmcnt({4*al})")
            E(f"  s_branch {L}_lw")
            E(f"{L}_lt{s_val}:")
        else:
            E("  s_waitcnt vmcnt(0)")
    E(f"{L}_lw:")
    E("  s_barrier")
    E(f"  s_cmp_ge_u32 s29, {NST-NS}")
    E(f"  s_cbranch_scc1 {L}_lnd")
    if not os.environ.get("NODMA"): dma_stage()
    E(f"{L}_lnd:")
    stats_stage()
    E("  s_add_u32 s29, s29, 1")
    E(f"  s_cmp_lt_u32 s29, {NST-1}")
    E(f"  s_cbranch_scc1 {L}_lloop")
    for c in range(8):
        r = AS + 4 + c
        E(f"  v_mov_b32 v{U2}, v{r}")
        E("  s_nop 1")
        E(f"  v_permlane32_swap_b32 v{r}, v{U2}")
        E("  s_nop 1")
        E(f"  v_add_f32 v{r}, v{r}, v{U2}")
        E(f"  v_mov_b32 v{U2}, v{r}")
        E("  s_nop 1")
        E(f"  v_permlane16_swap_b32 v{r}, v{U2}")
        E("  s_nop 1")
        E(f"  v_add_f32 v{r}, v{r}, v{U2}")
    E(f"  v_and_b32 v{t1}, 15, v0")
    E(f"  v_lshlrev_b32 v{t1}, 5, v{t1}")
    E("  s_lshl_b32 s40, s27, 9")
    E(f"  s_add_u32 s40, s40, {A_CP}")
    E(f"  v_add_u32 v{t1}, s40, v{t1}")
    E(f"  ds_write_b128 v{t1}, {vr(AS+4,4)}")
    E(f"  ds_write_b128 v{t1}, {vr(AS+8,4)} offset:16")
    if k1:
        E(f"  v_add_f32 v{AS}, v{AS}, v{AS+1}")
        E(f"  v_add_f32 v{AS+2}, v{AS+2}, v{AS+3}")
        for r in (AS, AS + 2):
            E("  s_nop 1")
            E(f"  v_add_f32_dpp v{r}, v{r}, v{r} quad_perm:[1,0,3,2] row_mask:0xf bank_mask:0xf")
            E("  s_nop 1")
            E(f"  v_add_f32_dpp v{r}, v{r}, v{r} quad_perm:[2,3,0,1] row_mask:0xf bank_mask:0xf")
        E(f"  v_lshrrev_b32 v{t3}, 2, v0")
        E("  s_lshl_b32 s40, s27, 4")
        E(f"  v_add_u32 v{t3}, s40, v{t3}")
        fin_stats(AS, AS + 2, t3, t4)
    E("  s_waitcnt lgkmcnt(0)")
    E("  s_barrier")
    E("  s_cmp_ge_u32 s27, 2")
    E(f"  s_cbranch_scc1 {L}_lf2")
    E(f"  v_lshl_or_b32 v{t1}, s27, 6, v0")
    E(f"  v_lshlrev_b32 v{t1}, 2, v{t1}")
    E(f"  v_add_u32 v{t2}, {A_CP}, v{t1}")
    for q in range(8):
        E(f"  ds_read_b32 v{40+q}, v{t2} offset:{512*q}")
    E("  s_waitcnt lgkmcnt(0)")
    for q in range(1, 8):
        E(f"  v_add_f32 v40, v40, v{40+q}")
    E(f"  v_add_u32 v{t2}, {A_CS}, v{t1}")
    E(f"  ds_write_b32 v{t2}, v40")
    E("  s_waitcnt lgkmcnt(0)")
    E(f"{L}_lf2:")
    E("  s_barrier")
    E(f"{L}_done:")
    E("  s_endpgm")

def relayout(tid):
    E("  s_load_dwordx2 s[64:65], s[0:1], 32")
    E("  s_load_dwordx2 s[66:67], s[0:1], 40")
    E("  s_load_dwordx2 s[68:69], s[0:1], 16")
    SA_, DA_, DT = 16, 24, 32
    a, b, c, d = 60, 61, 62, 63
    E("  s_lshr_b32 s40, s2, 4")
    E("  s_and_b32 s41, s2, 15")
    E("  s_mul_i32 s41, s41, 40")
    for r in range(3):
        E(f"  v_add_u32 v{a}, {256*r}, v{tid}")
        E(f"  v_lshrrev_b32 v{b}, 4, v{a}")
        E(f"  v_add_u32 v{b}, s41, v{b}")
        E(f"  v_and_b32 v{c}, 15, v{a}")
        E(f"  v_lshlrev_b32 v{DA_+r}, 8, v{b}")
        E(f"  v_lshl_add_u32 v{DA_+r}, v{c}, 4, v{DA_+r}")
        E(f"  v_bfe_u32 v{d}, v{b}, 3, 1")
        E(f"  v_lshlrev_b32 v{d}, 2, v{d}")
        E(f"  v_and_or_b32 v{d}, v{b}, 3, v{d}")
        E(f"  v_lshrrev_b32 v{SA_+r}, 1, v{c}")
        E(f"  v_xor_b32 v{d}, v{d}, v{SA_+r}")
        E(f"  v_and_b32 v{c}, 1, v{c}")
        E(f"  v_lshl_or_b32 v{d}, v{d}, 1, v{c}")
        E("  s_mul_i32 s42, s40, 224")
        E(f"  v_lshl_add_u32 v{c}, v{d}, 4, s42")
        E("  s_movk_i32 s43, 3456")
        E(f"  v_mad_u32_u24 v{SA_+r}, v{b}, s43, v{c}")
        E(f"  v_cmp_gt_u32 s[{70+2*r}:{71+2*r}], 14, v{d}")
        E(f"  v_cmp_gt_u32 vcc, s43, v{c}")
        E(f"  s_and_b64 s[{70+2*r}:{71+2*r}], s[{70+2*r}:{71+2*r}], vcc")
        E(f"  v_cmp_gt_u32 vcc, 640, v{a}")
        E(f"  s_and_b64 s[{70+2*r}:{71+2*r}], s[{70+2*r}:{71+2*r}], vcc")
    E("  s_lshr_b32 s40, s2, 5")
    E("  s_and_b32 s41, s2, 31")
    E("  s_movk_i32 s43, 6554")
    E("  s_mul_i32 s42, s40, 160")
    for r in range(4):
        wo = r == 3
        E(f"  v_add_u32 v{a}, {0 if wo else 256*r}, v{tid}")
        E(f"  v_mul_u32_u24 v{b}, s43, v{a}")
        E(f"  v_lshrrev_b32 v{b}, 16, v{b}")
        E(f"  v_mul_u32_u24 v{c}, 10, v{b}")
        E(f"  v_sub_u32 v{c}, v{a}, v{c}")
        E(f"  s_mul_i32 s47, s41, {20 if wo else 54}")
        E(f"  v_add_u32 v{b}, s47, v{b}")
        E(f"  v_lshlrev_b32 v{c}, 4, v{c}")
        E(f"  v_mul_u32_u24 v{SA_+3+r}, 1280, v{b}")
        E(f"  v_add_u32 v{SA_+3+r}, v{SA_+3+r}, v{c}")
        E(f"  v_add_u32 v{SA_+3+r}, s42, v{SA_+3+r}")
        if wo:
            E(f"  v_mul_u32_u24 v{DA_+3+r}, 160, v{b}")
        else:
            E(f"  v_and_b32 v{d}, 0x13, v{b}")
            E(f"  v_bfe_u32 v{DA_+3+r}, v{b}, 2, 1")
            E(f"  v_lshl_or_b32 v{d}, v{DA_+3+r}, 3, v{d}")
            E(f"  v_bfe_u32 v{DA_+3+r}, v{b}, 3, 1")
            E(f"  v_lshl_or_b32 v{d}, v{DA_+3+r}, 2, v{d}")
            E(f"  v_mul_u32_u24 v{d}, 160, v{d}")
            E(f"  v_lshrrev_b32 v{DA_+3+r}, 5, v{b}")
            E(f"  v_mul_u32_u24 v{DA_+3+r}, 5120, v{DA_+3+r}")
            E(f"  v_add_u32 v{DA_+3+r}, v{DA_+3+r}, v{d}")
        E(f"  v_add_u32 v{DA_+3+r}, v{DA_+3+r}, v{c}")
        E(f"  v_cmp_gt_u32 vcc, {200 if wo else 540}, v{a}")
        E(f"  s_mov_b64 s[{76+2*r}:{77+2*r}], vcc")
    E("  s_waitcnt lgkmcnt(0)")
    srds = [(84, 64, 640 * 3456), (88, 66, 1728 * 1280), (92, 68, 640 * 1280)]
    for (dd, lo, nb) in srds:
        srd(dd, lo, nb)
    for r in range(7):
        q = 84 if r < 3 else (88 if r < 6 else 92)
        E(f"  s_mov_b64 exec, s[{70+2*r}:{71+2*r}]")
        E(f"  buffer_load_dwordx4 {vr(DT+4*r,4)}, v{SA_+r}, s[{q}:{q+3}], 0 offen")
    E("  s_lshr_b32 s41, s2, 4")
    E("  s_mul_i32 s41, s41, 163840")
    E(f"  s_add_u32 s41, s41, {W1T_OFF}")
    E("  s_mul_i32 s42, s40, 276480")
    E(f"  s_add_u32 s42, s42, {W2T_OFF}")
    E("  s_mul_i32 s43, s40, 102400")
    E(f"  s_add_u32 s43, s43, {WOT_OFF}")
    E("  s_waitcnt vmcnt(0)")
    for r in range(7):
        so = "s41" if r < 3 else ("s42" if r < 6 else "s43")
        E(f"  s_mov_b64 exec, s[{70+2*r}:{71+2*r}]")
        E(f"  buffer_store_dwordx4 {vr(DT+4*r,4)}, v{DA_+r}, s[16:19], {so} offen")
    E("  s_mov_b64 exec, -1")

def fin_stats(vs, vq, vrow, tmp):
    E("  s_mov_b32 s40, 0x3acccccd")
    E(f"  v_mul_f32 v{vs}, s40, v{vs}")
    E(f"  v_mul_f32 v{vq}, s40, v{vq}")
    E(f"  v_fma_f32 v{vq}, -v{vs}, v{vs}, v{vq}")
    E(f"  v_max_f32 v{vq}, 0, v{vq}")
    E(f"  v_add_f32 v{vq}, 0x3727c5ac, v{vq}")
    E(f"  v_rsq_f32 v{vq}, v{vq}")
    E(f"  v_lshlrev_b32 v{tmp}, 2, v{vrow}")
    E(f"  v_add_u32 v{tmp}, {A_MEAN}, v{tmp}")
    E(f"  ds_write_b32 v{tmp}, v{vs}")
    E(f"  ds_write_b32 v{tmp}, v{vq} offset:512")

def k1_epilogue():
    t0, t1, t2, t3, t4 = V_T, V_T + 1, V_T + 2, V_T + 3, V_T + 4
    CSN, CSV3, MN, RN, MS, RS = 16, 20, 24, 40, 56, 60
    pk = [64, 72, 144, 152]
    TM = 160
    E(f"  v_and_b32 v{t0}, 15, v0")
    E(f"  v_lshrrev_b32 v{t1}, 4, v0")
    E("  s_lshl_b32 s40, s27, 8")
    E(f"  s_add_u32 s40, s40, {A_MEAN}")
    E(f"  v_lshl_add_u32 v{t2}, v{t0}, 2, s40")
    E(f"  v_lshl_add_u32 v{t3}, v{t1}, 4, s40")
    for mt in range(4):
        E(f"  ds_read_b128 {vr(MN+4*mt,4)}, v{t3} offset:{64*mt}")
        E(f"  ds_read_b128 {vr(RN+4*mt,4)}, v{t3} offset:{512+64*mt}")
        E(f"  ds_read_b32 v{MS+mt}, v{t2} offset:{64*mt}")
        E(f"  ds_read_b32 v{RS+mt}, v{t2} offset:{512+64*mt}")
    E("  s_mul_i32 s41, s28, 80")
    E(f"  s_add_u32 s41, s41, {A_CS}")
    E(f"  v_lshl_add_u32 v{t2}, v{t0}, 2, s41")
    E(f"  ds_read_b32 v{CSN}, v{t2}")
    E(f"  ds_read_b32 v{CSN+1}, v{t2} offset:160")
    E(f"  v_add_u32 v{t3}, 64, v{t2}")
    E(f"  v_add_u32 v{t4}, {52*4}, v{t2}")
    E(f"  v_cmp_gt_u32 vcc, 4, v{t0}")
    E("  s_nop 1")
    E(f"  v_cndmask_b32 v{t3}, v{t4}, v{t3}, vcc")
    E(f"  v_lshlrev_b32 v{t4}, 2, v{t0}")
    E(f"  v_add_u32 v{t4}, {A_CS+104*4}, v{t4}")
    E(f"  v_cmp_gt_u32 vcc, 8, v{t0}")
    E("  s_nop 1")
    E(f"  v_cndmask_b32 v{t3}, v{t4}, v{t3}, vcc")
    E(f"  ds_read_b32 v{CSN+2}, v{t3}")
    E("  s_lshl_b32 s41, s28, 6")
    E(f"  s_add_u32 s41, s41, {A_CS+320}")
    E(f"  v_lshl_add_u32 v{t3}, v{t1}, 4, s41")
    E(f"  ds_read_b128 {vr(CSV3,4)}, v{t3}")
    E("  s_mov_b32 s46, 0x358637bd")
    E(f"  v_and_b32 v{t2}, 12, v{t0}")
    E(f"  v_cmp_eq_u32 s[48:49], 4, v{t2}")
    E("  s_waitcnt lgkmcnt(0)")
    def phi4(a):
        for r in range(4): E(f"  v_min_f32 v{TM+r}, 0, v{a+r}")
        for r in range(4): E(f"  v_mul_f32 v{TM+r}, s45, v{TM+r}")
        for r in range(4): E(f"  v_exp_f32 v{TM+r}, v{TM+r}")
        for r in range(4): E(f"  v_max_f32 v{a+r}, 0, v{a+r}")
        for r in range(4): E(f"  v_add_f32 v{TM+r}, s46, v{TM+r}")
        for r in range(4): E(f"  v_add_f32 v{a+r}, v{a+r}, v{TM+r}")
    for mt in range(4):
        for t in range(3):
            a = acc(mt, t)
            for r in range(4):
                E(f"  v_fma_f32 v{a+r}, -v{MN+4*mt+r}, v{CSN+t}, v{a+r}")
            for p in range(2):
                E(f"  v_pk_mul_f32 {vr(a+2*p,2)}, {vr(a+2*p,2)}, {vr(RN+4*mt+2*p,2)}")
        a = acc(mt, 3)
        for r in range(4):
            E(f"  v_fma_f32 v{a+r}, -v{MS+mt}, v{CSV3+r}, v{a+r}")
        for r in range(4):
            E(f"  v_mul_f32 v{a+r}, v{RS+mt}, v{a+r}")
        phi4(acc(mt, 0)); phi4(acc(mt, 3))
        a = acc(mt, 2)
        for r in range(4): E(f"  v_mov_b32 v{TM+4+r}, v{a+r}")
        phi4(a)
        for r in range(4): E(f"  v_cndmask_b32 v{a+r}, v{a+r}, v{TM+4+r}, s[48:49]")
        for t in range(4):
            a = acc(mt, t)
            E(f"  v_cvt_pk_bf16_f32 v{pk[t]+2*mt}, v{a}, v{a+1}")
            E(f"  v_cvt_pk_bf16_f32 v{pk[t]+2*mt+1}, v{a+2}, v{a+3}")
    E("  s_lshl_b32 s40, s24, 1")
    E("  s_add_u32 s40, s40, s27")
    E("  s_lshl_b32 s40, s40, 2")
    E("  s_lshr_b32 s41, s25, 2")
    E("  s_add_u32 s40, s40, s41")
    E("  s_mul_i32 s40, s40, 21504")
    E("  s_and_b32 s41, s25, 3")
    E("  s_mul_i32 s41, s41, 80")
    E("  s_add_u32 s41, s41, s40")
    E("  s_movk_i32 s42, 336")
    E(f"  v_mul_u32_u24 v{t2}, s42, v{t0}")
    E(f"  v_lshl_add_u32 v{t2}, v{t1}, 3, v{t2}")
    E("  s_lshl_b32 s43, s28, 5")
    E("  s_add_u32 s43, s43, s41")
    for mt in range(4):
        E(f"  s_add_u32 s47, s43, {mt*16*336+PQT_OFF}")
        E(f"  buffer_store_dwordx2 {vr(pk[3]+2*mt,2)}, v{t2}, s[16:19], s47 offen")
    M = V_ACC
    ON = TM
    for i in range(4):
        E(f"  v_mov_b32 v{ON+i}, 0x3f803f80")
    E("  s_nop 1")
    for p in range(2):
        P0, V1, X2 = pk[0] + 4 * p, pk[1] + 4 * p, pk[2] + 4 * p
        for i, (a, b) in enumerate(((P0, V1), (P0, X2), (X2, V1), (X2, X2), (P0, ON), (X2, ON))):
            c = "0" if p == 0 else vr(M + 4 * i, 4)
            E(f"  v_mfma_f32_16x16x32_bf16 {vr(M+4*i,4)}, {vr(a,4)}, {vr(b,4)}, {c}")
    E("  s_cmp_eq_u32 s28, 1")
    E("  s_cbranch_scc1 L1_noq2")
    E(f"  v_lshlrev_b32 v{t3}, 2, v{t1}")
    E(f"  v_mul_u32_u24 v{t3}, s42, v{t3}")
    E(f"  v_lshl_add_u32 v{t3}, v{t0}, 1, v{t3}")
    E(f"  v_cmp_lt_u32 vcc, 7, v{t0}")
    E("  s_and_saveexec_b64 s[50:51], vcc")
    for mt in range(4):
        E(f"  s_add_u32 s47, s41, {mt*16*336+PQT_OFF+64-16}")
        E(f"  buffer_store_short v{pk[2]+2*mt}, v{t3}, s[16:19], s47 offen")
        E(f"  buffer_store_short_d16_hi v{pk[2]+2*mt}, v{t3}, s[16:19], s47 offen offset:336")
        E(f"  buffer_store_short v{pk[2]+2*mt+1}, v{t3}, s[16:19], s47 offen offset:672")
        E(f"  buffer_store_short_d16_hi v{pk[2]+2*mt+1}, v{t3}, s[16:19], s47 offen offset:1008")
    E("  s_mov_b64 exec, s[50:51]")
    E("L1_noq2:")
    E("  s_lshl_b32 s40, s25, 2")
    E(f"  v_mov_b32 v{t3}, s40")
    E("  s_mul_i32 s40, s28, 1680")
    E(f"  s_add_u32 s40, s40, {A_KV}")
    E(f"  v_mul_u32_u24 v{t2}, 80, v{t0}")
    E(f"  v_lshl_add_u32 v{t2}, v{t1}, 4, v{t2}")
    E(f"  v_add_u32 v{t2}, s40, v{t2}")
    E("  s_lshl_b32 s41, s27, 12")
    E(f"  v_add_u32 v{t2}, s41, v{t2}")
    E("  s_nop 4")
    E(f"  ds_write_b128 v{t2}, {vr(M,4)}")
    E("  s_mov_b64 exec, s[48:49]")
    E(f"  ds_write_b128 v{t2}, {vr(M+4,4)} offset:960")
    E("  s_mov_b64 exec, 0xffff")
    E(f"  ds_write_b128 v{t2}, {vr(M+8,4)} offset:64")
    E("  s_mov_b64 exec, 0xf0")
    E(f"  ds_write_b128 v{t2}, {vr(M+12,4)} offset:{960+64}")
    E("  s_mov_b32 s50, 0x00010001")
    E("  s_mov_b32 s51, 0x00010001")
    E("  s_mov_b64 exec, s[50:51]")
    E(f"  ds_write_b128 v{t2}, {vr(M+16,4)} offset:1600")
    E("  s_mov_b64 exec, 1")
    E(f"  ds_write_b128 v{t2}, {vr(M+20,4)} offset:{1600+64}")
    E("  s_cmp_lg_u32 s26, 0")
    E("  s_cbranch_scc1 L1_nopoll")
    E("L1_poll:")
    E(f"  buffer_load_dword v{t4}, v{t3}, s[20:23], 0 offen sc0 sc1")
    E("  s_waitcnt vmcnt(0)")
    E(f"  v_readfirstlane_b32 s41, v{t4}")
    E("  s_nop 3")
    E("  s_cmp_lt_u32 s41, 4")
    E("  s_cbranch_scc1 L1_poll")
    E("L1_nopoll:")
    E("  s_mov_b64 exec, -1")
    E("  s_waitcnt lgkmcnt(0)")
    E("  s_barrier")
    E(f"  v_lshl_or_b32 v{t3}, s26, 6, v0")
    E(f"  v_lshlrev_b32 v{t3}, 2, v{t3}")
    E(f"  v_add_u32 v{t4}, {A_KV}, v{t3}")
    for j in range(4):
        E(f"  ds_read_b32 v{TM+j}, v{t4} offset:{1024*j}")
        E(f"  ds_read_b32 v{TM+4+j}, v{t4} offset:{4096+1024*j}")
    E("  s_mul_i32 s40, s25, 3360")
    E(f"  s_add_u32 s40, s40, {KV_OFF}")
    E("  s_waitcnt lgkmcnt(0)")
    for j in range(4):
        E(f"  v_add_f32 v{TM+j}, v{TM+j}, v{TM+4+j}")
    for j in range(3):
        E(f"  buffer_atomic_add_f32 v{TM+j}, v{t3}, s[16:19], s40 offen offset:{1024*j}")
    E(f"  v_cmp_gt_u32 vcc, {3360-3072}, v{t3}")
    E("  s_and_saveexec_b64 s[50:51], vcc")
    E("  s_cbranch_execz L1_fin")
    E(f"  buffer_atomic_add_f32 v{TM+3}, v{t3}, s[16:19], s40 offen offset:3072")
    E("L1_fin:")

def k3_epilogue():
    t0, t1, t2, t3, t4 = V_T, V_T + 1, V_T + 2, V_T + 3, V_T + 4
    MS, RS, CSV, PK, TM = 16, 20, 24, 48, 144
    E(f"  v_and_b32 v{t0}, 15, v0")
    E(f"  v_lshrrev_b32 v{t1}, 4, v0")
    E("  s_lshl_b32 s40, s27, 8")
    E(f"  s_add_u32 s40, s40, {A_MEAN}")
    E(f"  v_lshl_add_u32 v{t2}, v{t0}, 2, s40")
    for mt in range(4):
        E(f"  ds_read_b32 v{MS+mt}, v{t2} offset:{64*mt}")
        E(f"  ds_read_b32 v{RS+mt}, v{t2} offset:{512+64*mt}")
    E("  s_lshl_b32 s41, s28, 8")
    E(f"  s_add_u32 s41, s41, {A_CS}")
    E(f"  v_lshl_add_u32 v{t3}, v{t1}, 4, s41")
    for t in range(4):
        E(f"  ds_read_b128 {vr(CSV+4*t,4)}, v{t3} offset:{64*t}")
    E(f"  v_lshrrev_b32 v{t2}, 2, v{t0}")
    E(f"  v_sub_u32 v{t2}, 0, v{t2}")
    E(f"  v_lshrrev_b32 v{t4}, 1, v{t1}")
    E(f"  v_xor_b32 v{t2}, v{t2}, v{t4}")
    E(f"  v_and_b32 v{t2}, 3, v{t2}")
    E(f"  v_lshlrev_b32 v{t2}, 4, v{t2}")
    E(f"  v_lshl_add_u32 v{t2}, v{t0}, 6, v{t2}")
    E(f"  v_and_b32 v{t4}, 1, v{t1}")
    E(f"  v_lshl_add_u32 v{t2}, v{t4}, 3, v{t2}")
    E(f"  v_xor_b32 v{t4}, 32, v{t2}")
    E("  s_lshl_b32 s40, s24, 1")
    E("  s_add_u32 s40, s40, s27")
    E("  s_mul_i32 s40, s40, 221184")
    E(f"  s_add_u32 s40, s40, {H1_OFF}")
    E("  s_mul_i32 s41, s25, 224")
    E("  s_lshl_b32 s43, s28, 7")
    E("  s_add_u32 s43, s43, s41")
    E("  s_waitcnt lgkmcnt(0)")
    for t in range(4):
        E(f"  s_add_u32 s46, s43, {32*t}")
        E("  s_cmp_ge_u32 s46, 3456")
        E(f"  s_cbranch_scc1 L3_skip")
        if t == 3:
            E("  s_cmp_eq_u32 s28, 1")
            E(f"  s_cbranch_scc1 L3_skip")
        for mt in range(4):
            a = acc(mt, t)
            tm = TM + 4 * (mt & 1)
            for r in range(4):
                E(f"  v_fma_f32 v{a+r}, -v{MS+mt}, v{CSV+4*t+r}, v{a+r}")
            for r in range(4):
                E(f"  v_mul_f32 v{a+r}, v{RS+mt}, v{a+r}")
            for r in range(4): E(f"  v_mul_f32 v{tm+r}, s45, v{a+r}")
            for r in range(4): E(f"  v_exp_f32 v{tm+r}, -v{tm+r}")
            for r in range(4): E(f"  v_add_f32 v{tm+r}, 1.0, v{tm+r}")
            for r in range(4): E(f"  v_rcp_f32 v{tm+r}, v{tm+r}")
            for p in range(2): E(f"  v_pk_mul_f32 {vr(a+2*p,2)}, {vr(a+2*p,2)}, {vr(tm+2*p,2)}")
            E(f"  v_cvt_pk_bf16_f32 v{PK+(mt*4+t)*2}, v{a}, v{a+1}")
            E(f"  v_cvt_pk_bf16_f32 v{PK+(mt*4+t)*2+1}, v{a+2}, v{a+3}")
            if mt == 0:
                E("  s_lshr_b32 s47, s46, 6")
                E("  s_lshl_b32 s47, s47, 12")
                E("  s_add_u32 s47, s47, s40")
                E("  s_bitcmp1_b32 s46, 5")
                E("  s_cselect_b64 vcc, -1, 0")
                E("  s_nop 1")
                E(f"  v_cndmask_b32 v{t3}, v{t2}, v{t4}, vcc")
            E(f"  buffer_store_dwordx2 {vr(PK+(mt*4+t)*2,2)}, v{t3}, s[16:19], s47 offen offset:{mt*1024}")
    E("L3_skip:")

def head_6480(which):
    E("  s_cmp_ge_u32 s2, 256")
    E(f"  s_cbranch_scc1 L{which}_done")
    E("  s_load_dwordx4 s[36:39], s[0:1], 56")
    E("  s_load_dwordx2 s[4:5], s[0:1], 48")
    E(f"  s_load_dwordx2 s[6:7], s[0:1], {16 if which == 2 else 40}")
    E("  s_load_dwordx2 s[42:43], s[0:1], 0")
    stamp(which)
    E("  s_and_b32 s40, s2, 7")
    E("  s_lshr_b32 s41, s2, 3")
    E("  s_lshl_b32 s24, s40, 2")
    E("  s_and_b32 s44, s41, 3")
    E("  s_add_u32 s24, s24, s44")
    E("  s_lshr_b32 s25, s41, 2")
    E("  v_lshrrev_b32 v1, 6, v0")
    E("  v_mov_b32 v2, v0")
    E("  v_and_b32 v0, 63, v0")
    E("  v_readfirstlane_b32 s26, v1")
    E("  s_nop 3")

def res_addr():
    E("  v_lshrrev_b32 v3, 2, v2")
    E("  s_lshl_b32 s40, s24, 6")
    E("  v_add_u32 v3, s40, v3")
    E("  s_movk_i32 s41, 1280")
    E("  v_mul_lo_u32 v7, v3, s41")
    E("  v_and_b32 v4, 3, v2")
    E("  v_mad_u32_u24 v7, v4, 40, v7")
    E("  s_mul_i32 s40, s25, 160")
    E("  v_add_u32 v7, s40, v7")

def final_reduce(which, accf, RES, dst_srd, wstride):
    E("  v_and_b32 v3, 15, v0")
    E("  v_lshrrev_b32 v4, 4, v0")
    E(f"  s_mul_i32 s40, s26, {wstride}")
    E("  v_mul_u32_u24 v5, 336, v3")
    E("  v_lshl_add_u32 v5, v4, 4, v5")
    E("  v_add_u32 v5, s40, v5")
    E("  s_nop 7")
    for mt in range(4):
        for nt in range(5):
            E(f"  ds_write_b128 v5, {vr(accf(mt,nt),4)} offset:{mt*16*336+nt*64}")
    E("  s_waitcnt lgkmcnt(0)")
    E("  s_barrier")
    E("  v_lshrrev_b32 v3, 2, v2")
    E("  v_and_b32 v4, 3, v2")
    E("  v_mul_u32_u24 v5, 336, v3")
    E("  v_mul_u32_u24 v6, 80, v4")
    E("  v_add_u32 v5, v5, v6")
    E(f"  v_add_u32 v6, {2*wstride}, v5")
    B = 16
    for w in range(4):
        for j in range(5):
            E(f"  ds_read_b128 {vr(B+w*20+j*4,4)}, {'v5' if w < 2 else 'v6'} offset:{(w&1)*wstride+j*16}")
    E("  s_waitcnt lgkmcnt(0)")
    for i in range(10):
        E(f"  v_pk_add_f32 {vr(B+2*i,2)}, {vr(B+2*i,2)}, {vr(B+20+2*i,2)}")
        E(f"  v_pk_add_f32 {vr(B+40+2*i,2)}, {vr(B+40+2*i,2)}, {vr(B+60+2*i,2)}")
    for i in range(10):
        E(f"  v_pk_add_f32 {vr(B+2*i,2)}, {vr(B+2*i,2)}, {vr(B+40+2*i,2)}")
    E("  s_waitcnt vmcnt(0)")
    T = B + 20
    for i in range(10):
        E(f"  v_lshlrev_b32 v{T}, 16, v{RES+i}")
        E(f"  v_and_b32 v{T+1}, 0xffff0000, v{RES+i}")
        if which == 2:
            E(f"  v_cvt_pk_bf16_f32 v{T+2}, v{B+2*i}, v{B+2*i+1}")
            E(f"  v_lshlrev_b32 v{B+2*i}, 16, v{T+2}")
            E(f"  v_and_b32 v{B+2*i+1}, 0xffff0000, v{T+2}")
        E(f"  v_pk_add_f32 {vr(B+2*i,2)}, {vr(B+2*i,2)}, {vr(T,2)}")
        E(f"  v_cvt_pk_bf16_f32 v{T+4+i}, v{B+2*i}, v{B+2*i+1}")
    for j in range(5):
        E(f"  buffer_store_dwordx2 {vr(T+4+2*j,2)}, v7, {sr(dst_srd,4)}, 0 offen offset:{8*j}")
    if which == 2:
        S = T + 16
        for i in range(4): E(f"  v_mov_b32 v{S+i}, 0")
        for i in range(10):
            E(f"  v_lshlrev_b32 v{T}, 16, v{T+4+i}")
            E(f"  v_and_b32 v{T+1}, 0xffff0000, v{T+4+i}")
            E(f"  v_pk_add_f32 {vr(S,2)}, {vr(S,2)}, {vr(T,2)}")
            E(f"  v_pk_fma_f32 {vr(S+2,2)}, {vr(T,2)}, {vr(T,2)}, {vr(S+2,2)}")
        E(f"  v_add_f32 v{S}, v{S}, v{S+1}")
        E(f"  v_add_f32 v{S+1}, v{S+2}, v{S+3}")
        for r in (S, S + 1):
            E("  s_nop 1")
            E(f"  v_add_f32_dpp v{r}, v{r}, v{r} quad_perm:[1,0,3,2] row_mask:0xf bank_mask:0xf")
            E("  s_nop 1")
            E(f"  v_add_f32_dpp v{r}, v{r}, v{r} quad_perm:[2,3,0,1] row_mask:0xf bank_mask:0xf")
        E("  s_lshl_b32 s40, s24, 12")
        E("  s_lshl_b32 s41, s25, 3")
        E("  s_add_u32 s40, s40, s41")
        E(f"  s_add_u32 s40, s40, {RS_OFF}")
        E("  v_lshlrev_b32 v3, 6, v3")
        E("  v_cmp_eq_u32 vcc, 0, v4")
        E("  s_and_saveexec_b64 s[50:51], vcc")
        E(f"  buffer_store_dwordx2 {vr(S,2)}, v3, s[28:31], s40 offen")

def k4(name):
    kernel_head(name)
    head_6480(4)
    E("  s_cmp_ge_u32 s26, 4")
    E("  s_cbranch_scc1 L4_loader")
    res_addr()
    E("  s_mul_i32 s34, s26, 36864")
    E("  v_and_b32 v3, 15, v0")
    E("  v_lshrrev_b32 v4, 4, v0")
    E("  v_lshrrev_b32 v5, 2, v3")
    E("  v_sub_u32 v6, 0, v5")
    E("  v_xor_b32 v6, v6, v4")
    E("  v_and_b32 v6, 3, v6")
    E("  v_lshlrev_b32 v6, 4, v6")
    E("  v_lshl_add_u32 v6, v3, 6, v6")
    E("  v_add_u32 v8, s34, v6")
    E("  v_lshrrev_b32 v6, 1, v4")
    E("  v_lshl_add_u32 v6, v6, 4, v5")
    E("  v_and_b32 v4, 1, v4")
    E("  v_lshl_add_u32 v6, v4, 2, v6")
    E("  v_mul_u32_u24 v6, 160, v6")
    E("  v_and_b32 v3, 3, v3")
    E("  v_lshl_add_u32 v6, v3, 3, v6")
    E("  v_add_u32 v6, 4096, v6")
    E("  v_add_u32 v9, s34, v6")
    ACC = 16
    def accf(mt, nt): return ACC + (mt * 5 + nt) * 4
    for i in range(80):
        E(f"  v_mov_b32 v{ACC+i}, 0")
    RES = 96
    X, Y = 96 + 12, 96 + 12 + 36
    X, Y = 96, 132
    RES = 168 - 0
    E("  s_waitcnt lgkmcnt(0)")
    srd(16, 38, 2048 * 1280, H_OFF)
    srd(20, 4, 2048 * 1280)
    def reads(step, base):
        sl = step % 4
        r = []
        for mt in range(4):
            r.append(f"  ds_read_b128 {vr(base+4*mt,4)}, v8 offset:{sl*9216+mt*1024}")
        for nt in range(5):
            for h in range(2):
                r.append(f"  ds_read_b64_tr_b16 {vr(base+16+4*nt+2*h,2)}, v9 offset:{sl*9216+h*1280+nt*32}")
        return r
    NSTEP = 14
    E("  s_barrier")
    stamp(4)
    for r in reads(0, X): E(r)
    for i in range(NSTEP):
        cur, nxt = (X, Y) if i % 2 == 0 else (Y, X)
        E("  s_waitcnt lgkmcnt(0)")
        if i + 1 < NSTEP:
            E("  s_barrier")
        mfs = [f"  v_mfma_f32_16x16x32_bf16 {vr(accf(mt,nt),4)}, {vr(cur+16+4*nt,4)}, {vr(cur+4*mt,4)}, {vr(accf(mt,nt),4)}" for mt in range(4) for nt in range(5)]
        interleave(mfs, reads(i + 1, nxt) if i + 1 < NSTEP else [])
        if i == NSTEP - 2:
            pass
    stamp(4)
    RES = 132
    RES = 96 + 24
    for j in range(5):
        E(f"  buffer_load_dwordx2 {vr(RES+2*j,2)}, v7, s[16:19], 0 offen offset:{8*j}")
    final_reduce(4, accf, RES, 20, 36864)
    stamp(4)
    stamp_flush(4, 36)
    E("  s_branch L4_done")
    E("L4_loader:")
    E("  s_sub_u32 s27, s26, 4")
    E("  s_lshr_b32 s28, s27, 1")
    E("  s_and_b32 s27, s27, 1")
    E("  s_mul_i32 s34, s28, 36864")
    E(f"  s_mul_i32 s32, s28, {14*4096}")
    E(f"  s_mul_i32 s33, s28, {14*5120}")
    E("  v_lshlrev_b32 v8, 4, v0")
    E("  s_mul_i32 s40, s24, 221184")
    E(f"  s_add_u32 s40, s40, {H1_OFF}")
    E("  s_mul_i32 s41, s25, 276480")
    E(f"  s_add_u32 s41, s41, {W2T_OFF}")
    E("  s_waitcnt lgkmcnt(0)")
    E("  s_add_u32 s8, s38, s40")
    E("  s_addc_u32 s9, s39, 0")
    E("  s_mov_b32 s10, 221184")
    E("  s_mov_b32 s11, 0x00020000")
    E("  s_add_u32 s12, s38, s41")
    E("  s_addc_u32 s13, s39, 0")
    E("  s_mov_b32 s14, 276480")
    E("  s_mov_b32 s15, 0x00020000")
    for half in range(2):
        if half == 0:
            E("  s_cmp_eq_u32 s27, 1")
            E("  s_cbranch_scc1 L4_ld1")
        else:
            E("L4_ld1:")
        n = 5 if half == 0 else 4
        def dma(step):
            sl = step % 4
            if half == 0:
                E(f"  s_add_u32 s35, s34, {sl*9216}")
                E("  s_mov_b32 m0, s35")
                E("  s_add_u32 s35, s35, 8192")
                for j in range(4):
                    E(f"  buffer_load_dwordx4 v8, s[8:11], s32 offen offset:{j*1024} lds")
                E("  s_mov_b32 m0, s35")
                E("  s_add_u32 s32, s32, 4096")
                E("  s_add_u32 s35, s33, 4096")
                E("  buffer_load_dwordx4 v8, s[12:15], s35 offen lds")
            else:
                E(f"  s_add_u32 s35, s34, {sl*9216+4096}")
                E("  s_mov_b32 m0, s35")
                E("  s_nop 0")
                for j in range(4):
                    E(f"  buffer_load_dwordx4 v8, s[12:15], s33 offen offset:{j*1024} lds")
            E(f"  s_add_u32 s33, s33, 5120")
        for s in range(4): dma(s)
        last = 3
        PF = int(os.environ.get("K4PF", "0"))
        npf = 0
        if PF:
            E("  s_mov_b32 s48, s32")
            E("  s_mov_b32 s49, s33")
            for st in range(4, 4 + PF):
                if half == 0:
                    for j in range(4):
                        E(f"  buffer_load_dwordx4 v[20:23], v{8+j}, s[8:11], s48 offen offset:{j*1024}")
                    E("  buffer_load_dwordx4 v[20:23], v16, s[12:15], s49 offen")
                    E("  s_add_u32 s48, s48, 64")
                else:
                    for j in range(4):
                        E(f"  buffer_load_dwordx4 v[20:23], v{12+j}, s[12:15], s49 offen offset:{j*1024}")
                E(f"  s_add_u32 s49, s49, {32*1280}")
                npf += n
        E(f"  s_waitcnt vmcnt({3*n+npf})")
        E("  s_barrier")
        for i in range(NSTEP - 1):
            E(f"  s_waitcnt vmcnt({min(63,(last-(i+1))*n + (npf if i+1 <= 3 else 0))})")
            E("  s_barrier")
            if i + 4 < NSTEP:
                dma(i + 4); last = i + 4
        E("  s_endpgm")
    E("L4_done:")
    E("  s_endpgm")

def k2(name):
    kernel_head(name)
    head_6480(2)
    E("  s_and_b32 s27, s26, 3")
    E("  s_mul_i32 s34, s27, 40960")
    E("  s_cmp_ge_u32 s26, 4")
    E("  s_cbranch_scc1 L2_loader")
    res_addr()
    RES = 242
    E("  v_lshlrev_b32 v3, 4, v0")
    E("  s_mul_i32 s44, s26, 13440")
    E("  s_add_u32 s35, s34, 21504")
    E("  s_mov_b32 m0, s35")
    E("  s_waitcnt lgkmcnt(0)")
    srd(28, 38, 53760, KV_OFF)
    for j in range(14):
        E("  buffer_load_dwordx4 v3, s[28:31], s44 offen lds")
        E("  s_add_u32 m0, m0, 1024")
        E("  s_add_u32 s44, s44, 1024")
    srd(16, 42, 2048 * 1280)
    srd(20, 38, 2048 * 1280, H_OFF)
    srd(28, 38, WS_BYTES)
    for j in range(5):
        E(f"  buffer_load_dwordx2 {vr(RES+2*j,2)}, v7, s[16:19], 0 offen offset:{8*j}")
    E("  v_and_b32 v3, 15, v0")
    E("  v_lshrrev_b32 v4, 4, v0")
    E("  v_cmp_eq_u32 s[46:47], 0, v4")
    E("  v_lshrrev_b32 v5, 2, v3")
    for q in range(4):
        E(f"  v_cmp_eq_u32 s[{48+2*q}:{49+2*q}], {q}, v5")
        E(f"  v_cmp_eq_u32 s[{56+2*q}:{57+2*q}], {q}, v4")
    E("  v_mul_u32_u24 v8, 80, v3")
    E("  v_add_u32 v8, s35, v8")
    E("  v_lshl_add_u32 v9, v4, 4, v8")
    E("  v_and_b32 v10, 3, v3")
    E("  v_mul_u32_u24 v10, 80, v10")
    E("  v_add_u32 v10, s35, v10")
    E("  v_add_u32 v10, 1280, v10")
    E("  v_lshl_add_u32 v11, v4, 4, v10")
    E("  v_mov_b32 v12, s35")
    E("  v_add_u32 v12, 1600, v12")
    E("  v_lshl_add_u32 v13, v4, 4, v12")
    E("  v_mul_u32_u24 v14, 336, v3")
    E("  v_add_u32 v14, s34, v14")
    E("  v_add_u32 v15, 32, v14")
    E("  v_lshl_add_u32 v14, v4, 3, v14")
    E("  s_waitcnt vmcnt(5)")
    KF = 32
    T = 128
    for hh in range(8):
        o = hh * 1680
        tt0 = T + 24 * (hh % 4)
        E(f"  ds_read_b128 {vr(tt0,4)}, v9 offset:{o}")
        E(f"  ds_read_b128 {vr(tt0+4,4)}, v8 offset:{o+64}")
        E(f"  ds_read_b128 {vr(tt0+8,4)}, v11 offset:{o}")
        E(f"  ds_read_b128 {vr(tt0+12,4)}, v10 offset:{o+64}")
        E(f"  ds_read_b128 {vr(tt0+16,4)}, v13 offset:{o}")
        E(f"  ds_read_b128 {vr(tt0+20,4)}, v12 offset:{o+64}")
        if hh % 2 == 1:
            E("  s_waitcnt lgkmcnt(0)")
            for h2 in (hh - 1, hh):
                f = KF + 12 * h2
                tt0 = T + 24 * (h2 % 4)
                for tt in range(3):
                    for p in range(4):
                        E(f"  v_cvt_pk_bf16_f32 v{f+4*tt+p}, v{tt0+8*tt+2*p}, v{tt0+8*tt+2*p+1}")
                m = f"s[{48+2*(h2%4)}:{49+2*(h2%4)}]"
                for tt in range(3):
                    E(f"  v_cndmask_b32 v{f+4*tt+2}, 0, v{f+4*tt+2}, s[46:47]")
                    E(f"  v_cndmask_b32 v{f+4*tt+3}, 0, v{f+4*tt+3}, s[46:47]")
                for p in range(4):
                    E(f"  v_cndmask_b32 v{f+4+p}, 0, v{f+4+p}, {m}")
    stamp(2)
    E("  s_barrier")
    stamp(2)
    OF = 128
    def of(mt, ks): return OF + mt * 20 + ks * 4
    PQa, PQb, N0, D, N1, RS = 208, 16, 216, 224, 232, 240
    E("  s_mov_b32 s45, 0x358637bd")
    seq = [(mp, hh) for mp in range(2) for hh in range(8)]
    def pqreads(idx):
        mp, hh = seq[idx]
        P = PQa if idx % 2 == 0 else PQb
        for u in range(2):
            mt = 2 * mp + u
            E(f"  ds_read_b64 {vr(P+4*u,2)}, v14 offset:{mt*16*336+40*hh}")
            E(f"  ds_read_b64 {vr(P+4*u+2,2)}, v15 offset:{mt*16*336+40*hh}")
    pqreads(0)
    for idx, (mp, hh) in enumerate(seq):
        P = PQa if idx % 2 == 0 else PQb
        f = KF + 12 * hh
        if idx + 1 < len(seq):
            pqreads(idx + 1)
            E("  s_waitcnt lgkmcnt(4)")
        else:
            E("  s_waitcnt lgkmcnt(0)")
        for u in range(2):
            E(f"  v_mfma_f32_16x16x32_bf16 {vr(D+4*u,4)}, {vr(f+8,4)}, {vr(P+4*u,4)}, 0")
        for u in range(2):
            E(f"  v_mfma_f32_16x16x32_bf16 {vr(N0+4*u,4)}, {vr(f,4)}, {vr(P+4*u,4)}, 0")
        for u in range(2):
            c = "0" if hh % 4 == 0 else vr(N1 + 4 * u, 4)
            E(f"  v_mfma_f32_16x16x32_bf16 {vr(N1+4*u,4)}, {vr(f+4,4)}, {vr(P+4*u,4)}, {c}")
        E("  s_nop 4")
        for u in range(2):
            E(f"  v_add_f32 v{D+4*u}, s45, v{D+4*u}")
            E(f"  v_rcp_f32 v{D+4*u}, v{D+4*u}")
        E("  s_nop 1")
        for u in range(2):
            mt = 2 * mp + u
            for r in range(4):
                E(f"  v_mul_f32 v{N0+4*u+r}, v{N0+4*u+r}, v{D+4*u}")
            dst = of(mt, hh // 2) + 2 * (hh % 2)
            E(f"  v_cvt_pk_bf16_f32 v{dst}, v{N0+4*u}, v{N0+4*u+1}")
            E(f"  v_cvt_pk_bf16_f32 v{dst+1}, v{N0+4*u+2}, v{N0+4*u+3}")
            gm = f"s[{56+2*(hh%4)}:{57+2*(hh%4)}]"
            E(f"  v_cndmask_b32 v{RS+u}, v{RS+u}, v{D+4*u}, {gm}")
        if hh % 4 == 3:
            E("  s_nop 4")
            for u in range(2):
                mt = 2 * mp + u
                for r in range(4):
                    E(f"  v_mul_f32 v{D+4*u+r}, v{N1+4*u+r}, v{RS+u}")
                dst = of(mt, 4) + 2 * (hh // 4)
                E(f"  v_cvt_pk_bf16_f32 v{dst}, v{D+4*u}, v{D+4*u+1}")
                E(f"  v_cvt_pk_bf16_f32 v{dst+1}, v{D+4*u+2}, v{D+4*u+3}")
    stamp(2)
    E("  s_barrier")
    E("  v_lshl_add_u32 v8, v4, 2, v5")
    E("  v_mul_u32_u24 v8, 160, v8")
    E("  v_and_b32 v6, 3, v3")
    E("  v_lshl_add_u32 v8, v6, 3, v8")
    E("  v_add_u32 v8, s34, v8")
    E("  v_mul_u32_u24 v9, 20, v4")
    E("  v_add_u32 v9, v9, v5")
    E("  v_add_u32 v9, 16, v9")
    E("  v_mul_u32_u24 v9, 160, v9")
    E("  v_lshl_add_u32 v9, v6, 3, v9")
    E("  v_add_u32 v9, s34, v9")
    E("  s_barrier")
    stamp(2)
    ACC = 32
    def accf(mt, nt): return ACC + (mt * 5 + nt) * 4
    WFS = [[208,212,216,220,224],[112,116,120,124,228]]
    def wreads(ks):
        W = WFS[ks % 2]
        r = []
        for nt in range(5):
            for h in range(2):
                if ks < 4:
                    r.append(f"  ds_read_b64_tr_b16 {vr(W[nt]+2*h,2)}, v8 offset:{ks*6400+h*3200+nt*32}")
                else:
                    r.append(f"  ds_read_b64_tr_b16 {vr(W[nt]+2*h,2)}, v9 offset:{h*12800+nt*32}")
        return r
    for r in wreads(0): E(r)
    for ks in range(5):
        W = WFS[ks % 2]
        E("  s_waitcnt lgkmcnt(0)")
        mfs = []
        for nt in range(5):
            for mt in range(4):
                c = "0" if ks == 0 else vr(accf(mt, nt), 4)
                mfs.append(f"  v_mfma_f32_16x16x32_bf16 {vr(accf(mt,nt),4)}, {vr(W[nt],4)}, {vr(of(mt,ks),4)}, {c}")
        interleave(mfs, wreads(ks + 1) if ks < 4 else [], per=1)
    stamp(2)
    final_reduce(2, accf, RES, 20, 40960)
    E("  s_mov_b64 exec, -1")
    stamp(2)
    stamp_flush(2, 36)
    E("  s_branch L2_done")
    E("L2_loader:")
    E("  s_lshl_b32 s40, s24, 2")
    E("  s_add_u32 s40, s40, s27")
    E("  s_mul_i32 s44, s40, 21504")
    E("  s_mov_b32 m0, s34")
    E("  v_lshlrev_b32 v3, 4, v0")
    E("  s_waitcnt lgkmcnt(0)")
    srd(8, 38, 128 * 21504, PQT_OFF)
    srd(12, 38, 8 * 102400, WOT_OFF)
    for j in range(21):
        E("  buffer_load_dwordx4 v3, s[8:11], s44 offen lds")
        E("  s_add_u32 m0, m0, 1024")
        E("  s_add_u32 s44, s44, 1024")
    E("  s_mul_i32 s44, s27, 25600")
    E("  s_mul_i32 s45, s25, 102400")
    E("  s_add_u32 s44, s44, s45")
    for j in range(25):
        E(f"  buffer_load_dwordx4 {vr(16+4*j,4)}, v3, s[12:15], s44 offen")
        E("  s_add_u32 s44, s44, 1024")
    E("  v_lshlrev_b32 v8, 4, v0")
    E("  v_add_u32 v8, s34, v8")
    E("  s_waitcnt vmcnt(25)")
    E("  s_barrier")
    E("  s_waitcnt vmcnt(0)")
    E("  s_barrier")
    for j in range(25):
        E(f"  ds_write_b128 v8, {vr(16+4*j,4)} offset:{1024*j}")
    E("  s_waitcnt lgkmcnt(0)")
    E("  s_barrier")
    E("L2_done:")
    E("  s_endpgm")

def main():
    N = ["k1_qkv_kernel", "k2_attn_kernel", "k3_ffn1_kernel", "k4_ffn2_kernel"]
    hdr = open('cdna_kernels/' + NAME + '.s.ref').read().split("; Override")[0]
    E(hdr.rstrip())
    lds = [163840, 163840, 163840, 4 * 36864]
    blk = [768, 512, 768, 768]
    for i, n in enumerate(N):
        E(f"; @launch kernel={n} grid=(256,1,1) block=({blk[i]},1,1) lds={lds[i]}")
    E('.amdgcn_target "amdgcn-amd-amdhsa--gfx950"')
    E(".text")
    ln_gemm(N[0], 1)
    k2(N[1])
    ln_gemm(N[2], 3)
    k4(N[3])
    E('.section .rodata,"a"')
    E(kernel_desc(N[0]))
    E(kernel_desc(N[1], vgpr=256))
    E(kernel_desc(N[2]))
    E(kernel_desc(N[3]))
    open(sys.argv[1], 'w').write("\n".join(out) + "\n")
main()
```

```python
import sys, os
NAME = "sequential_preLN__linear_attn_block__dense_activation_silu__prompt"
PQ_OFF = 0
KV_OFF = 0x280000
H_OFF = 0x290000
H1_OFF = 0x510000
RS_OFF = H1_OFF + 2048 * 1728 * 2
W1T_OFF = RS_OFF + 2048 * 64
W2T_OFF = W1T_OFF + 16 * 163840
WOT_OFF = W2T_OFF + 8 * 276480
PQT_OFF = WOT_OFF + 8 * 102400
CSP_OFF = PQT_OFF + 128 * 21504
WS_BYTES = CSP_OFF + 16 * 16 * 512
out = []
PADN = int(os.environ.get("PADN", "0"))
pad = {"on": False, "cnt": 0, "masked": False, "n": 0}
def E(s=""):
    out.append(s)
    t = s.strip()
    if not pad["on"] or not t or t.endswith(":") or t.startswith("."): return
    if t.startswith("s_mov_b64 exec") or "saveexec" in t:
        pad["masked"] = not t.endswith("exec, -1")
    pad["cnt"] += 1
    if PADN and pad["cnt"] >= PADN and not pad["masked"] and t.startswith(("v_", "ds_")) and not t.startswith(("v_cmp", "v_readfirst")):
        out.append(f"@PAD {pad['n']}")
        pad["n"] += 1
        pad["cnt"] = 0
def pads_on(): pad["on"] = True; pad["cnt"] = 0; pad["masked"] = False
def pads_off(): pad["on"] = False
def pf_enter(L, nw, wave_sreg, wbase=0):
    out.append(f"@PFENTER {L} {nw} {wave_sreg} {wbase}")
    E(f"{L}_PFRET:")
    E("  s_mov_b64 exec, -1")
def resolve_pads(L, start):
    n = pad["n"]
    ent = [i for i in range(start, len(out)) if out[i].startswith("@PFENTER")]
    nw = int(out[ent[0]].split()[2]) if ent else 1
    starts = [k * n // nw for k in range(nw)]
    sset = set(starts[1:])
    for i in range(start, len(out)):
        if out[i].startswith("@PAD"):
            k = int(out[i].split()[1])
            nxt = f"{L}_PFRET" if (k + 1 == n or (k + 1) in sset) else f"{L}_P{k+1}"
            out[i] = f"{L}_P{k}:\n  s_cbranch_execz {nxt}"
        elif out[i].startswith("@PFENTER"):
            _, L_, nw_, sreg, wb = out[i].split()
            txt = []
            if n:
                txt.append("  s_mov_b64 exec, 0")
                for k in range(nw):
                    txt.append(f"  s_cmp_eq_u32 {sreg}, {int(wb)+k}")
                    txt.append(f"  s_cbranch_scc1 {L}_P{starts[k]}")
            out[i] = "\n".join(txt)
    pad["n"] = 0; pad["on"] = False
def vr(b, n=1):
    return f"v{b}" if n == 1 else f"v[{b}:{b+n-1}]"
def sr(b, n=1):
    return f"s{b}" if n == 1 else f"s[{b}:{b+n-1}]"
def srd(dst, lo, nbytes, add=0):
    if add:
        E(f"  s_add_u32 s{dst}, s{lo}, {add}")
        E(f"  s_addc_u32 s{dst+1}, s{lo+1}, 0")
    else:
        E(f"  s_mov_b32 s{dst}, s{lo}")
        E(f"  s_mov_b32 s{dst+1}, s{lo+1}")
    E(f"  s_mov_b32 s{dst+2}, {nbytes}")
    E(f"  s_mov_b32 s{dst+3}, 0x00020000")
STAMP = os.environ.get("STAMP", "")
stamp_n = [0]
SB0 = 64 if STAMP == "2" else 60
def stamp(which):
    if STAMP != str(which): return
    i = stamp_n[0]; stamp_n[0] += 1
    E(f"  s_memtime s[{SB0+2*i}:{SB0+1+2*i}]")
def stamp_flush(which, dbg_lo, wave=0):
    if STAMP != str(which): return
    n = stamp_n[0]
    E("  s_waitcnt lgkmcnt(0) vmcnt(0)")
    E("  s_mov_b64 exec, -1")
    E(f"  s_cmp_lg_u32 s2, {os.environ.get('STAMPWG','0')}")
    E(f"  s_cbranch_scc1 LS{which}_skip")
    E("  s_cmp_lg_u32 s26, 0")
    E(f"  s_cbranch_scc1 LS{which}_skip")
    E(f"  s_mov_b32 s92, s{dbg_lo}")
    E(f"  s_mov_b32 s93, s{dbg_lo+1}")
    E("  s_mov_b32 s94, 256")
    E("  s_mov_b32 s95, 0x00020000")
    E("  s_mov_b64 exec, 1")
    E("  v_mov_b32 v1, 0")
    for i in range(n):
        E(f"  s_sub_u32 s58, s{SB0+2*i}, s{SB0}")
        E("  v_mov_b32 v2, s58")
        E(f"  buffer_store_dword v2, v1, s[92:95], 0 offen offset:{128+4*i}")
    E(f"LS{which}_skip:")
    stamp_n[0] = 0
RT = os.environ.get("RT")
def kernel_head(name):
    E(f".globl {name}")
    E(".p2align 8")
    E(f".type {name},@function")
    E(f"{name}:")
    if RT: E("  s_memrealtime s[98:99]")
def rt_end(which):
    if not RT: return
    E("  s_mov_b64 exec, -1")
    E("  s_waitcnt vmcnt(0) lgkmcnt(0)")
    E("  s_memrealtime s[100:101]")
    E("  s_cmp_lg_u32 s26, 0")
    E(f"  s_cbranch_scc1 LRT{which}")
    E(f"  s_add_u32 s92, s38, {(48<<20) + which*4096}")
    E("  s_addc_u32 s93, s39, 0")
    E("  s_mov_b32 s94, 4096")
    E("  s_mov_b32 s95, 0x00020000")
    E("  s_waitcnt lgkmcnt(0)")
    E("  s_mov_b64 exec, 1")
    E("  v_mov_b32 v2, s98")
    E("  v_mov_b32 v3, s100")
    E("  s_lshl_b32 s58, s2, 3")
    E("  v_mov_b32 v1, s58")
    E("  buffer_store_dwordx2 v[2:3], v1, s[92:95], 0 offen")
    E(f"LRT{which}:")
def kernel_desc(name, vgpr=168, sgpr=(102 if os.environ.get("RT") else 96), accoff=None):
    return f""".p2align 6
.amdhsa_kernel {name}
  .amdhsa_next_free_vgpr {vgpr}
  .amdhsa_next_free_sgpr {sgpr}
  .amdhsa_accum_offset {accoff or (vgpr+3)//4*4}
  .amdhsa_group_segment_fixed_size 0
  .amdhsa_kernarg_size 72
  .amdhsa_user_sgpr_count 2
  .amdhsa_user_sgpr_kernarg_segment_ptr 1
  .amdhsa_system_sgpr_workgroup_id_x 1
.end_amdhsa_kernel"""

def interleave(mf, other, per=int(os.environ.get("PER","1"))):
    other = list(other)
    for m in mf:
        E(m)
        for _ in range(per):
            if other: E(other.pop(0))
    for o in other: E(o)

NS = 4
SLOT = 32768
NST = 10
AUX = NS * SLOT
A_SUM, A_SQ, A_CS = AUX, AUX + 512, AUX + 1024
A_MEAN, A_RSTD = AUX + 2048, AUX + 2560
A_KV = AUX + 4096
A_CP = AUX + 12288
U2 = 62

V_RA, V_RB = 2, 4
V_T = 8
V_X, V_Y, V_ACC, V_E = 16, 48, 80, 144
def acc(mt, t): return V_ACC + (mt * 4 + t) * 4

def ln_gemm(name, which):
    k1 = which == 1
    L = f"L{which}"
    ldb = 3840 if k1 else 3456
    swapped = [False, False, False, True] if k1 else [True] * 4
    t0, t1, t2, t3, t4 = V_T, V_T + 1, V_T + 2, V_T + 3, V_T + 4
    kernel_head(name)
    E("  s_cmp_ge_u32 s2, 256")
    E(f"  s_cbranch_scc1 {L}_done")
    E("  s_load_dwordx2 s[4:5], s[0:1], 0" if k1 else "  s_load_dwordx2 s[4:5], s[0:1], 64")
    E(f"  s_load_dwordx2 s[6:7], s[0:1], {8 if k1 else 32}")
    E("  s_load_dwordx4 s[36:39], s[0:1], 56")
    stamp(which)
    E("  s_and_b32 s40, s2, 7")
    E("  s_lshr_b32 s41, s2, 3")
    E("  s_lshr_b32 s24, s40, 1")
    E("  s_lshl_b32 s24, s24, 2")
    E("  s_and_b32 s42, s41, 3")
    E("  s_add_u32 s24, s24, s42")
    E("  s_and_b32 s25, s40, 1")
    E("  s_lshl_b32 s25, s25, 3")
    E("  s_lshr_b32 s42, s41, 2")
    E("  s_add_u32 s25, s25, s42")
    E("  v_lshrrev_b32 v1, 6, v0")
    E("  v_and_b32 v0, 63, v0")
    E("  v_readfirstlane_b32 s26, v1")
    E("  s_waitcnt lgkmcnt(0)")
    if k1: srd(8, 4, 2048 * 1280)
    else: srd(8, 4, 2048 * 1280, H_OFF)
    if k1: srd(12, 6, 640 * ldb)
    else: srd(12, 4, 16 * 163840, W1T_OFF)
    srd(16, 38, WS_BYTES)
    srd(20, 36, 256)
    E("  s_cmp_ge_u32 s26, 4")
    E(f"  s_cbranch_scc1 {L}_loader")
    E("  s_lshr_b32 s27, s26, 1")
    E("  s_and_b32 s28, s26, 1")
    E(f"  v_and_b32 v{t0}, 15, v0")
    E(f"  v_lshrrev_b32 v{t1}, 4, v0")
    E(f"  v_and_b32 v{t2}, 7, v{t0}")
    E(f"  v_xor_b32 v{t2}, v{t2}, v{t1}")
    E(f"  v_lshlrev_b32 v{t2}, 4, v{t2}")
    E(f"  v_lshl_add_u32 v{t2}, v{t0}, 7, v{t2}")
    E("  s_lshl_b32 s40, s27, 13")
    E(f"  v_add_u32 v{V_RA}, s40, v{t2}")
    E(f"  v_xor_b32 v{V_RA+1}, 64, v{V_RA}")
    E(f"  v_lshrrev_b32 v{t2}, 2, v{t0}")
    E(f"  v_and_b32 v{t3}, 1, v{t1}")
    E(f"  v_lshl_add_u32 v{t3}, v{t3}, 2, v{t2}")
    E(f"  v_lshl_add_u32 v{t2}, v{t1}, 3, v{t2}")
    E(f"  v_lshlrev_b32 v{t2}, 8, v{t2}")
    E(f"  v_add_u32 v{t2}, 16384, v{t2}")
    E(f"  v_and_b32 v{t4}, 3, v{t0}")
    for t in range(4):
        u = V_E
        if k1:
            E("  s_mul_i32 s40, s28, 5")
            if t == 0:
                E(f"  v_add_u32 v{u}, s40, v{t4}")
            elif t == 1:
                E("  s_add_u32 s40, s40, 10")
                E(f"  v_add_u32 v{u}, s40, v{t4}")
            elif t == 3:
                E("  s_lshl_b32 s40, s28, 2")
                E("  s_add_u32 s40, s40, 20")
                E(f"  v_add_u32 v{u}, s40, v{t4}")
            else:
                E(f"  v_mul_u32_u24 v{u}, 10, v{t4}")
                E("  s_add_u32 s40, s40, 4")
                E(f"  v_add_u32 v{u}, s40, v{u}")
                E(f"  v_add_u32 v{u+1}, 26, v{t4}")
                E(f"  v_cmp_gt_u32 vcc, 2, v{t4}")
                E("  s_nop 1")
                E(f"  v_cndmask_b32 v{u}, v{u+1}, v{u}, vcc")
        else:
            E("  s_lshl_b32 s40, s28, 4")
            E(f"  s_add_u32 s40, s40, {4*t}")
            E(f"  v_add_u32 v{u}, s40, v{t4}")
        E(f"  v_lshrrev_b32 v{u+1}, 2, v{u}")
        E(f"  v_xor_b32 v{u+1}, v{u+1}, v{t3}")
        E(f"  v_lshl_add_u32 v{u+1}, v{u+1}, 5, v{t2}")
        E(f"  v_and_b32 v{u}, 3, v{u}")
        E(f"  v_lshl_add_u32 v{V_RB+t}, v{u}, 3, v{u+1}")
    for i in range(64):
        E(f"  v_mov_b32 v{V_ACC+i}, 0")
    E(f"  s_mov_b32 s52, {SLOT}")
    E(f"  v_lshl_or_b32 v{t3}, s26, 6, v0")
    if k1 and not os.environ.get("NOPF"):
        a, b, c = V_X, V_X + 1, V_X + 2
        E("  s_movk_i32 s41, 10923")
        E(f"  v_mul_u32_u24 v{a}, s41, v{t3}")
        E(f"  v_lshrrev_b32 v{a}, 16, v{a}")
        E(f"  v_mul_u32_u24 v{b}, 6, v{a}")
        E(f"  v_sub_u32 v{b}, v{t3}, v{b}")
        E("  s_and_b32 s40, s25, 7")
        E("  s_lshl_b32 s40, s40, 4")
        E("  s_lshl_b32 s42, s24, 7")
        E("  s_add_u32 s40, s40, s42")
        E(f"  v_add_u32 v{a}, s40, v{a}")
        E(f"  v_mul_u32_u24 v{a}, 1280, v{a}")
        E(f"  v_lshl_add_u32 v{a}, v{b}, 7, v{a}")
        E(f"  v_add_u32 v{a}, 512, v{a}")
        E(f"  v_cmp_gt_u32 vcc, 96, v{t3}")
        E(f"  v_cndmask_b32 v164, -1, v{a}, vcc")
        E("  s_and_b32 s40, s24, 3")
        E("  s_mul_i32 s40, s40, 96")
        E("  s_add_u32 s40, s40, 256")
        E("  s_mul_i32 s42, s25, 80")
        for r in range(3):
            E(f"  v_add_u32 v{c}, {256*r}, v{t3}")
            E(f"  v_mul_u32_u24 v{a}, s41, v{c}")
            E(f"  v_lshrrev_b32 v{a}, 16, v{a}")
            E(f"  v_mul_u32_u24 v{b}, 6, v{a}")
            E(f"  v_sub_u32 v{b}, v{c}, v{b}")
            E(f"  v_add_u32 v{a}, s40, v{a}")
            E(f"  v_mul_u32_u24 v{a}, 3840, v{a}")
            E(f"  v_add_u32 v{a}, s42, v{a}")
            E(f"  v_lshrrev_b32 v{V_X+3}, 1, v{b}")
            E(f"  v_add_u32 v{V_X+3}, 1, v{V_X+3}")
            E(f"  v_cmp_eq_u32 vcc, 3, v{V_X+3}")
            E(f"  v_cndmask_b32 v{V_X+3}, v{V_X+3}, 0, vcc")
            E(f"  v_mul_u32_u24 v{V_X+3}, 1280, v{V_X+3}")
            E(f"  v_add_u32 v{a}, v{a}, v{V_X+3}")
            E(f"  v_and_b32 v{b}, 1, v{b}")
            E(f"  v_mul_u32_u24 v{b}, 76, v{b}")
            E(f"  v_add_u32 v{a}, v{a}, v{b}")
            E(f"  v_cmp_gt_u32 vcc, 576, v{c}")
            E(f"  v_cndmask_b32 v{165+r}, -1, v{a}, vcc")
    if k1:
        for i in range(4):
            E(f"  v_mov_b32 v{V_E+i}, 0")
        E(f"  v_lshlrev_b32 v{t4}, 4, v{t3}")
        E(f"  v_add_u32 v{t2}, {A_KV}, v{t4}")
        E(f"  ds_write_b128 v{t2}, {vr(V_E,4)}")
        E("  s_cmp_ge_u32 s2, 16")
        E(f"  s_cbranch_scc1 {L}_nozero")
        E("  s_mul_i32 s40, s2, 3360")
        E(f"  s_add_u32 s40, s40, {KV_OFF}")
        E(f"  v_cmp_gt_u32 vcc, 210, v{t3}")
        E("  s_and_saveexec_b64 s[46:47], vcc")
        E(f"  buffer_store_dwordx4 {vr(V_E,4)}, v{t4}, s[16:19], s40 offen sc0 sc1")
        E("  s_mov_b64 exec, s[46:47]")
        E("  s_waitcnt vmcnt(0)")
        E("  s_lshl_b32 s40, s2, 2")
        E(f"  v_mov_b32 v{t2}, s40")
        E(f"  v_mov_b32 v{t4}, 1")
        E("  s_mov_b64 exec, 1")
        E(f"  buffer_atomic_add v{t4}, v{t2}, s[20:23], 0 offen sc1")
        E("  s_mov_b64 exec, -1")
        E(f"{L}_nozero:")
    else:
        E("  s_cmp_ge_u32 s26, 2")
        E(f"  s_cbranch_scc1 {L}_nors")
        E("  s_lshl_b32 s40, s24, 13")
        E(f"  s_add_u32 s40, s40, {RS_OFF}")
        E(f"  v_lshlrev_b32 v{t4}, 6, v{t3}")
        for i in range(4):
            E(f"  buffer_load_dwordx4 {vr(V_X+4*i,4)}, v{t4}, s[16:19], s40 offen offset:{16*i}")
        E("  s_waitcnt vmcnt(0)")
        for i in range(1, 8):
            E(f"  v_add_f32 v{V_X}, v{V_X}, v{V_X+2*i}")
            E(f"  v_add_f32 v{V_X+1}, v{V_X+1}, v{V_X+2*i+1}")
        fin_stats(V_X, V_X + 1, t3, t4)
        E(f"  s_branch {L}_nors2")
        E(f"{L}_nors:")
        E("  s_lshl_b32 s40, s25, 13")
        E(f"  s_add_u32 s40, s40, {CSP_OFF-512}")
        E(f"  v_lshlrev_b32 v{t4}, 2, v{t3}")
        for i in range(16):
            E(f"  buffer_load_dword v{V_X+i}, v{t4}, s[16:19], s40 offen offset:{512*i if 512*i < 4096 else 0}" if i < 8 else f"  buffer_load_dword v{V_X+i}, v{t4}, s[16:19], s41 offen offset:{512*(i-8)}")
            if i == 0: E("  s_add_u32 s41, s40, 4096")
        E("  s_waitcnt vmcnt(0)")
        for i in range(1, 16):
            E(f"  v_add_f32 v{V_X}, v{V_X}, v{V_X+i}")
        E(f"  v_add_u32 v{t4}, {A_CS-512}, v{t4}")
        E(f"  ds_write_b32 v{t4}, v{V_X}")
        E(f"{L}_nors2:")
    E("  s_waitcnt lgkmcnt(0)")
    stamp(which)
    PFE = os.environ.get("PFE", "late")
    def pf_issue():
        E("  buffer_load_dword v164, v164, s[8:11], 0 offen")
        for r in range(3):
            E(f"  buffer_load_dword v{165+r}, v{165+r}, s[12:15], 0 offen")
    if k1 and PFE == "early": pf_issue()
    E("  s_barrier")
    if k1 and PFE == "late": pf_issue()
    stamp(which)
    def rd(base, kk):
        r = []
        for mt in range(4):
            r.append(f"  ds_read_b128 {vr(base+mt*4,4)}, v{V_RA+kk} offset:{mt*2048}")
        for t in range(4):
            for h in range(2):
                r.append(f"  ds_read_b64_tr_b16 {vr(base+16+t*4+h*2,2)}, v{V_RB+t} offset:{kk*8192+h*1024}")
        return r
    def mf(base):
        seq = []
        for mt in range(4):
            for t in range(4):
                a, b = vr(base + mt * 4, 4), vr(base + 16 + t * 4, 4)
                if swapped[t]: a, b = b, a
                seq.append(f"  v_mfma_f32_16x16x32_bf16 {vr(acc(mt,t),4)}, {a}, {b}, {vr(acc(mt,t),4)}")
        return seq
    for r in rd(V_X, 0): E(r)
    E("  s_mov_b32 s29, 0")
    E("  s_mov_b32 s30, 0")
    ST = V_E
    if k1:
        for i in range(16): E(f"  v_mov_b32 v{ST+i}, 0")
        for i in range(4): E(f"  v_mov_b32 v{ST+16+i}, 0x3f803f80")
        E(f"  v_and_b32 v{t0}, 15, v0")
        E(f"  v_cmp_lt_u32 s[48:49], 7, v{t0}")
        E("  s_cmp_eq_u32 s26, 1")
        E(f"  s_cbranch_scc1 {L}_loop1")
        E("  s_cmp_eq_u32 s26, 2")
        E(f"  s_cbranch_scc1 {L}_loop2")
        E("  s_cmp_eq_u32 s26, 3")
        E(f"  s_cbranch_scc1 {L}_loop3")
    def mfs(base, WM, WN):
        seq = mf(base)
        if not k1: return seq
        pre = []
        if WN == 1:
            pre = [f"  v_cndmask_b32 v{base+16+8+r}, v{base+16+8+r}, v{ST+16}, s[48:49]" for r in range(4)]
        ex = []
        for q in range(2):
            mt = 2 * WN + q
            ex.append(f"  v_mfma_f32_16x16x32_bf16 {vr(ST+4*q,4)}, {vr(base+4*mt,4)}, {vr(base+4*mt,4)}, {vr(ST+4*q,4)}")
            t = 2 * WM + q
            ex.append(None if False else (t, q))
        out_ = pre + seq[:8]
        for q in range(2):
            mt = 2 * WN + q
            out_.append(f"  v_mfma_f32_16x16x32_bf16 {vr(ST+4*q,4)}, {vr(base+4*mt,4)}, {vr(base+4*mt,4)}, {vr(ST+4*q,4)}")
        out_ += seq[8:]
        for q in range(2):
            t = 2 * WM + q
            out_.append(f"  v_mfma_f32_16x16x32_bf16 {vr(ST+8+4*q,4)}, {vr(ST+16,4)}, {vr(base+16+4*t,4)}, {vr(ST+8+4*q,4)}")
        return out_
    for w in range(4 if k1 else 1):
        WM, WN = w >> 1, w & 1
        E(f"{L}_loop{w}:")
        E(f"  s_add_u32 s30, s30, {SLOT}")
        E(f"  s_cmp_eq_u32 s30, {NS*SLOT}")
        E(f"  s_cselect_b32 s40, {-(NS-1)*SLOT}, s52")
        E("  s_cselect_b32 s30, 0, s30")
        E("  s_waitcnt lgkmcnt(0)")
        adds = [f"  v_add_u32 v{r}, s40, v{r}" for r in (V_RA, V_RA + 1, V_RB, V_RB + 1, V_RB + 2, V_RB + 3)]
        interleave(mfs(V_X, WM, WN), rd(V_Y, 1) + adds)
        E(f"  s_cmp_eq_u32 s29, {NST-1}")
        E(f"  s_cbranch_scc1 {L}_last{w}")
        E("  s_add_u32 s29, s29, 1")
        E("  s_waitcnt lgkmcnt(0)")
        E("  s_barrier")
        interleave(mfs(V_Y, WM, WN), rd(V_X, 0))
        E(f"  s_branch {L}_loop{w}")
        E(f"{L}_last{w}:")
        E("  s_waitcnt lgkmcnt(0)")
        for m in mfs(V_Y, WM, WN): E(m)
        if k1:
            E(f"  v_lshrrev_b32 v{t1}, 4, v0")
            E(f"  v_lshrrev_b32 v{t2}, 2, v{t0}")
            E(f"  v_cmp_eq_u32 s[50:51], v{t1}, v{t2}")
            E(f"  v_and_b32 v{t2}, 3, v{t0}")
            E("  s_nop 7")
            for q in range(2):
                E(f"  v_mov_b32 v{t3}, v{ST+4*q}")
                for r in range(1, 4):
                    E(f"  v_cmp_eq_u32 vcc, {r}, v{t2}")
                    E("  s_nop 1")
                    E(f"  v_cndmask_b32 v{t3}, v{t3}, v{ST+4*q+r}, vcc")
                E(f"  v_lshlrev_b32 v{t4}, 2, v{t0}")
                E(f"  v_add_u32 v{t4}, {A_SQ + (64*WM + 16*(2*WN+q))*4}, v{t4}")
                E("  s_mov_b64 exec, s[50:51]")
                E(f"  ds_write_b32 v{t4}, v{t3}")
                E("  s_mov_b64 exec, -1")
            for q in range(2):
                t = 2 * WM + q
                if t == 0: E(f"  v_lshlrev_b32 v{t4}, 2, v{t0}"); off = (20*WN)*4
                elif t == 1: E(f"  v_lshlrev_b32 v{t4}, 2, v{t0}"); off = (40+20*WN)*4
                elif t == 3: E(f"  v_lshlrev_b32 v{t4}, 2, v{t0}"); off = (80+16*WN)*4
                else:
                    E(f"  v_lshlrev_b32 v{t4}, 2, v{t0}")
                    E(f"  v_add_u32 v{t3}, {(20*WN+16)*4}, v{t4}")
                    E(f"  v_add_u32 v{t1}, {(52+20*WN)*4}, v{t4}")
                    E(f"  v_cmp_gt_u32 vcc, 4, v{t0}")
                    E("  s_nop 1")
                    E(f"  v_cndmask_b32 v{t3}, v{t1}, v{t3}, vcc")
                    E(f"  v_add_u32 v{t1}, {104*4}, v{t4}")
                    E(f"  v_cmp_gt_u32 vcc, 8, v{t0}")
                    E("  s_nop 1")
                    E(f"  v_cndmask_b32 v{t4}, v{t1}, v{t3}, vcc")
                    off = 0
                E(f"  v_add_u32 v{t4}, {A_CS+off}, v{t4}")
                if t == 2 and WN == 1:
                    E("  s_mov_b64 exec, 0xff")
                else:
                    E("  s_mov_b64 exec, 0xffff")
                E(f"  ds_write_b32 v{t4}, v{ST+8+4*q}")
                E("  s_mov_b64 exec, -1")
            if WN == 1:
                E(f"  v_lshrrev_b32 v{t1}, 4, v0")
                E(f"  v_lshlrev_b32 v{t4}, 4, v{t1}")
                E(f"  v_add_u32 v{t4}, {A_SUM + 64*WM*4}, v{t4}")
                E("  s_mov_b32 s50, 0x01000100")
                E("  s_mov_b32 s51, 0x01000100")
                E("  s_mov_b64 exec, s[50:51]")
                for mt in range(4):
                    E(f"  ds_write_b128 v{t4}, {vr(acc(mt,2),4)} offset:{64*mt}")
                E("  s_mov_b64 exec, -1")
            E(f"  s_branch {L}_fins")
    if not k1: stamp(which)
    if k1:
        E(f"{L}_fins:")
        stamp(which)
        E("  s_waitcnt lgkmcnt(0)")
        E("  s_barrier")
        E("  s_cmp_ge_u32 s26, 2")
        E(f"  s_cbranch_scc1 {L}_fb")
        E(f"  v_lshl_or_b32 v{t3}, s26, 6, v0")
        E(f"  v_lshlrev_b32 v{t4}, 2, v{t3}")
        E(f"  v_add_u32 v{t4}, {A_SUM}, v{t4}")
        E(f"  ds_read_b32 v{V_X}, v{t4}")
        E(f"  ds_read_b32 v{V_X+1}, v{t4} offset:512")
        E("  s_waitcnt lgkmcnt(0)")
        fin_stats(V_X, V_X + 1, t3, t4)
        E("  s_waitcnt lgkmcnt(0)")
        E(f"{L}_fb:")
        E("  s_barrier")
    stamp(which)
    E("  s_mov_b32 s45, 0x3fb8aa3b")
    pads_on()
    if k1: k1_epilogue()
    else: k3_epilogue()
    pads_off()
    stamp(which)
    stamp_flush(which, 36)
    rt_end(which)
    E(f"  s_branch {L}_done")
    E(f"{L}_loader:")
    E("  s_sub_u32 s27, s26, 4")
    LA, LB = 2, 4
    E(f"  v_lshrrev_b32 v{t0}, 3, v0")
    E(f"  v_and_b32 v{t1}, 7, v0")
    E(f"  v_xor_b32 v{t1}, v{t1}, v{t0}")
    E(f"  v_lshlrev_b32 v{t1}, 4, v{t1}")
    E("  s_lshl_b32 s40, s24, 7")
    E("  s_lshl_b32 s41, s27, 4")
    E("  s_add_u32 s40, s40, s41")
    E(f"  v_add_u32 v{t0}, s40, v{t0}")
    E("  s_movk_i32 s41, 1280")
    E(f"  v_mad_u32_u24 v{LA}, v{t0}, s41, v{t1}")
    E(f"  v_add_u32 v{LA+1}, {8*1280-1024}, v{LA}")
    E(f"  v_lshrrev_b32 v{t0}, 4, v0")
    E(f"  v_and_b32 v{t1}, 15, v0")
    E("  s_lshl_b32 s40, s27, 3")
    E(f"  v_add_u32 v{t4}, s40, v{t0}")
    E("  s_and_b32 s40, s27, 1")
    E("  s_lshl_b32 s40, s40, 2")
    E(f"  v_add_u32 v{t0}, s40, v{t0}")
    E(f"  v_lshrrev_b32 v{t2}, 1, v{t1}")
    E(f"  v_xor_b32 v{t2}, v{t2}, v{t0}")
    E(f"  v_lshlrev_b32 v{t2}, 1, v{t2}")
    E(f"  v_and_b32 v{t3}, 1, v{t1}")
    E(f"  v_or_b32 v{t2}, v{t2}, v{t3}")
    if k1:
        E(f"  v_min_u32 v{t2}, 14, v{t2}")
        E(f"  v_lshlrev_b32 v{t3}, 4, v{t2}")
        E(f"  v_add_u32 v20, 1280, v{t3}")
        E(f"  v_add_u32 v21, {2560-80}, v{t3}")
        E(f"  v_subrev_u32 v22, 160, v{t3}")
        E(f"  v_cmp_gt_u32 vcc, 5, v{t2}")
        E("  s_nop 1")
        E("  v_cndmask_b32 v21, v21, v20, vcc")
        E(f"  v_cmp_gt_u32 vcc, 10, v{t2}")
        E("  s_nop 1")
        E(f"  v_cndmask_b32 v{t3}, v22, v21, vcc")
        E("  s_mul_i32 s42, s25, 80")
    else:
        E(f"  v_lshlrev_b32 v{t3}, 4, v{t2}")
        E("  s_mul_i32 s42, s25, 224")
    if k1:
        E(f"  v_add_u32 v{t3}, s42, v{t3}")
        E(f"  s_movk_i32 s41, {ldb}")
        E(f"  v_mad_u32_u24 v{LB}, v{t4}, s41, v{t3}")
        E(f"  v_add_u32 v{LB+1}, {4*ldb-1024}, v{LB}")
    else:
        E("  s_mul_i32 s42, s25, 163840")
        E("  s_lshl_b32 s41, s27, 11")
        E("  s_add_u32 s42, s42, s41")
        E(f"  v_lshlrev_b32 v{LB}, 4, v0")
        E(f"  v_add_u32 v{LB}, s42, v{LB}")
        E(f"  v_mov_b32 v{LB+1}, v{LB}")
    E("  s_lshl_b32 s34, s27, 11")
    E("  s_mov_b32 s31, 0")
    E("  s_mov_b32 s32, 0")
    E("  s_mov_b32 s33, 0")
    def dma_stage():
        E("  s_add_u32 s35, s31, s34")
        E("  s_mov_b32 m0, s35")
        E("  s_add_u32 s35, s35, 16384")
        for j in range(2):
            E(f"  buffer_load_dwordx4 v{LA+j}, s[8:11], s32 offen offset:{j*1024} lds")
        E("  s_mov_b32 m0, s35")
        E("  s_add_u32 s32, s32, 128")
        for j in range(2):
            E(f"  buffer_load_dwordx4 v{LB+j}, s[12:15], s33 offen offset:{j*1024} lds")
        E(f"  s_add_u32 s33, s33, {64*ldb if k1 else 16384}")
        E(f"  s_add_u32 s31, s31, {SLOT}")
        E(f"  s_cmp_eq_u32 s31, {NS*SLOT}")
        E("  s_cselect_b32 s31, 0, s31")
    for s in range(NS):
        dma_stage()
    pf_enter(L, 8, "s27")
    E(f"  s_waitcnt vmcnt({4*(NS-1)})")
    E("  s_barrier")
    NX = 0
    for sv in range(NST - 1):
        issued = min(NST - 1, sv + NS - 1)
        extra = NX if sv > NST - NS else 0
        E(f"  s_waitcnt vmcnt({4*(issued-(sv+1)) + NX})")
        E("  s_barrier")
        if sv + NS < NST:
            dma_stage()
        if k1 and sv + NS == NST - 1:
            NX = relayout_loads()
    if k1:
        relayout_finish()
    E(f"{L}_done:")
    E("  s_endpgm")

RL_SA, RL_DA, RL_DT = 16, 24, 32
def relayout_loads():
    E("  s_load_dwordx2 s[64:65], s[0:1], 32")
    E("  s_load_dwordx2 s[66:67], s[0:1], 40")
    E("  s_load_dwordx2 s[68:69], s[0:1], 16")
    SA_, DA_, DT = RL_SA, RL_DA, RL_DT
    a, b, c, d, tid = 60, 61, 62, 63, 59
    E(f"  v_lshl_or_b32 v{tid}, s27, 6, v0")
    for i in range(20): E(f"  v_mov_b32 v{DT+i}, 0")
    E("  s_lshr_b32 s40, s2, 4")
    E("  s_and_b32 s41, s2, 15")
    E("  s_mul_i32 s41, s41, 40")
    E("  s_mul_i32 s42, s40, 224")
    E("  s_movk_i32 s43, 3456")
    for r in range(2):
        E(f"  v_add_u32 v{a}, {512*r}, v{tid}")
        E(f"  v_lshrrev_b32 v{b}, 4, v{a}")
        E(f"  v_add_u32 v{b}, s41, v{b}")
        E(f"  v_and_b32 v{c}, 15, v{a}")
        E(f"  v_bfe_u32 v{d}, v{b}, 3, 1")
        E(f"  v_lshlrev_b32 v{d}, 2, v{d}")
        E(f"  v_and_or_b32 v{d}, v{b}, 3, v{d}")
        E(f"  v_lshrrev_b32 v{DA_+r}, 1, v{c}")
        E(f"  v_xor_b32 v{d}, v{d}, v{DA_+r}")
        E(f"  v_and_b32 v{DA_+r}, 1, v{c}")
        E(f"  v_lshl_or_b32 v{d}, v{d}, 1, v{DA_+r}")
        E(f"  v_lshlrev_b32 v{DA_+r}, 8, v{b}")
        E(f"  v_lshl_add_u32 v{DA_+r}, v{d}, 4, v{DA_+r}")
        E(f"  v_lshl_add_u32 v{d}, v{c}, 4, s42")
        E(f"  v_mad_u32_u24 v{SA_+r}, v{b}, s43, v{d}")
        E(f"  v_cmp_gt_u32 s[{70+2*r}:{71+2*r}], 14, v{c}")
        E(f"  v_cmp_gt_u32 vcc, s43, v{d}")
        E(f"  s_and_b64 s[{70+2*r}:{71+2*r}], s[{70+2*r}:{71+2*r}], vcc")
        E(f"  v_cmp_gt_u32 vcc, 640, v{a}")
        E(f"  s_and_b64 s[{70+2*r}:{71+2*r}], s[{70+2*r}:{71+2*r}], vcc")
    E("  s_lshr_b32 s40, s2, 5")
    E("  s_and_b32 s41, s2, 31")
    E("  s_movk_i32 s43, 6554")
    E("  s_mul_i32 s42, s40, 160")
    for r in range(3):
        wo = r == 2
        q = 2 + r
        E(f"  v_add_u32 v{a}, {0 if wo else 512*r}, v{tid}")
        E(f"  v_mul_u32_u24 v{b}, s43, v{a}")
        E(f"  v_lshrrev_b32 v{b}, 16, v{b}")
        E(f"  v_mul_u32_u24 v{c}, 10, v{b}")
        E(f"  v_sub_u32 v{c}, v{a}, v{c}")
        E(f"  s_mul_i32 s47, s41, {20 if wo else 54}")
        E(f"  v_add_u32 v{b}, s47, v{b}")
        E(f"  v_lshlrev_b32 v{c}, 4, v{c}")
        E(f"  v_mul_u32_u24 v{SA_+q}, 1280, v{b}")
        E(f"  v_add_u32 v{SA_+q}, v{SA_+q}, v{c}")
        E(f"  v_add_u32 v{SA_+q}, s42, v{SA_+q}")
        if wo:
            E(f"  v_mul_u32_u24 v{DA_+q}, 160, v{b}")
        else:
            E(f"  v_and_b32 v{d}, 0x13, v{b}")
            E(f"  v_bfe_u32 v{DA_+q}, v{b}, 2, 1")
            E(f"  v_lshl_or_b32 v{d}, v{DA_+q}, 3, v{d}")
            E(f"  v_bfe_u32 v{DA_+q}, v{b}, 3, 1")
            E(f"  v_lshl_or_b32 v{d}, v{DA_+q}, 2, v{d}")
            E(f"  v_mul_u32_u24 v{d}, 160, v{d}")
            E(f"  v_lshrrev_b32 v{DA_+q}, 5, v{b}")
            E(f"  v_mul_u32_u24 v{DA_+q}, 5120, v{DA_+q}")
            E(f"  v_add_u32 v{DA_+q}, v{DA_+q}, v{d}")
        E(f"  v_add_u32 v{DA_+q}, v{DA_+q}, v{c}")
        E(f"  v_cmp_gt_u32 vcc, {200 if wo else 540}, v{a}")
        E(f"  s_mov_b64 s[{70+2*q}:{71+2*q}], vcc")
    E("  s_waitcnt lgkmcnt(0)")
    for (dd, lo, nb) in [(84, 64, 640 * 3456), (88, 66, 1728 * 1280), (92, 68, 640 * 1280)]:
        srd(dd, lo, nb)
    for r in range(5):
        q = 84 if r < 2 else (88 if r < 4 else 92)
        E(f"  v_cndmask_b32 v{SA_+r}, 0, v{SA_+r}, s[{70+2*r}:{71+2*r}]")
        E(f"  buffer_load_dwordx4 {vr(DT+4*r,4)}, v{SA_+r}, s[{q}:{q+3}], 0 offen")
    return 5

def relayout_finish():
    SA_, DA_, DT = RL_SA, RL_DA, RL_DT
    srd(16, 38, WS_BYTES)
    E("  s_lshr_b32 s40, s2, 5")
    E("  s_lshr_b32 s41, s2, 4")
    E("  s_mul_i32 s41, s41, 163840")
    E(f"  s_add_u32 s41, s41, {W1T_OFF}")
    E("  s_mul_i32 s42, s40, 276480")
    E(f"  s_add_u32 s42, s42, {W2T_OFF}")
    E("  s_mul_i32 s43, s40, 102400")
    E(f"  s_add_u32 s43, s43, {WOT_OFF}")
    E("  s_waitcnt vmcnt(0)")
    for r in range(5):
        so = "s41" if r < 2 else ("s42" if r < 4 else "s43")
        E(f"  s_mov_b64 exec, s[{70+2*r}:{71+2*r}]")
        E(f"  s_cbranch_execz LRS{r}")
        E(f"  buffer_store_dwordx4 {vr(DT+4*r,4)}, v{DA_+r}, s[16:19], {so} offen")
        E(f"LRS{r}:")
    E("  s_mov_b64 exec, -1")
    for i in range(4):
        E(f"  v_cndmask_b32 v{DT+4+i}, 0, v{DT+4+i}, s[72:73]")
    C = 64
    for i in range(4):
        for r in range(2):
            x = DT + 4 * r + i
            E(f"  v_lshlrev_b32 v60, 16, v{x}")
            E(f"  v_and_b32 v61, 0xffff0000, v{x}")
            if r == 0:
                E(f"  v_mov_b32 v{C+2*i}, v60")
                E(f"  v_mov_b32 v{C+2*i+1}, v61")
            else:
                E(f"  v_pk_add_f32 {vr(C+2*i,2)}, {vr(C+2*i,2)}, v[60:61]")
    for c in range(8):
        r = C + c
        E(f"  v_mov_b32 v62, v{r}")
        E("  s_nop 1")
        E(f"  v_permlane32_swap_b32 v{r}, v62")
        E("  s_nop 1")
        E(f"  v_add_f32 v{r}, v{r}, v62")
        E(f"  v_mov_b32 v62, v{r}")
        E("  s_nop 1")
        E(f"  v_permlane16_swap_b32 v{r}, v62")
        E("  s_nop 1")
        E(f"  v_add_f32 v{r}, v{r}, v62")
    E("  v_and_b32 v60, 15, v0")
    E("  v_lshlrev_b32 v60, 5, v60")
    E("  s_lshl_b32 s40, s27, 9")
    E(f"  s_add_u32 s40, s40, {A_CP}")
    E("  v_add_u32 v60, s40, v60")
    E(f"  ds_write_b128 v60, {vr(C,4)}")
    E(f"  ds_write_b128 v60, {vr(C+4,4)} offset:16")
    E("  s_waitcnt lgkmcnt(0)")
    E("  s_barrier")
    E("  s_cmp_ge_u32 s27, 2")
    E("  s_cbranch_scc1 L1_rf2")
    E("  v_lshl_or_b32 v60, s27, 6, v0")
    E("  v_lshlrev_b32 v60, 2, v60")
    E(f"  v_add_u32 v61, {A_CP}, v60")
    for q in range(8):
        E(f"  ds_read_b32 v{40+q}, v61 offset:{512*q}")
    E("  s_waitcnt lgkmcnt(0)")
    for q in range(1, 8):
        E(f"  v_add_f32 v40, v40, v{40+q}")
    E("  s_lshl_b32 s40, s2, 9")
    E(f"  s_add_u32 s40, s40, {CSP_OFF}")
    E("  buffer_store_dword v40, v60, s[16:19], s40 offen")
    E("L1_rf2:")
    E("  s_barrier")

def fin_stats(vs, vq, vrow, tmp):
    E("  s_mov_b32 s40, 0x3acccccd")
    E(f"  v_mul_f32 v{vs}, s40, v{vs}")
    E(f"  v_mul_f32 v{vq}, s40, v{vq}")
    E(f"  v_fma_f32 v{vq}, -v{vs}, v{vs}, v{vq}")
    E(f"  v_max_f32 v{vq}, 0, v{vq}")
    E(f"  v_add_f32 v{vq}, 0x3727c5ac, v{vq}")
    E(f"  v_rsq_f32 v{vq}, v{vq}")
    E(f"  v_lshlrev_b32 v{tmp}, 2, v{vrow}")
    E(f"  v_add_u32 v{tmp}, {A_MEAN}, v{tmp}")
    E(f"  ds_write_b32 v{tmp}, v{vs}")
    E(f"  ds_write_b32 v{tmp}, v{vq} offset:512")

def k1_epilogue():
    t0, t1, t2, t3, t4 = V_T, V_T + 1, V_T + 2, V_T + 3, V_T + 4
    CSN, CSV3, MN, RN, MS, RS = 16, 20, 24, 40, 56, 60
    pk = [64, 72, 144, 152]
    TM = 160
    E(f"  v_and_b32 v{t0}, 15, v0")
    E(f"  v_lshrrev_b32 v{t1}, 4, v0")
    E("  s_lshl_b32 s40, s27, 8")
    E(f"  s_add_u32 s40, s40, {A_MEAN}")
    E(f"  v_lshl_add_u32 v{t2}, v{t0}, 2, s40")
    E(f"  v_lshl_add_u32 v{t3}, v{t1}, 4, s40")
    for mt in range(4):
        E(f"  ds_read_b128 {vr(MN+4*mt,4)}, v{t3} offset:{64*mt}")
        E(f"  ds_read_b128 {vr(RN+4*mt,4)}, v{t3} offset:{512+64*mt}")
        E(f"  ds_read_b32 v{MS+mt}, v{t2} offset:{64*mt}")
        E(f"  ds_read_b32 v{RS+mt}, v{t2} offset:{512+64*mt}")
    E("  s_mul_i32 s41, s28, 80")
    E(f"  s_add_u32 s41, s41, {A_CS}")
    E(f"  v_lshl_add_u32 v{t2}, v{t0}, 2, s41")
    E(f"  ds_read_b32 v{CSN}, v{t2}")
    E(f"  ds_read_b32 v{CSN+1}, v{t2} offset:160")
    E(f"  v_add_u32 v{t3}, 64, v{t2}")
    E(f"  v_add_u32 v{t4}, {52*4}, v{t2}")
    E(f"  v_cmp_gt_u32 vcc, 4, v{t0}")
    E("  s_nop 1")
    E(f"  v_cndmask_b32 v{t3}, v{t4}, v{t3}, vcc")
    E(f"  v_lshlrev_b32 v{t4}, 2, v{t0}")
    E(f"  v_add_u32 v{t4}, {A_CS+104*4}, v{t4}")
    E(f"  v_cmp_gt_u32 vcc, 8, v{t0}")
    E("  s_nop 1")
    E(f"  v_cndmask_b32 v{t3}, v{t4}, v{t3}, vcc")
    E(f"  ds_read_b32 v{CSN+2}, v{t3}")
    E("  s_lshl_b32 s41, s28, 6")
    E(f"  s_add_u32 s41, s41, {A_CS+320}")
    E(f"  v_lshl_add_u32 v{t3}, v{t1}, 4, s41")
    E(f"  ds_read_b128 {vr(CSV3,4)}, v{t3}")
    E("  s_mov_b32 s46, 0x358637bd")
    E(f"  v_and_b32 v{t2}, 12, v{t0}")
    E(f"  v_cmp_eq_u32 s[48:49], 4, v{t2}")
    E("  s_waitcnt lgkmcnt(0)")
    def phi4(a):
        for r in range(4): E(f"  v_min_f32 v{TM+r}, 0, v{a+r}")
        for r in range(4): E(f"  v_mul_f32 v{TM+r}, s45, v{TM+r}")
        for r in range(4): E(f"  v_exp_f32 v{TM+r}, v{TM+r}")
        for r in range(4): E(f"  v_max_f32 v{a+r}, 0, v{a+r}")
        for r in range(4): E(f"  v_add_f32 v{TM+r}, s46, v{TM+r}")
        for r in range(4): E(f"  v_add_f32 v{a+r}, v{a+r}, v{TM+r}")
    for mt in range(4):
        for t in range(3):
            a = acc(mt, t)
            for r in range(4):
                E(f"  v_fma_f32 v{a+r}, -v{MN+4*mt+r}, v{CSN+t}, v{a+r}")
            for p in range(2):
                E(f"  v_pk_mul_f32 {vr(a+2*p,2)}, {vr(a+2*p,2)}, {vr(RN+4*mt+2*p,2)}")
        a = acc(mt, 3)
        for r in range(4):
            E(f"  v_fma_f32 v{a+r}, -v{MS+mt}, v{CSV3+r}, v{a+r}")
        for r in range(4):
            E(f"  v_mul_f32 v{a+r}, v{RS+mt}, v{a+r}")
        phi4(acc(mt, 0)); phi4(acc(mt, 3))
        a = acc(mt, 2)
        for r in range(4): E(f"  v_mov_b32 v{TM+4+r}, v{a+r}")
        phi4(a)
        for r in range(4): E(f"  v_cndmask_b32 v{a+r}, v{a+r}, v{TM+4+r}, s[48:49]")
        for t in range(4):
            a = acc(mt, t)
            E(f"  v_cvt_pk_bf16_f32 v{pk[t]+2*mt}, v{a}, v{a+1}")
            E(f"  v_cvt_pk_bf16_f32 v{pk[t]+2*mt+1}, v{a+2}, v{a+3}")
    E("  s_lshl_b32 s40, s24, 1")
    E("  s_add_u32 s40, s40, s27")
    E("  s_lshl_b32 s40, s40, 2")
    E("  s_lshr_b32 s41, s25, 2")
    E("  s_add_u32 s40, s40, s41")
    E("  s_mul_i32 s40, s40, 21504")
    E("  s_and_b32 s41, s25, 3")
    E("  s_mul_i32 s41, s41, 80")
    E("  s_add_u32 s41, s41, s40")
    E("  s_movk_i32 s42, 336")
    E(f"  v_mul_u32_u24 v{t2}, s42, v{t0}")
    E(f"  v_lshl_add_u32 v{t2}, v{t1}, 3, v{t2}")
    E("  s_lshl_b32 s43, s28, 5")
    E("  s_add_u32 s43, s43, s41")
    for mt in range(4):
        E(f"  s_add_u32 s47, s43, {mt*16*336+PQT_OFF}")
        E(f"  buffer_store_dwordx2 {vr(pk[3]+2*mt,2)}, v{t2}, s[16:19], s47 offen")
    M = V_ACC
    ON = TM
    for i in range(4):
        E(f"  v_mov_b32 v{ON+i}, 0x3f803f80")
    E("  s_nop 1")
    for p in range(2):
        P0, V1, X2 = pk[0] + 4 * p, pk[1] + 4 * p, pk[2] + 4 * p
        for i, (a, b) in enumerate(((P0, V1), (P0, X2), (X2, V1), (X2, X2), (P0, ON), (X2, ON))):
            c = "0" if p == 0 else vr(M + 4 * i, 4)
            E(f"  v_mfma_f32_16x16x32_bf16 {vr(M+4*i,4)}, {vr(a,4)}, {vr(b,4)}, {c}")
    E("  s_cmp_eq_u32 s28, 1")
    E("  s_cbranch_scc1 L1_noq2")
    E(f"  v_lshlrev_b32 v{t3}, 2, v{t1}")
    E(f"  v_mul_u32_u24 v{t3}, s42, v{t3}")
    E(f"  v_lshl_add_u32 v{t3}, v{t0}, 1, v{t3}")
    E(f"  v_cmp_lt_u32 vcc, 7, v{t0}")
    E("  s_and_saveexec_b64 s[50:51], vcc")
    for mt in range(4):
        E(f"  s_add_u32 s47, s41, {mt*16*336+PQT_OFF+64-16}")
        E(f"  buffer_store_short v{pk[2]+2*mt}, v{t3}, s[16:19], s47 offen")
        E(f"  buffer_store_short_d16_hi v{pk[2]+2*mt}, v{t3}, s[16:19], s47 offen offset:336")
        E(f"  buffer_store_short v{pk[2]+2*mt+1}, v{t3}, s[16:19], s47 offen offset:672")
        E(f"  buffer_store_short_d16_hi v{pk[2]+2*mt+1}, v{t3}, s[16:19], s47 offen offset:1008")
    E("  s_mov_b64 exec, s[50:51]")
    E("L1_noq2:")
    E("  s_lshl_b32 s40, s25, 2")
    E(f"  v_mov_b32 v{t3}, s40")
    E("  s_mul_i32 s40, s28, 1680")
    E(f"  s_add_u32 s40, s40, {A_KV}")
    E(f"  v_mul_u32_u24 v{t2}, 80, v{t0}")
    E(f"  v_lshl_add_u32 v{t2}, v{t1}, 4, v{t2}")
    E(f"  v_add_u32 v{t2}, s40, v{t2}")
    E("  s_lshl_b32 s41, s27, 12")
    E(f"  v_add_u32 v{t2}, s41, v{t2}")
    E("  s_nop 4")
    E(f"  ds_write_b128 v{t2}, {vr(M,4)}")
    E("  s_mov_b64 exec, s[48:49]")
    E(f"  ds_write_b128 v{t2}, {vr(M+4,4)} offset:960")
    E("  s_mov_b64 exec, 0xffff")
    E(f"  ds_write_b128 v{t2}, {vr(M+8,4)} offset:64")
    E("  s_mov_b64 exec, 0xf0")
    E(f"  ds_write_b128 v{t2}, {vr(M+12,4)} offset:{960+64}")
    E("  s_mov_b32 s50, 0x00010001")
    E("  s_mov_b32 s51, 0x00010001")
    E("  s_mov_b64 exec, s[50:51]")
    E(f"  ds_write_b128 v{t2}, {vr(M+16,4)} offset:1600")
    E("  s_mov_b64 exec, 1")
    E(f"  ds_write_b128 v{t2}, {vr(M+20,4)} offset:{1600+64}")
    stamp(1)
    E("  s_cmp_lg_u32 s26, 0")
    E("  s_cbranch_scc1 L1_nopoll")
    E("L1_poll:")
    E(f"  buffer_load_dword v{t4}, v{t3}, s[20:23], 0 offen sc0 sc1")
    E("  s_waitcnt vmcnt(0)")
    E(f"  v_readfirstlane_b32 s41, v{t4}")
    E("  s_nop 3")
    E("  s_cmp_lt_u32 s41, 4")
    E("  s_cbranch_scc1 L1_poll")
    E("L1_nopoll:")
    E("  s_mov_b64 exec, -1")
    E("  s_waitcnt lgkmcnt(0)")
    E("  s_barrier")
    stamp(1)
    E(f"  v_lshl_or_b32 v{t3}, s26, 6, v0")
    E(f"  v_lshlrev_b32 v{t3}, 2, v{t3}")
    E(f"  v_add_u32 v{t4}, {A_KV}, v{t3}")
    for j in range(4):
        E(f"  ds_read_b32 v{TM+j}, v{t4} offset:{1024*j}")
        E(f"  ds_read_b32 v{TM+4+j}, v{t4} offset:{4096+1024*j}")
    E("  s_mul_i32 s40, s25, 3360")
    E(f"  s_add_u32 s40, s40, {KV_OFF}")
    E("  s_waitcnt lgkmcnt(0)")
    for j in range(4):
        E(f"  v_add_f32 v{TM+j}, v{TM+j}, v{TM+4+j}")
    for j in range(3):
        E(f"  buffer_atomic_add_f32 v{TM+j}, v{t3}, s[16:19], s40 offen offset:{1024*j}")
    E(f"  v_cmp_gt_u32 vcc, {3360-3072}, v{t3}")
    E("  s_and_saveexec_b64 s[50:51], vcc")
    E("  s_cbranch_execz L1_fin")
    E(f"  buffer_atomic_add_f32 v{TM+3}, v{t3}, s[16:19], s40 offen offset:3072")
    E("L1_fin:")

def k3_epilogue():
    t0, t1, t2, t3, t4 = V_T, V_T + 1, V_T + 2, V_T + 3, V_T + 4
    MS, RS, CSV, PK, TM = 16, 20, 24, 48, 144
    E(f"  v_and_b32 v{t0}, 15, v0")
    E(f"  v_lshrrev_b32 v{t1}, 4, v0")
    E("  s_lshl_b32 s40, s27, 8")
    E(f"  s_add_u32 s40, s40, {A_MEAN}")
    E(f"  v_lshl_add_u32 v{t2}, v{t0}, 2, s40")
    for mt in range(4):
        E(f"  ds_read_b32 v{MS+mt}, v{t2} offset:{64*mt}")
        E(f"  ds_read_b32 v{RS+mt}, v{t2} offset:{512+64*mt}")
    E("  s_lshl_b32 s41, s28, 8")
    E(f"  s_add_u32 s41, s41, {A_CS}")
    E(f"  v_lshl_add_u32 v{t3}, v{t1}, 4, s41")
    for t in range(4):
        E(f"  ds_read_b128 {vr(CSV+4*t,4)}, v{t3} offset:{64*t}")
    E(f"  v_lshrrev_b32 v{t2}, 2, v{t0}")
    E(f"  v_sub_u32 v{t2}, 0, v{t2}")
    E(f"  v_lshrrev_b32 v{t4}, 1, v{t1}")
    E(f"  v_xor_b32 v{t2}, v{t2}, v{t4}")
    E(f"  v_and_b32 v{t2}, 3, v{t2}")
    E(f"  v_lshlrev_b32 v{t2}, 4, v{t2}")
    E(f"  v_lshl_add_u32 v{t2}, v{t0}, 6, v{t2}")
    E(f"  v_and_b32 v{t4}, 1, v{t1}")
    E(f"  v_lshl_add_u32 v{t2}, v{t4}, 3, v{t2}")
    E(f"  v_xor_b32 v{t4}, 32, v{t2}")
    E("  s_lshl_b32 s40, s24, 1")
    E("  s_add_u32 s40, s40, s27")
    E("  s_mul_i32 s40, s40, 221184")
    E(f"  s_add_u32 s40, s40, {H1_OFF}")
    E("  s_mul_i32 s41, s25, 224")
    E("  s_lshl_b32 s43, s28, 7")
    E("  s_add_u32 s43, s43, s41")
    E("  s_waitcnt lgkmcnt(0)")
    for t in range(4):
        E(f"  s_add_u32 s46, s43, {32*t}")
        E("  s_cmp_ge_u32 s46, 3456")
        E(f"  s_cbranch_scc1 L3_skip")
        if t == 3:
            E("  s_cmp_eq_u32 s28, 1")
            E(f"  s_cbranch_scc1 L3_skip")
        for mt in range(4):
            a = acc(mt, t)
            tm = TM + 4 * (mt & 1)
            for r in range(4):
                E(f"  v_fma_f32 v{a+r}, -v{MS+mt}, v{CSV+4*t+r}, v{a+r}")
            for r in range(4):
                E(f"  v_mul_f32 v{a+r}, v{RS+mt}, v{a+r}")
            for r in range(4): E(f"  v_mul_f32 v{tm+r}, s45, v{a+r}")
            for r in range(4): E(f"  v_exp_f32 v{tm+r}, -v{tm+r}")
            for r in range(4): E(f"  v_add_f32 v{tm+r}, 1.0, v{tm+r}")
            for r in range(4): E(f"  v_rcp_f32 v{tm+r}, v{tm+r}")
            for p in range(2): E(f"  v_pk_mul_f32 {vr(a+2*p,2)}, {vr(a+2*p,2)}, {vr(tm+2*p,2)}")
            E(f"  v_cvt_pk_bf16_f32 v{PK+(mt*4+t)*2}, v{a}, v{a+1}")
            E(f"  v_cvt_pk_bf16_f32 v{PK+(mt*4+t)*2+1}, v{a+2}, v{a+3}")
            if mt == 0:
                E("  s_lshr_b32 s47, s46, 6")
                E("  s_lshl_b32 s47, s47, 12")
                E("  s_add_u32 s47, s47, s40")
                E("  s_bitcmp1_b32 s46, 5")
                E("  s_cselect_b64 vcc, -1, 0")
                E("  s_nop 1")
                E(f"  v_cndmask_b32 v{t3}, v{t2}, v{t4}, vcc")
            E(f"  buffer_store_dwordx2 {vr(PK+(mt*4+t)*2,2)}, v{t3}, s[16:19], s47 offen offset:{mt*1024}")
    E("L3_skip:")

def head_6480(which):
    E("  s_cmp_ge_u32 s2, 256")
    E(f"  s_cbranch_scc1 L{which}_done")
    E("  s_load_dwordx4 s[36:39], s[0:1], 56")
    E("  s_load_dwordx2 s[4:5], s[0:1], 48")
    E(f"  s_load_dwordx2 s[6:7], s[0:1], {16 if which == 2 else 40}")
    E("  s_load_dwordx2 s[42:43], s[0:1], 0")
    stamp(which)
    E("  s_and_b32 s40, s2, 7")
    E("  s_lshr_b32 s41, s2, 3")
    E("  s_lshl_b32 s24, s40, 2")
    E("  s_and_b32 s44, s41, 3")
    E("  s_add_u32 s24, s24, s44")
    E("  s_lshr_b32 s25, s41, 2")
    E("  v_lshrrev_b32 v1, 6, v0")
    E("  v_mov_b32 v2, v0")
    E("  v_and_b32 v0, 63, v0")
    E("  v_readfirstlane_b32 s26, v1")
    E("  s_nop 3")

def res_addr():
    E("  v_lshrrev_b32 v3, 2, v2")
    E("  s_lshl_b32 s40, s24, 6")
    E("  v_add_u32 v3, s40, v3")
    E("  s_movk_i32 s41, 1280")
    E("  v_mul_lo_u32 v7, v3, s41")
    E("  v_and_b32 v4, 3, v2")
    E("  v_mad_u32_u24 v7, v4, 40, v7")
    E("  s_mul_i32 s40, s25, 160")
    E("  v_add_u32 v7, s40, v7")

def chunk_addr(vc, vrow, vcol, tmp):
    E("  s_movk_i32 s41, 6554")
    E(f"  v_mul_u32_u24 v{vrow}, s41, v{vc}")
    E(f"  v_lshrrev_b32 v{vrow}, 16, v{vrow}")
    E(f"  v_mul_u32_u24 v{tmp}, 10, v{vrow}")
    E(f"  v_sub_u32 v{vcol}, v{vc}, v{tmp}")

def res_load(rounds, res_srd, RES, GA):
    for r, add in enumerate(rounds):
        E(f"  v_add_u32 v3, {add}, v2")
        chunk_addr(3, 4, 5, 6)
        E("  s_lshl_b32 s40, s24, 6")
        E("  v_add_u32 v4, s40, v4")
        E("  s_movk_i32 s41, 1280")
        E(f"  v_mul_lo_u32 v{GA+r}, v4, s41")
        E(f"  v_lshl_add_u32 v{GA+r}, v5, 4, v{GA+r}")
        E("  s_mul_i32 s40, s25, 160")
        E(f"  v_add_u32 v{GA+r}, s40, v{GA+r}")
        E("  v_cmp_gt_u32 vcc, 640, v3")
        E(f"  v_cndmask_b32 v{GA+r}, -1, v{GA+r}, vcc")
        E(f"  buffer_load_dwordx4 {vr(RES+4*r,4)}, v{GA+r}, {sr(res_srd,4)}, 0 offen")

def final_sum(which, rounds, RES, GA, dst_srd, wstride, B):
    for r, add in enumerate(rounds):
        E(f"  v_add_u32 v3, {add}, v2")
        E("  v_min_u32 v3, 639, v3")
        chunk_addr(3, 4, 5, 6)
        E("  v_mul_u32_u24 v6, 336, v4")
        E("  v_lshl_add_u32 v6, v5, 5, v6")
        E(f"  v_add_u32 v3, {2*wstride}, v6")
        for w in range(4):
            for j in range(2):
                E(f"  ds_read_b128 {vr(B+w*8+j*4,4)}, {'v6' if w < 2 else 'v3'} offset:{(w&1)*wstride+j*16}")
        E("  s_waitcnt lgkmcnt(0)")
        for i in range(4):
            E(f"  v_pk_add_f32 {vr(B+2*i,2)}, {vr(B+2*i,2)}, {vr(B+8+2*i,2)}")
            E(f"  v_pk_add_f32 {vr(B+16+2*i,2)}, {vr(B+16+2*i,2)}, {vr(B+24+2*i,2)}")
        for i in range(4):
            E(f"  v_pk_add_f32 {vr(B+2*i,2)}, {vr(B+2*i,2)}, {vr(B+16+2*i,2)}")
        E("  s_waitcnt vmcnt(0)")
        T = B + 8
        for i in range(4):
            E(f"  v_lshlrev_b32 v{T}, 16, v{RES+4*r+i}")
            E(f"  v_and_b32 v{T+1}, 0xffff0000, v{RES+4*r+i}")
            if which == 2:
                E(f"  v_cvt_pk_bf16_f32 v{T+2}, v{B+2*i}, v{B+2*i+1}")
                E(f"  v_lshlrev_b32 v{B+2*i}, 16, v{T+2}")
                E(f"  v_and_b32 v{B+2*i+1}, 0xffff0000, v{T+2}")
            E(f"  v_pk_add_f32 {vr(B+2*i,2)}, {vr(B+2*i,2)}, {vr(T,2)}")
            E(f"  v_cvt_pk_bf16_f32 v{T+4+i}, v{B+2*i}, v{B+2*i+1}")
        E(f"  buffer_store_dwordx4 {vr(T+4,4)}, v{GA+r}, {sr(dst_srd,4)}, 0 offen")
        if which == 2:
            S = T + 8
            for i in range(4):
                E(f"  v_lshlrev_b32 v{T}, 16, v{T+4+i}")
                E(f"  v_and_b32 v{T+1}, 0xffff0000, v{T+4+i}")
                if i == 0:
                    E(f"  v_mov_b32 v{S}, v{T}")
                    E(f"  v_mov_b32 v{S+1}, v{T+1}")
                    E(f"  v_pk_mul_f32 {vr(S+2,2)}, {vr(T,2)}, {vr(T,2)}")
                else:
                    E(f"  v_pk_add_f32 {vr(S,2)}, {vr(S,2)}, {vr(T,2)}")
                    E(f"  v_pk_fma_f32 {vr(S+2,2)}, {vr(T,2)}, {vr(T,2)}, {vr(S+2,2)}")
            E(f"  v_add_f32 v{S}, v{S}, v{S+1}")
            E(f"  v_add_f32 v{S+1}, v{S+2}, v{S+3}")
            E("  v_mul_u32_u24 v6, 10, v4")
            E("  v_add_u32 v6, v6, v5")
            E("  v_lshlrev_b32 v6, 3, v6")
            E(f"  v_add_u32 v6, {K2_STAT}, v6")
            E(f"  v_add_u32 v3, {add}, v2")
            E("  v_cmp_gt_u32 vcc, 640, v3")
            E("  s_and_saveexec_b64 s[50:51], vcc")
            E(f"  ds_write_b64 v6, {vr(S,2)}")
            E("  s_mov_b64 exec, s[50:51]")

K2_STAT = 4 * 40960 - 5120 - 16

def k4(name):
    kernel_head(name)
    head_6480(4)
    E("  s_mul_i32 s40, s24, 221184")
    E(f"  s_add_u32 s40, s40, {H1_OFF}")
    E("  s_mul_i32 s41, s25, 276480")
    E(f"  s_add_u32 s41, s41, {W2T_OFF}")
    E("  s_waitcnt lgkmcnt(0)")
    E("  s_add_u32 s8, s38, s40")
    E("  s_addc_u32 s9, s39, 0")
    E("  s_mov_b32 s10, 221184")
    E("  s_mov_b32 s11, 0x00020000")
    E("  s_add_u32 s12, s38, s41")
    E("  s_addc_u32 s13, s39, 0")
    E("  s_mov_b32 s14, 276480")
    E("  s_mov_b32 s15, 0x00020000")
    srd(16, 38, 2048 * 1280, H_OFF)
    srd(20, 4, 2048 * 1280)
    E("  s_cmp_ge_u32 s26, 4")
    E("  s_cbranch_scc1 L4_loader")
    E("  s_mul_i32 s34, s26, 36864")
    E("  v_and_b32 v3, 15, v0")
    E("  v_lshrrev_b32 v4, 4, v0")
    E("  v_lshrrev_b32 v5, 2, v3")
    E("  v_sub_u32 v6, 0, v5")
    E("  v_xor_b32 v6, v6, v4")
    E("  v_and_b32 v6, 3, v6")
    E("  v_lshlrev_b32 v6, 4, v6")
    E("  v_lshl_add_u32 v6, v3, 6, v6")
    E("  v_add_u32 v8, s34, v6")
    E("  v_lshrrev_b32 v6, 1, v4")
    E("  v_lshl_add_u32 v6, v6, 4, v5")
    E("  v_and_b32 v4, 1, v4")
    E("  v_lshl_add_u32 v6, v4, 2, v6")
    E("  v_mul_u32_u24 v6, 160, v6")
    E("  v_and_b32 v3, 3, v3")
    E("  v_lshl_add_u32 v6, v3, 3, v6")
    E("  v_add_u32 v6, 4096, v6")
    E("  v_add_u32 v9, s34, v6")
    ACC = 16
    def accf(mt, nt): return ACC + (mt * 5 + nt) * 4
    for i in range(80):
        E(f"  v_mov_b32 v{ACC+i}, 0")
    RES = 96
    X, Y = 96 + 12, 96 + 12 + 36
    X, Y = 96, 132
    RES = 168 - 0
    def reads(step, base):
        sl = step % 4
        r = []
        for mt in range(4):
            r.append(f"  ds_read_b128 {vr(base+4*mt,4)}, v8 offset:{sl*9216+mt*1024}")
        for nt in range(5):
            for h in range(2):
                r.append(f"  ds_read_b64_tr_b16 {vr(base+16+4*nt+2*h,2)}, v9 offset:{sl*9216+h*1280+nt*32}")
        return r
    NSTEP = 14
    E("  s_barrier")
    stamp(4)
    for r in reads(0, X): E(r)
    for i in range(NSTEP):
        cur, nxt = (X, Y) if i % 2 == 0 else (Y, X)
        E("  s_waitcnt lgkmcnt(0)")
        if i + 1 < NSTEP:
            E("  s_barrier")
        mfs = [f"  v_mfma_f32_16x16x32_bf16 {vr(accf(mt,nt),4)}, {vr(cur+16+4*nt,4)}, {vr(cur+4*mt,4)}, {vr(accf(mt,nt),4)}" for mt in range(4) for nt in range(5)]
        interleave(mfs, reads(i + 1, nxt) if i + 1 < NSTEP else [])
        if i == NSTEP - 2:
            pass
    stamp(4)
    pads_on()
    E("  v_and_b32 v3, 15, v0")
    E("  v_lshrrev_b32 v4, 4, v0")
    E("  v_mul_u32_u24 v5, 336, v3")
    E("  v_lshl_add_u32 v5, v4, 4, v5")
    E("  v_add_u32 v5, s34, v5")
    E("  s_nop 7")
    for mt in range(4):
        for nt in range(5):
            E(f"  ds_write_b128 v5, {vr(accf(mt,nt),4)} offset:{mt*16*336+nt*64}")
    E("  s_waitcnt lgkmcnt(0)")
    pads_off()
    E("  s_branch L4_fin")
    E("L4_loader:")
    E("  s_sub_u32 s27, s26, 4")
    E("  s_lshr_b32 s28, s27, 1")
    E("  s_and_b32 s27, s27, 1")
    E("  s_mul_i32 s34, s28, 36864")
    E(f"  s_mul_i32 s32, s28, {14*4096}")
    E(f"  s_mul_i32 s33, s28, {14*5120}")
    E("  v_lshlrev_b32 v8, 4, v0")
    for half in range(2):
        if half == 0:
            E("  s_cmp_eq_u32 s27, 1")
            E("  s_cbranch_scc1 L4_ld1")
        else:
            E("L4_ld1:")
        n = 5 if half == 0 else 4
        def dma(step):
            sl = step % 4
            if half == 0:
                E(f"  s_add_u32 s35, s34, {sl*9216}")
                E("  s_mov_b32 m0, s35")
                E("  s_add_u32 s35, s35, 8192")
                for j in range(4):
                    E(f"  buffer_load_dwordx4 v8, s[8:11], s32 offen offset:{j*1024} lds")
                E("  s_mov_b32 m0, s35")
                E("  s_add_u32 s32, s32, 4096")
                E("  s_add_u32 s35, s33, 4096")
                E("  buffer_load_dwordx4 v8, s[12:15], s35 offen lds")
            else:
                E(f"  s_add_u32 s35, s34, {sl*9216+4096}")
                E("  s_mov_b32 m0, s35")
                E("  s_nop 0")
                for j in range(4):
                    E(f"  buffer_load_dwordx4 v8, s[12:15], s33 offen offset:{j*1024} lds")
            E(f"  s_add_u32 s33, s33, 5120")
        for s in range(4): dma(s)
        last = 3
        if half == 0: pf_enter("L4", 4, "s28")
        PF = int(os.environ.get("K4PF", "0"))
        npf = 0
        if PF:
            E("  s_mov_b32 s48, s32")
            E("  s_mov_b32 s49, s33")
            for st in range(4, 4 + PF):
                if half == 0:
                    for j in range(4):
                        E(f"  buffer_load_dwordx4 v[20:23], v{8+j}, s[8:11], s48 offen offset:{j*1024}")
                    E("  buffer_load_dwordx4 v[20:23], v16, s[12:15], s49 offen")
                    E("  s_add_u32 s48, s48, 64")
                else:
                    for j in range(4):
                        E(f"  buffer_load_dwordx4 v[20:23], v{12+j}, s[12:15], s49 offen offset:{j*1024}")
                E(f"  s_add_u32 s49, s49, {32*1280}")
                npf += n
        E(f"  s_waitcnt vmcnt({3*n+npf})")
        E("  s_barrier")
        for i in range(NSTEP - 1):
            E(f"  s_waitcnt vmcnt({min(63,(last-(i+1))*n + (npf if i+1 <= 3 else 0))})")
            E("  s_barrier")
            if i + 4 < NSTEP:
                dma(i + 4); last = i + 4
            if i == NSTEP - 5:
                pass
        E("  s_branch L4_fin")
    E("L4_fin:")
    pad["on"] = True
    res_load([0], 16, 16, 12)
    E("  s_barrier")
    final_sum(4, [0], 16, 12, 20, 36864, 24)
    pads_off()
    stamp(4)
    stamp_flush(4, 36)
    rt_end(4)
    E("L4_done:")
    E("  s_endpgm")

def k2(name):
    kernel_head(name)
    head_6480(2)
    E("  s_and_b32 s27, s26, 3")
    E("  s_lshr_b32 s33, s26, 2")
    E("  s_mul_i32 s34, s27, 40960")
    E("  v_lshlrev_b32 v8, 4, v0")
    E("  s_lshl_b32 s40, s24, 2")
    E("  s_add_u32 s40, s40, s27")
    E("  s_mul_i32 s44, s40, 21504")
    E("  s_mul_i32 s45, s33, 11264")
    E("  s_add_u32 s44, s44, s45")
    E("  s_add_u32 s35, s34, s45")
    E("  s_mov_b32 m0, s35")
    E("  s_waitcnt lgkmcnt(0)")
    srd(8, 38, 128 * 21504, PQT_OFF)
    srd(28, 38, 53760, KV_OFF)
    srd(12, 38, 8 * 102400, WOT_OFF)
    for j in range(11):
        if j == 10:
            E("  s_cmp_eq_u32 s33, 1")
            E("  s_cbranch_scc1 L2_pq10")
        E("  buffer_load_dwordx4 v8, s[8:11], s44 offen lds")
        E("  s_add_u32 m0, m0, 1024")
        E("  s_add_u32 s44, s44, 1024")
    E("L2_pq10:")
    E("  s_mul_i32 s44, s27, 13440")
    E("  s_mul_i32 s45, s33, 7168")
    E("  s_add_u32 s44, s44, s45")
    E("  s_add_u32 s35, s34, 21504")
    E("  s_add_u32 s45, s45, s35")
    E("  s_mov_b32 m0, s45")
    E("  s_nop 0")
    for j in range(7):
        E("  buffer_load_dwordx4 v8, s[28:31], s44 offen lds")
        E("  s_add_u32 m0, m0, 1024")
        E("  s_add_u32 s44, s44, 1024")
    WR = 196
    E("  s_mul_i32 s44, s27, 25600")
    E("  s_mul_i32 s45, s25, 102400")
    E("  s_add_u32 s44, s44, s45")
    E("  s_mul_i32 s45, s33, 13312")
    E("  s_add_u32 s44, s44, s45")
    for j in range(13):
        E(f"  buffer_load_dwordx4 {vr(WR+4*j,4)}, v8, s[12:15], s44 offen")
        E("  s_add_u32 s44, s44, 1024")
    srd(16, 42, 2048 * 1280)
    srd(20, 38, 2048 * 1280, H_OFF)
    srd(28, 38, WS_BYTES)
    RES, GA = 248, 194
    res_load([0, 512], 16, RES, GA)
    E("  v_and_b32 v3, 15, v0")
    E("  v_lshrrev_b32 v4, 4, v0")
    E("  v_cmp_eq_u32 s[46:47], 0, v4")
    E("  v_lshrrev_b32 v5, 2, v3")
    for q in range(4):
        E(f"  v_cmp_eq_u32 s[{48+2*q}:{49+2*q}], {q}, v5")
        E(f"  v_cmp_eq_u32 s[{56+2*q}:{57+2*q}], {q}, v4")
    E("  v_mul_u32_u24 v8, 80, v3")
    E("  v_add_u32 v8, s35, v8")
    E("  v_lshl_add_u32 v9, v4, 4, v8")
    E("  v_and_b32 v10, 3, v3")
    E("  v_mul_u32_u24 v10, 80, v10")
    E("  v_add_u32 v10, s35, v10")
    E("  v_add_u32 v10, 1280, v10")
    E("  v_lshl_add_u32 v11, v4, 4, v10")
    E("  v_mov_b32 v12, s35")
    E("  v_add_u32 v12, 1600, v12")
    E("  v_lshl_add_u32 v13, v4, 4, v12")
    E("  s_mul_i32 s40, s33, 10752")
    E("  s_add_u32 s40, s40, s34")
    E("  v_mul_u32_u24 v14, 336, v3")
    E("  v_add_u32 v14, s40, v14")
    E("  v_add_u32 v15, 32, v14")
    E("  v_lshl_add_u32 v14, v4, 3, v14")
    pf_enter("L2", 8, "s26")
    E("  s_waitcnt vmcnt(15)")
    stamp(2)
    E("  s_barrier")
    stamp(2)
    pads_on()
    KF, T = 32, 128
    for hh in range(8):
        o = hh * 1680
        tt0 = T + 24 * (hh % 2)
        E(f"  ds_read_b128 {vr(tt0,4)}, v9 offset:{o}")
        E(f"  ds_read_b128 {vr(tt0+4,4)}, v8 offset:{o+64}")
        E(f"  ds_read_b128 {vr(tt0+8,4)}, v11 offset:{o}")
        E(f"  ds_read_b128 {vr(tt0+12,4)}, v10 offset:{o+64}")
        E(f"  ds_read_b128 {vr(tt0+16,4)}, v13 offset:{o}")
        E(f"  ds_read_b128 {vr(tt0+20,4)}, v12 offset:{o+64}")
        if hh % 2 == 1:
            E("  s_waitcnt lgkmcnt(0)")
            for h2 in (hh - 1, hh):
                f = KF + 12 * h2
                tt0 = T + 24 * (h2 % 2)
                for tt in range(3):
                    for p in range(4):
                        E(f"  v_cvt_pk_bf16_f32 v{f+4*tt+p}, v{tt0+8*tt+2*p}, v{tt0+8*tt+2*p+1}")
                m = f"s[{48+2*(h2%4)}:{49+2*(h2%4)}]"
                for tt in range(3):
                    E(f"  v_cndmask_b32 v{f+4*tt+2}, 0, v{f+4*tt+2}, s[46:47]")
                    E(f"  v_cndmask_b32 v{f+4*tt+3}, 0, v{f+4*tt+3}, s[46:47]")
                for p in range(4):
                    E(f"  v_cndmask_b32 v{f+4+p}, 0, v{f+4+p}, {m}")
    stamp(2)
    OF = 128
    def of(u, ks): return OF + u * 20 + ks * 4
    PQa, PQb, N0, D, N1, RS = 168, 16, 176, 24, 184, 192
    E("  s_mov_b32 s45, 0x358637bd")
    def pqreads(hh):
        P = PQa if hh % 2 == 0 else PQb
        for u in range(2):
            E(f"  ds_read_b64 {vr(P+4*u,2)}, v14 offset:{u*16*336+40*hh}")
            E(f"  ds_read_b64 {vr(P+4*u+2,2)}, v15 offset:{u*16*336+40*hh}")
    pqreads(0)
    for hh in range(8):
        P = PQa if hh % 2 == 0 else PQb
        f = KF + 12 * hh
        if hh + 1 < 8:
            pqreads(hh + 1)
            E("  s_waitcnt lgkmcnt(4)")
        else:
            E("  s_waitcnt lgkmcnt(0)")
        for u in range(2):
            E(f"  v_mfma_f32_16x16x32_bf16 {vr(D+4*u,4)}, {vr(f+8,4)}, {vr(P+4*u,4)}, 0")
        for u in range(2):
            E(f"  v_mfma_f32_16x16x32_bf16 {vr(N0+4*u,4)}, {vr(f,4)}, {vr(P+4*u,4)}, 0")
        for u in range(2):
            c = "0" if hh % 4 == 0 else vr(N1 + 4 * u, 4)
            E(f"  v_mfma_f32_16x16x32_bf16 {vr(N1+4*u,4)}, {vr(f+4,4)}, {vr(P+4*u,4)}, {c}")
        E("  s_nop 4")
        for u in range(2):
            E(f"  v_add_f32 v{D+4*u}, s45, v{D+4*u}")
            E(f"  v_rcp_f32 v{D+4*u}, v{D+4*u}")
        E("  s_nop 1")
        for u in range(2):
            for r in range(4):
                E(f"  v_mul_f32 v{N0+4*u+r}, v{N0+4*u+r}, v{D+4*u}")
            dst = of(u, hh // 2) + 2 * (hh % 2)
            E(f"  v_cvt_pk_bf16_f32 v{dst}, v{N0+4*u}, v{N0+4*u+1}")
            E(f"  v_cvt_pk_bf16_f32 v{dst+1}, v{N0+4*u+2}, v{N0+4*u+3}")
            gm = f"s[{56+2*(hh%4)}:{57+2*(hh%4)}]"
            E(f"  v_cndmask_b32 v{RS+u}, v{RS+u}, v{D+4*u}, {gm}")
        if hh % 4 == 3:
            E("  s_nop 4")
            for u in range(2):
                for r in range(4):
                    E(f"  v_mul_f32 v{D+4*u+r}, v{N1+4*u+r}, v{RS+u}")
                dst = of(u, 4) + 2 * (hh // 4)
                E(f"  v_cvt_pk_bf16_f32 v{dst}, v{D+4*u}, v{D+4*u+1}")
                E(f"  v_cvt_pk_bf16_f32 v{dst+1}, v{D+4*u+2}, v{D+4*u+3}")
    stamp(2)
    E("  v_lshlrev_b32 v16, 4, v0")
    E("  s_mul_i32 s40, s33, 13312")
    E("  s_add_u32 s40, s40, s34")
    E("  v_add_u32 v16, s40, v16")
    E("  v_lshl_add_u32 v8, v4, 2, v5")
    E("  v_mul_u32_u24 v8, 160, v8")
    E("  v_and_b32 v6, 3, v3")
    E("  v_lshl_add_u32 v8, v6, 3, v8")
    E("  v_add_u32 v8, s34, v8")
    E("  v_mul_u32_u24 v9, 20, v4")
    E("  v_add_u32 v9, v9, v5")
    E("  v_add_u32 v9, 16, v9")
    E("  v_mul_u32_u24 v9, 160, v9")
    E("  v_lshl_add_u32 v9, v6, 3, v9")
    E("  v_add_u32 v9, s34, v9")
    E("  s_waitcnt vmcnt(2)")
    E("  s_barrier")
    for j in range(13):
        if j == 12:
            E("  s_cmp_eq_u32 s33, 1")
            E("  s_cbranch_scc1 L2_w12")
        E(f"  ds_write_b128 v16, {vr(WR+4*j,4)} offset:{1024*j}")
    E("L2_w12:")
    E("  s_waitcnt lgkmcnt(0)")
    E("  s_barrier")
    stamp(2)
    ACC = 32
    def accf(u, nt): return ACC + (u * 5 + nt) * 4
    WFS = [72, 92]
    def wreads(ks):
        W = WFS[ks % 2]
        r = []
        for nt in range(5):
            for h in range(2):
                if ks < 4:
                    r.append(f"  ds_read_b64_tr_b16 {vr(W+4*nt+2*h,2)}, v8 offset:{ks*6400+h*3200+nt*32}")
                else:
                    r.append(f"  ds_read_b64_tr_b16 {vr(W+4*nt+2*h,2)}, v9 offset:{h*12800+nt*32}")
        return r
    for r in wreads(0): E(r)
    for ks in range(5):
        W = WFS[ks % 2]
        E("  s_waitcnt lgkmcnt(0)")
        mfs = []
        for nt in range(5):
            for u in range(2):
                c = "0" if ks == 0 else vr(accf(u, nt), 4)
                mfs.append(f"  v_mfma_f32_16x16x32_bf16 {vr(accf(u,nt),4)}, {vr(W+4*nt,4)}, {vr(of(u,ks),4)}, {c}")
        interleave(mfs, wreads(ks + 1) if ks < 4 else [], per=1)
    stamp(2)
    E("  s_barrier")
    E("  s_mul_i32 s40, s33, 10752")
    E("  s_add_u32 s40, s40, s34")
    E("  v_mul_u32_u24 v5, 336, v3")
    E("  v_lshl_add_u32 v5, v4, 4, v5")
    E("  v_add_u32 v5, s40, v5")
    for u in range(2):
        for nt in range(5):
            E(f"  ds_write_b128 v5, {vr(accf(u,nt),4)} offset:{u*16*336+nt*64}")
    E("  s_waitcnt lgkmcnt(0)")
    E("  s_barrier")
    final_sum(2, [0, 512], RES, GA, 20, 40960, 32)
    E("  s_waitcnt lgkmcnt(0)")
    E("  s_barrier")
    E("  s_cmp_lg_u32 s26, 0")
    E("  s_cbranch_scc1 L2_nost")
    E("  v_mul_u32_u24 v6, 80, v0")
    E(f"  v_add_u32 v6, {K2_STAT}, v6")
    for j in range(5):
        E(f"  ds_read_b128 {vr(32+4*j,4)}, v6 offset:{16*j}")
    E("  s_waitcnt lgkmcnt(0)")
    for j in range(1, 10):
        E(f"  v_pk_add_f32 v[32:33], v[32:33], {vr(32+2*j,2)}")
    E("  s_lshl_b32 s40, s24, 12")
    E("  s_lshl_b32 s41, s25, 3")
    E("  s_add_u32 s40, s40, s41")
    E(f"  s_add_u32 s40, s40, {RS_OFF}")
    E("  v_lshlrev_b32 v3, 6, v0")
    E("  buffer_store_dwordx2 v[32:33], v3, s[28:31], s40 offen")
    E("L2_nost:")
    pads_off()
    stamp(2)
    stamp_flush(2, 36)
    rt_end(2)
    E("L2_done:")
    E("  s_endpgm")

def main():
    N = ["k1_qkv_kernel", "k2_attn_kernel", "k3_ffn1_kernel", "k4_ffn2_kernel"]
    hdr = open('cdna_kernels/' + NAME + '.s.ref').read().split("; Override")[0]
    E(hdr.rstrip())
    lds = [163840, 163840, 163840, 4 * 36864]
    blk = [768, 512, 768, 768]
    for i, n in enumerate(N):
        E(f"; @launch kernel={n} grid=(256,1,1) block=({blk[i]},1,1) lds={lds[i]}")
    E('.amdgcn_target "amdgcn-amd-amdhsa--gfx950"')
    E(".text")
    st = len(out); ln_gemm(N[0], 1); resolve_pads("L1", st)
    st = len(out); k2(N[1]); resolve_pads("L2", st)
    st = len(out); ln_gemm(N[2], 3); resolve_pads("L3", st)
    st = len(out); k4(N[3]); resolve_pads("L4", st)
    E('.section .rodata,"a"')
    E(kernel_desc(N[0]))
    E(kernel_desc(N[1], vgpr=256))
    E(kernel_desc(N[2]))
    E(kernel_desc(N[3]))
    open(sys.argv[1], 'w').write("\n".join(out) + "\n")
main()
```

```python
import sys, os
NAME = "sequential_preLN__linear_attn_block__dense_activation_silu__prompt"
PQ_OFF = 0
KV_OFF = 0x280000
H_OFF = 0x290000
H1_OFF = 0x510000
RS_OFF = H1_OFF + 2048 * 1728 * 2
W1T_OFF = RS_OFF + 2048 * 64
W2T_OFF = W1T_OFF + 16 * 163840
WOT_OFF = W2T_OFF + 8 * 276480
PQT_OFF = WOT_OFF + 8 * 102400
CSP_OFF = PQT_OFF + 128 * 21504
WS_BYTES = CSP_OFF + 16 * 16 * 512
out = []
PADN = int(os.environ.get("PADN", "0"))
pad = {"on": False, "cnt": 0, "masked": False, "n": 0}
def E(s=""):
    out.append(s)
    t = s.strip()
    if not pad["on"] or not t or t.endswith(":") or t.startswith("."): return
    if t.startswith("s_mov_b64 exec") or "saveexec" in t:
        pad["masked"] = not t.endswith("exec, -1")
    pad["cnt"] += 1
    if PADN and pad["cnt"] >= PADN and not pad["masked"] and t.startswith(("v_", "ds_")) and not t.startswith(("v_cmp", "v_readfirst")):
        out.append(f"@PAD {pad['n']}")
        pad["n"] += 1
        pad["cnt"] = 0
def pads_on(): pad["on"] = True; pad["cnt"] = 0; pad["masked"] = False
def pads_off(): pad["on"] = False
def pf_enter(L, nw, wave_sreg, wbase=0):
    out.append(f"@PFENTER {L} {nw} {wave_sreg} {wbase}")
    E(f"{L}_PFRET:")
    E("  s_mov_b64 exec, -1")
def resolve_pads(L, start):
    n = pad["n"]
    ent = [i for i in range(start, len(out)) if out[i].startswith("@PFENTER")]
    nw = int(out[ent[0]].split()[2]) if ent else 1
    starts = [k * n // nw for k in range(nw)]
    sset = set(starts[1:])
    for i in range(start, len(out)):
        if out[i].startswith("@PAD"):
            k = int(out[i].split()[1])
            nxt = f"{L}_PFRET" if (k + 1 == n or (k + 1) in sset) else f"{L}_P{k+1}"
            out[i] = f"{L}_P{k}:\n  s_cbranch_execz {nxt}"
        elif out[i].startswith("@PFENTER"):
            _, L_, nw_, sreg, wb = out[i].split()
            txt = []
            if n:
                txt.append("  s_mov_b64 exec, 0")
                for k in range(nw):
                    txt.append(f"  s_cmp_eq_u32 {sreg}, {int(wb)+k}")
                    txt.append(f"  s_cbranch_scc1 {L}_P{starts[k]}")
            out[i] = "\n".join(txt)
    pad["n"] = 0; pad["on"] = False
def vr(b, n=1):
    return f"v{b}" if n == 1 else f"v[{b}:{b+n-1}]"
def sr(b, n=1):
    return f"s{b}" if n == 1 else f"s[{b}:{b+n-1}]"
def srd(dst, lo, nbytes, add=0):
    if add:
        E(f"  s_add_u32 s{dst}, s{lo}, {add}")
        E(f"  s_addc_u32 s{dst+1}, s{lo+1}, 0")
    else:
        E(f"  s_mov_b32 s{dst}, s{lo}")
        E(f"  s_mov_b32 s{dst+1}, s{lo+1}")
    E(f"  s_mov_b32 s{dst+2}, {nbytes}")
    E(f"  s_mov_b32 s{dst+3}, 0x00020000")
STAMP = os.environ.get("STAMP", "")
stamp_n = [0]
SB0 = 64 if STAMP == "2" else 60
def stamp(which):
    if STAMP != str(which): return
    i = stamp_n[0]; stamp_n[0] += 1
    E(f"  s_memtime s[{SB0+2*i}:{SB0+1+2*i}]")
def stamp_flush(which, dbg_lo, wave=0):
    if STAMP != str(which): return
    n = stamp_n[0]
    E("  s_waitcnt lgkmcnt(0) vmcnt(0)")
    E("  s_mov_b64 exec, -1")
    E(f"  s_cmp_lg_u32 s2, {os.environ.get('STAMPWG','0')}")
    E(f"  s_cbranch_scc1 LS{which}_skip")
    E("  s_cmp_lg_u32 s26, 0")
    E(f"  s_cbranch_scc1 LS{which}_skip")
    E(f"  s_mov_b32 s92, s{dbg_lo}")
    E(f"  s_mov_b32 s93, s{dbg_lo+1}")
    E("  s_mov_b32 s94, 256")
    E("  s_mov_b32 s95, 0x00020000")
    E("  s_mov_b64 exec, 1")
    E("  v_mov_b32 v1, 0")
    for i in range(n):
        E(f"  s_sub_u32 s58, s{SB0+2*i}, s{SB0}")
        E("  v_mov_b32 v2, s58")
        E(f"  buffer_store_dword v2, v1, s[92:95], 0 offen offset:{128+4*i}")
    E(f"LS{which}_skip:")
    stamp_n[0] = 0
RT = os.environ.get("RT")
def kernel_head(name):
    E(f".globl {name}")
    E(".p2align 8")
    E(f".type {name},@function")
    E(f"{name}:")
    if RT: E("  s_memrealtime s[98:99]")
def rt_end(which):
    if not RT: return
    E("  s_mov_b64 exec, -1")
    E("  s_waitcnt vmcnt(0) lgkmcnt(0)")
    E("  s_memrealtime s[100:101]")
    E("  s_cmp_lg_u32 s26, 0")
    E(f"  s_cbranch_scc1 LRT{which}")
    E(f"  s_add_u32 s92, s38, {(48<<20) + which*4096}")
    E("  s_addc_u32 s93, s39, 0")
    E("  s_mov_b32 s94, 4096")
    E("  s_mov_b32 s95, 0x00020000")
    E("  s_waitcnt lgkmcnt(0)")
    E("  s_mov_b64 exec, 1")
    E("  v_mov_b32 v2, s98")
    E("  v_mov_b32 v3, s100")
    E("  s_lshl_b32 s58, s2, 3")
    E("  v_mov_b32 v1, s58")
    E("  buffer_store_dwordx2 v[2:3], v1, s[92:95], 0 offen")
    E(f"LRT{which}:")
def kernel_desc(name, vgpr=168, sgpr=(102 if os.environ.get("RT") else 96), accoff=None):
    return f""".p2align 6
.amdhsa_kernel {name}
  .amdhsa_next_free_vgpr {vgpr}
  .amdhsa_next_free_sgpr {sgpr}
  .amdhsa_accum_offset {accoff or (vgpr+3)//4*4}
  .amdhsa_group_segment_fixed_size 0
  .amdhsa_kernarg_size 72
  .amdhsa_user_sgpr_count 2
  .amdhsa_user_sgpr_kernarg_segment_ptr 1
  .amdhsa_system_sgpr_workgroup_id_x 1
.end_amdhsa_kernel"""

def interleave(mf, other, per=int(os.environ.get("PER","1"))):
    other = list(other)
    for m in mf:
        E(m)
        for _ in range(per):
            if other: E(other.pop(0))
    for o in other: E(o)

NS = 4
SLOT = 32768
NST = 10
AUX = NS * SLOT
A_SUM, A_SQ, A_CS = AUX, AUX + 512, AUX + 1024
A_MEAN, A_RSTD = AUX + 2048, AUX + 2560
A_KV = AUX + 4096
A_CP = AUX + 12288
U2 = 62

V_RA, V_RB = 2, 4
V_T = 8
V_X, V_Y, V_ACC, V_E = 16, 48, 80, 144
def acc(mt, t): return V_ACC + (mt * 4 + t) * 4

def ln_gemm(name, which):
    k1 = which == 1
    L = f"L{which}"
    ldb = 3840 if k1 else 3456
    swapped = [False, False, False, True] if k1 else [True] * 4
    t0, t1, t2, t3, t4 = V_T, V_T + 1, V_T + 2, V_T + 3, V_T + 4
    kernel_head(name)
    E("  s_cmp_ge_u32 s2, 256")
    E(f"  s_cbranch_scc1 {L}_done")
    E("  s_load_dwordx2 s[4:5], s[0:1], 0" if k1 else "  s_load_dwordx2 s[4:5], s[0:1], 64")
    E(f"  s_load_dwordx2 s[6:7], s[0:1], {8 if k1 else 32}")
    E("  s_load_dwordx4 s[36:39], s[0:1], 56")
    stamp(which)
    E("  s_and_b32 s40, s2, 7")
    E("  s_lshr_b32 s41, s2, 3")
    E("  s_lshr_b32 s24, s40, 1")
    E("  s_lshl_b32 s24, s24, 2")
    E("  s_and_b32 s42, s41, 3")
    E("  s_add_u32 s24, s24, s42")
    E("  s_and_b32 s25, s40, 1")
    E("  s_lshl_b32 s25, s25, 3")
    E("  s_lshr_b32 s42, s41, 2")
    E("  s_add_u32 s25, s25, s42")
    E("  v_lshrrev_b32 v1, 6, v0")
    E("  v_and_b32 v0, 63, v0")
    E("  v_readfirstlane_b32 s26, v1")
    E("  s_waitcnt lgkmcnt(0)")
    if k1: srd(8, 4, 2048 * 1280)
    else: srd(8, 4, 2048 * 1280, H_OFF)
    if k1: srd(12, 6, 640 * ldb)
    else: srd(12, 4, 16 * 163840, W1T_OFF)
    srd(16, 38, WS_BYTES)
    srd(20, 36, 256)
    E("  s_cmp_ge_u32 s26, 4")
    E(f"  s_cbranch_scc1 {L}_loader")
    E("  s_lshr_b32 s27, s26, 1")
    E("  s_and_b32 s28, s26, 1")
    E(f"  v_and_b32 v{t0}, 15, v0")
    E(f"  v_lshrrev_b32 v{t1}, 4, v0")
    E(f"  v_and_b32 v{t2}, 7, v{t0}")
    E(f"  v_xor_b32 v{t2}, v{t2}, v{t1}")
    E(f"  v_lshlrev_b32 v{t2}, 4, v{t2}")
    E(f"  v_lshl_add_u32 v{t2}, v{t0}, 7, v{t2}")
    E("  s_lshl_b32 s40, s27, 13")
    E(f"  v_add_u32 v{V_RA}, s40, v{t2}")
    E(f"  v_xor_b32 v{V_RA+1}, 64, v{V_RA}")
    E(f"  v_lshrrev_b32 v{t2}, 2, v{t0}")
    E(f"  v_and_b32 v{t3}, 1, v{t1}")
    E(f"  v_lshl_add_u32 v{t3}, v{t3}, 2, v{t2}")
    E(f"  v_lshl_add_u32 v{t2}, v{t1}, 3, v{t2}")
    E(f"  v_lshlrev_b32 v{t2}, 8, v{t2}")
    E(f"  v_add_u32 v{t2}, 16384, v{t2}")
    E(f"  v_and_b32 v{t4}, 3, v{t0}")
    for t in range(4):
        u = V_E
        if k1:
            E("  s_mul_i32 s40, s28, 5")
            if t == 0:
                E(f"  v_add_u32 v{u}, s40, v{t4}")
            elif t == 1:
                E("  s_add_u32 s40, s40, 10")
                E(f"  v_add_u32 v{u}, s40, v{t4}")
            elif t == 3:
                E("  s_lshl_b32 s40, s28, 2")
                E("  s_add_u32 s40, s40, 20")
                E(f"  v_add_u32 v{u}, s40, v{t4}")
            else:
                E(f"  v_mul_u32_u24 v{u}, 10, v{t4}")
                E("  s_add_u32 s40, s40, 4")
                E(f"  v_add_u32 v{u}, s40, v{u}")
                E(f"  v_add_u32 v{u+1}, 26, v{t4}")
                E(f"  v_cmp_gt_u32 vcc, 2, v{t4}")
                E("  s_nop 1")
                E(f"  v_cndmask_b32 v{u}, v{u+1}, v{u}, vcc")
        else:
            E("  s_lshl_b32 s40, s28, 4")
            E(f"  s_add_u32 s40, s40, {4*t}")
            E(f"  v_add_u32 v{u}, s40, v{t4}")
        E(f"  v_lshrrev_b32 v{u+1}, 2, v{u}")
        E(f"  v_xor_b32 v{u+1}, v{u+1}, v{t3}")
        E(f"  v_lshl_add_u32 v{u+1}, v{u+1}, 5, v{t2}")
        E(f"  v_and_b32 v{u}, 3, v{u}")
        E(f"  v_lshl_add_u32 v{V_RB+t}, v{u}, 3, v{u+1}")
    for i in range(64):
        E(f"  v_mov_b32 v{V_ACC+i}, 0")
    E(f"  s_mov_b32 s52, {SLOT}")
    E(f"  v_lshl_or_b32 v{t3}, s26, 6, v0")
    if k1 and not os.environ.get("NOPF"):
        a, b, c = V_X, V_X + 1, V_X + 2
        PFR = [165, 166, 167, 15]
        E("  s_movk_i32 s41, 6554")
        E(f"  v_mul_u32_u24 v{a}, s41, v{t3}")
        E(f"  v_lshrrev_b32 v{a}, 16, v{a}")
        E(f"  v_mul_u32_u24 v{b}, 10, v{a}")
        E(f"  v_sub_u32 v{b}, v{t3}, v{b}")
        E("  s_movk_i32 s41, 10923")
        E("  s_and_b32 s40, s25, 7")
        E("  s_lshl_b32 s40, s40, 4")
        E("  s_lshl_b32 s42, s24, 7")
        E("  s_add_u32 s40, s40, s42")
        E(f"  v_add_u32 v{a}, s40, v{a}")
        E(f"  v_mul_u32_u24 v{a}, 1280, v{a}")
        E(f"  v_lshl_add_u32 v{a}, v{b}, 7, v{a}")
        E(f"  v_cmp_gt_u32 vcc, 160, v{t3}")
        E(f"  v_cndmask_b32 v164, -1, v{a}, vcc")
        E("  s_and_b32 s40, s24, 3")
        E("  s_mul_i32 s40, s40, 160")
        E("  s_mul_i32 s42, s25, 80")
        for r in range(4):
            E(f"  v_add_u32 v{c}, {256*r}, v{t3}")
            E(f"  v_mul_u32_u24 v{a}, s41, v{c}")
            E(f"  v_lshrrev_b32 v{a}, 16, v{a}")
            E(f"  v_mul_u32_u24 v{b}, 6, v{a}")
            E(f"  v_sub_u32 v{b}, v{c}, v{b}")
            E(f"  v_add_u32 v{a}, s40, v{a}")
            E(f"  v_mul_u32_u24 v{a}, 3840, v{a}")
            E(f"  v_add_u32 v{a}, s42, v{a}")
            E(f"  v_lshrrev_b32 v{V_X+3}, 1, v{b}")
            E(f"  v_add_u32 v{V_X+3}, 1, v{V_X+3}")
            E(f"  v_cmp_eq_u32 vcc, 3, v{V_X+3}")
            E(f"  v_cndmask_b32 v{V_X+3}, v{V_X+3}, 0, vcc")
            E(f"  v_mul_u32_u24 v{V_X+3}, 1280, v{V_X+3}")
            E(f"  v_add_u32 v{a}, v{a}, v{V_X+3}")
            E(f"  v_and_b32 v{b}, 1, v{b}")
            E(f"  v_mul_u32_u24 v{b}, 76, v{b}")
            E(f"  v_add_u32 v{a}, v{a}, v{b}")
            E(f"  v_cmp_gt_u32 vcc, 960, v{c}")
            E(f"  v_cndmask_b32 v{PFR[r]}, -1, v{a}, vcc")
    if k1:
        for i in range(4):
            E(f"  v_mov_b32 v{V_E+i}, 0")
        E(f"  v_lshlrev_b32 v{t4}, 4, v{t3}")
        E(f"  v_add_u32 v{t2}, {A_KV}, v{t4}")
        E(f"  ds_write_b128 v{t2}, {vr(V_E,4)}")
        E("  s_cmp_ge_u32 s2, 16")
        E(f"  s_cbranch_scc1 {L}_nozero")
        E("  s_mul_i32 s40, s2, 3360")
        E(f"  s_add_u32 s40, s40, {KV_OFF}")
        E(f"  v_cmp_gt_u32 vcc, 210, v{t3}")
        E("  s_and_saveexec_b64 s[46:47], vcc")
        E(f"  buffer_store_dwordx4 {vr(V_E,4)}, v{t4}, s[16:19], s40 offen sc0 sc1")
        E("  s_mov_b64 exec, s[46:47]")
        E("  s_waitcnt vmcnt(0)")
        E("  s_lshl_b32 s40, s2, 2")
        E(f"  v_mov_b32 v{t2}, s40")
        E(f"  v_mov_b32 v{t4}, 1")
        E("  s_mov_b64 exec, 1")
        E(f"  buffer_atomic_add v{t4}, v{t2}, s[20:23], 0 offen sc1")
        E("  s_mov_b64 exec, -1")
        E(f"{L}_nozero:")
    else:
        E("  s_cmp_ge_u32 s26, 2")
        E(f"  s_cbranch_scc1 {L}_nors")
        E("  s_lshl_b32 s40, s24, 13")
        E(f"  s_add_u32 s40, s40, {RS_OFF}")
        E(f"  v_lshlrev_b32 v{t4}, 6, v{t3}")
        for i in range(4):
            E(f"  buffer_load_dwordx4 {vr(V_X+4*i,4)}, v{t4}, s[16:19], s40 offen offset:{16*i}")
        E("  s_waitcnt vmcnt(0)")
        for i in range(1, 8):
            E(f"  v_add_f32 v{V_X}, v{V_X}, v{V_X+2*i}")
            E(f"  v_add_f32 v{V_X+1}, v{V_X+1}, v{V_X+2*i+1}")
        fin_stats(V_X, V_X + 1, t3, t4)
        E(f"  s_branch {L}_nors2")
        E(f"{L}_nors:")
        E("  s_lshl_b32 s40, s25, 13")
        E(f"  s_add_u32 s40, s40, {CSP_OFF-512}")
        E(f"  v_lshlrev_b32 v{t4}, 2, v{t3}")
        for i in range(16):
            E(f"  buffer_load_dword v{V_X+i}, v{t4}, s[16:19], s40 offen offset:{512*i if 512*i < 4096 else 0}" if i < 8 else f"  buffer_load_dword v{V_X+i}, v{t4}, s[16:19], s41 offen offset:{512*(i-8)}")
            if i == 0: E("  s_add_u32 s41, s40, 4096")
        E("  s_waitcnt vmcnt(0)")
        for i in range(1, 16):
            E(f"  v_add_f32 v{V_X}, v{V_X}, v{V_X+i}")
        E(f"  v_add_u32 v{t4}, {A_CS-512}, v{t4}")
        E(f"  ds_write_b32 v{t4}, v{V_X}")
        E(f"{L}_nors2:")
    E("  s_waitcnt lgkmcnt(0)")
    stamp(which)
    PFE = os.environ.get("PFE", "late")
    def pf_issue():
        E("  buffer_load_dword v164, v164, s[8:11], 0 offen")
        for r in (165, 166, 167, 15):
            E(f"  buffer_load_dword v{r}, v{r}, s[12:15], 0 offen")
    if k1 and PFE == "early": pf_issue()
    E("  s_barrier")
    if k1 and PFE == "late": pf_issue()
    stamp(which)
    def rd(base, kk):
        r = []
        for mt in range(4):
            r.append(f"  ds_read_b128 {vr(base+mt*4,4)}, v{V_RA+kk} offset:{mt*2048}")
        for t in range(4):
            for h in range(2):
                r.append(f"  ds_read_b64_tr_b16 {vr(base+16+t*4+h*2,2)}, v{V_RB+t} offset:{kk*8192+h*1024}")
        return r
    def mf(base):
        seq = []
        for mt in range(4):
            for t in range(4):
                a, b = vr(base + mt * 4, 4), vr(base + 16 + t * 4, 4)
                if swapped[t]: a, b = b, a
                seq.append(f"  v_mfma_f32_16x16x32_bf16 {vr(acc(mt,t),4)}, {a}, {b}, {vr(acc(mt,t),4)}")
        return seq
    for r in rd(V_X, 0): E(r)
    E("  s_mov_b32 s29, 0")
    E("  s_mov_b32 s30, 0")
    ST = V_E
    if k1:
        for i in range(16): E(f"  v_mov_b32 v{ST+i}, 0")
        for i in range(4): E(f"  v_mov_b32 v{ST+16+i}, 0x3f803f80")
        E(f"  v_and_b32 v{t0}, 15, v0")
        E(f"  v_cmp_lt_u32 s[48:49], 7, v{t0}")
        E("  s_cmp_eq_u32 s26, 1")
        E(f"  s_cbranch_scc1 {L}_loop1")
        E("  s_cmp_eq_u32 s26, 2")
        E(f"  s_cbranch_scc1 {L}_loop2")
        E("  s_cmp_eq_u32 s26, 3")
        E(f"  s_cbranch_scc1 {L}_loop3")
    def mfs(base, WM, WN):
        seq = mf(base)
        if not k1: return seq
        pre = []
        if WN == 1:
            pre = [f"  v_cndmask_b32 v{base+16+8+r}, v{base+16+8+r}, v{ST+16}, s[48:49]" for r in range(4)]
        ex = []
        for q in range(2):
            mt = 2 * WN + q
            ex.append(f"  v_mfma_f32_16x16x32_bf16 {vr(ST+4*q,4)}, {vr(base+4*mt,4)}, {vr(base+4*mt,4)}, {vr(ST+4*q,4)}")
            t = 2 * WM + q
            ex.append(None if False else (t, q))
        out_ = pre + seq[:8]
        for q in range(2):
            mt = 2 * WN + q
            out_.append(f"  v_mfma_f32_16x16x32_bf16 {vr(ST+4*q,4)}, {vr(base+4*mt,4)}, {vr(base+4*mt,4)}, {vr(ST+4*q,4)}")
        out_ += seq[8:]
        for q in range(2):
            t = 2 * WM + q
            out_.append(f"  v_mfma_f32_16x16x32_bf16 {vr(ST+8+4*q,4)}, {vr(ST+16,4)}, {vr(base+16+4*t,4)}, {vr(ST+8+4*q,4)}")
        return out_
    for w in range(4 if k1 else 1):
        WM, WN = w >> 1, w & 1
        E(f"{L}_loop{w}:")
        E(f"  s_add_u32 s30, s30, {SLOT}")
        E(f"  s_cmp_eq_u32 s30, {NS*SLOT}")
        E(f"  s_cselect_b32 s40, {-(NS-1)*SLOT}, s52")
        E("  s_cselect_b32 s30, 0, s30")
        E("  s_waitcnt lgkmcnt(0)")
        adds = [f"  v_add_u32 v{r}, s40, v{r}" for r in (V_RA, V_RA + 1, V_RB, V_RB + 1, V_RB + 2, V_RB + 3)]
        interleave(mfs(V_X, WM, WN), rd(V_Y, 1) + adds)
        E(f"  s_cmp_eq_u32 s29, {NST-1}")
        E(f"  s_cbranch_scc1 {L}_last{w}")
        E("  s_add_u32 s29, s29, 1")
        E("  s_waitcnt lgkmcnt(0)")
        E("  s_barrier")
        interleave(mfs(V_Y, WM, WN), rd(V_X, 0))
        E(f"  s_branch {L}_loop{w}")
        E(f"{L}_last{w}:")
        E("  s_waitcnt lgkmcnt(0)")
        for m in mfs(V_Y, WM, WN): E(m)
        if k1:
            E(f"  v_lshrrev_b32 v{t1}, 4, v0")
            E(f"  v_lshrrev_b32 v{t2}, 2, v{t0}")
            E(f"  v_cmp_eq_u32 s[50:51], v{t1}, v{t2}")
            E(f"  v_and_b32 v{t2}, 3, v{t0}")
            E("  s_nop 7")
            for q in range(2):
                E(f"  v_mov_b32 v{t3}, v{ST+4*q}")
                for r in range(1, 4):
                    E(f"  v_cmp_eq_u32 vcc, {r}, v{t2}")
                    E("  s_nop 1")
                    E(f"  v_cndmask_b32 v{t3}, v{t3}, v{ST+4*q+r}, vcc")
                E(f"  v_lshlrev_b32 v{t4}, 2, v{t0}")
                E(f"  v_add_u32 v{t4}, {A_SQ + (64*WM + 16*(2*WN+q))*4}, v{t4}")
                E("  s_mov_b64 exec, s[50:51]")
                E(f"  ds_write_b32 v{t4}, v{t3}")
                E("  s_mov_b64 exec, -1")
            for q in range(2):
                t = 2 * WM + q
                if t == 0: E(f"  v_lshlrev_b32 v{t4}, 2, v{t0}"); off = (20*WN)*4
                elif t == 1: E(f"  v_lshlrev_b32 v{t4}, 2, v{t0}"); off = (40+20*WN)*4
                elif t == 3: E(f"  v_lshlrev_b32 v{t4}, 2, v{t0}"); off = (80+16*WN)*4
                else:
                    E(f"  v_lshlrev_b32 v{t4}, 2, v{t0}")
                    E(f"  v_add_u32 v{t3}, {(20*WN+16)*4}, v{t4}")
                    E(f"  v_add_u32 v{t1}, {(52+20*WN)*4}, v{t4}")
                    E(f"  v_cmp_gt_u32 vcc, 4, v{t0}")
                    E("  s_nop 1")
                    E(f"  v_cndmask_b32 v{t3}, v{t1}, v{t3}, vcc")
                    E(f"  v_add_u32 v{t1}, {104*4}, v{t4}")
                    E(f"  v_cmp_gt_u32 vcc, 8, v{t0}")
                    E("  s_nop 1")
                    E(f"  v_cndmask_b32 v{t4}, v{t1}, v{t3}, vcc")
                    off = 0
                E(f"  v_add_u32 v{t4}, {A_CS+off}, v{t4}")
                if t == 2 and WN == 1:
                    E("  s_mov_b64 exec, 0xff")
                else:
                    E("  s_mov_b64 exec, 0xffff")
                E(f"  ds_write_b32 v{t4}, v{ST+8+4*q}")
                E("  s_mov_b64 exec, -1")
            if WN == 1:
                E(f"  v_lshrrev_b32 v{t1}, 4, v0")
                E(f"  v_lshlrev_b32 v{t4}, 4, v{t1}")
                E(f"  v_add_u32 v{t4}, {A_SUM + 64*WM*4}, v{t4}")
                E("  s_mov_b32 s50, 0x01000100")
                E("  s_mov_b32 s51, 0x01000100")
                E("  s_mov_b64 exec, s[50:51]")
                for mt in range(4):
                    E(f"  ds_write_b128 v{t4}, {vr(acc(mt,2),4)} offset:{64*mt}")
                E("  s_mov_b64 exec, -1")
            E(f"  s_branch {L}_fins")
    if not k1: stamp(which)
    if k1:
        E(f"{L}_fins:")
        stamp(which)
        E("  s_waitcnt lgkmcnt(0)")
        E("  s_barrier")
        E("  s_cmp_ge_u32 s26, 2")
        E(f"  s_cbranch_scc1 {L}_fb")
        E(f"  v_lshl_or_b32 v{t3}, s26, 6, v0")
        E(f"  v_lshlrev_b32 v{t4}, 2, v{t3}")
        E(f"  v_add_u32 v{t4}, {A_SUM}, v{t4}")
        E(f"  ds_read_b32 v{V_X}, v{t4}")
        E(f"  ds_read_b32 v{V_X+1}, v{t4} offset:512")
        E("  s_waitcnt lgkmcnt(0)")
        fin_stats(V_X, V_X + 1, t3, t4)
        E("  s_waitcnt lgkmcnt(0)")
        E(f"{L}_fb:")
        E("  s_barrier")
    stamp(which)
    E("  s_mov_b32 s45, 0x3fb8aa3b")
    pads_on()
    if k1: k1_epilogue()
    else: k3_epilogue()
    pads_off()
    stamp(which)
    stamp_flush(which, 36)
    rt_end(which)
    E(f"  s_branch {L}_done")
    E(f"{L}_loader:")
    E("  s_sub_u32 s27, s26, 4")
    LA, LB = 2, 4
    E(f"  v_lshrrev_b32 v{t0}, 3, v0")
    E(f"  v_and_b32 v{t1}, 7, v0")
    E(f"  v_xor_b32 v{t1}, v{t1}, v{t0}")
    E(f"  v_lshlrev_b32 v{t1}, 4, v{t1}")
    E("  s_lshl_b32 s40, s24, 7")
    E("  s_lshl_b32 s41, s27, 4")
    E("  s_add_u32 s40, s40, s41")
    E(f"  v_add_u32 v{t0}, s40, v{t0}")
    E("  s_movk_i32 s41, 1280")
    E(f"  v_mad_u32_u24 v{LA}, v{t0}, s41, v{t1}")
    E(f"  v_add_u32 v{LA+1}, {8*1280-1024}, v{LA}")
    E(f"  v_lshrrev_b32 v{t0}, 4, v0")
    E(f"  v_and_b32 v{t1}, 15, v0")
    E("  s_lshl_b32 s40, s27, 3")
    E(f"  v_add_u32 v{t4}, s40, v{t0}")
    E("  s_and_b32 s40, s27, 1")
    E("  s_lshl_b32 s40, s40, 2")
    E(f"  v_add_u32 v{t0}, s40, v{t0}")
    E(f"  v_lshrrev_b32 v{t2}, 1, v{t1}")
    E(f"  v_xor_b32 v{t2}, v{t2}, v{t0}")
    E(f"  v_lshlrev_b32 v{t2}, 1, v{t2}")
    E(f"  v_and_b32 v{t3}, 1, v{t1}")
    E(f"  v_or_b32 v{t2}, v{t2}, v{t3}")
    if k1:
        E(f"  v_min_u32 v{t2}, 14, v{t2}")
        E(f"  v_lshlrev_b32 v{t3}, 4, v{t2}")
        E(f"  v_add_u32 v20, 1280, v{t3}")
        E(f"  v_add_u32 v21, {2560-80}, v{t3}")
        E(f"  v_subrev_u32 v22, 160, v{t3}")
        E(f"  v_cmp_gt_u32 vcc, 5, v{t2}")
        E("  s_nop 1")
        E("  v_cndmask_b32 v21, v21, v20, vcc")
        E(f"  v_cmp_gt_u32 vcc, 10, v{t2}")
        E("  s_nop 1")
        E(f"  v_cndmask_b32 v{t3}, v22, v21, vcc")
        E("  s_mul_i32 s42, s25, 80")
    else:
        E(f"  v_lshlrev_b32 v{t3}, 4, v{t2}")
        E("  s_mul_i32 s42, s25, 224")
    if k1:
        E(f"  v_add_u32 v{t3}, s42, v{t3}")
        E(f"  s_movk_i32 s41, {ldb}")
        E(f"  v_mad_u32_u24 v{LB}, v{t4}, s41, v{t3}")
        E(f"  v_add_u32 v{LB+1}, {4*ldb-1024}, v{LB}")
    else:
        E("  s_mul_i32 s42, s25, 163840")
        E("  s_lshl_b32 s41, s27, 11")
        E("  s_add_u32 s42, s42, s41")
        E(f"  v_lshlrev_b32 v{LB}, 4, v0")
        E(f"  v_add_u32 v{LB}, s42, v{LB}")
        E(f"  v_mov_b32 v{LB+1}, v{LB}")
    E("  s_lshl_b32 s34, s27, 11")
    E("  s_mov_b32 s31, 0")
    E("  s_mov_b32 s32, 0")
    E("  s_mov_b32 s33, 0")
    ROT = k1 and not os.environ.get("NOROT")
    if ROT:
        E("  s_mul_i32 s40, s24, 3")
        E("  s_add_u32 s40, s40, s25")
        E("  s_mul_i32 s41, s40, 205")
        E("  s_lshr_b32 s41, s41, 11")
        E("  s_mul_i32 s41, s41, 10")
        E("  s_sub_u32 s40, s40, s41")
        E("  s_lshl_b32 s32, s40, 7")
        E(f"  s_mul_i32 s33, s40, {64*ldb}")
    def dma_stage():
        E("  s_add_u32 s35, s31, s34")
        E("  s_mov_b32 m0, s35")
        E("  s_add_u32 s35, s35, 16384")
        for j in range(2):
            E(f"  buffer_load_dwordx4 v{LA+j}, s[8:11], s32 offen offset:{j*1024} lds")
        E("  s_mov_b32 m0, s35")
        E("  s_add_u32 s32, s32, 128")
        for j in range(2):
            E(f"  buffer_load_dwordx4 v{LB+j}, s[12:15], s33 offen offset:{j*1024} lds")
        E(f"  s_add_u32 s33, s33, {64*ldb if k1 else 16384}")
        if ROT:
            E("  s_cmp_eq_u32 s32, 1280")
            E("  s_cselect_b32 s32, 0, s32")
            E("  s_cselect_b32 s33, 0, s33")
        E(f"  s_add_u32 s31, s31, {SLOT}")
        E(f"  s_cmp_eq_u32 s31, {NS*SLOT}")
        E("  s_cselect_b32 s31, 0, s31")
    for s in range(NS):
        dma_stage()
    pf_enter(L, 8, "s27")
    E(f"  s_waitcnt vmcnt({4*(NS-1)})")
    E("  s_barrier")
    NX = 0
    for sv in range(NST - 1):
        issued = min(NST - 1, sv + NS - 1)
        extra = NX if sv > NST - NS else 0
        E(f"  s_waitcnt vmcnt({4*(issued-(sv+1)) + NX})")
        E("  s_barrier")
        if sv + NS < NST:
            dma_stage()
        if k1 and sv + NS == NST - 1:
            NX = relayout_loads()
    if k1:
        relayout_finish()
    E(f"{L}_done:")
    E("  s_endpgm")

RL_SA, RL_DA, RL_DT = 16, 24, 32
def relayout_loads():
    E("  s_load_dwordx2 s[64:65], s[0:1], 32")
    E("  s_load_dwordx2 s[66:67], s[0:1], 40")
    E("  s_load_dwordx2 s[68:69], s[0:1], 16")
    SA_, DA_, DT = RL_SA, RL_DA, RL_DT
    a, b, c, d, tid = 60, 61, 62, 63, 59
    E(f"  v_lshl_or_b32 v{tid}, s27, 6, v0")
    for i in range(20): E(f"  v_mov_b32 v{DT+i}, 0")
    E("  s_lshr_b32 s40, s2, 4")
    E("  s_and_b32 s41, s2, 15")
    E("  s_mul_i32 s41, s41, 40")
    E("  s_mul_i32 s42, s40, 224")
    E("  s_movk_i32 s43, 3456")
    for r in range(2):
        E(f"  v_add_u32 v{a}, {512*r}, v{tid}")
        E(f"  v_lshrrev_b32 v{b}, 4, v{a}")
        E(f"  v_add_u32 v{b}, s41, v{b}")
        E(f"  v_and_b32 v{c}, 15, v{a}")
        E(f"  v_bfe_u32 v{d}, v{b}, 3, 1")
        E(f"  v_lshlrev_b32 v{d}, 2, v{d}")
        E(f"  v_and_or_b32 v{d}, v{b}, 3, v{d}")
        E(f"  v_lshrrev_b32 v{DA_+r}, 1, v{c}")
        E(f"  v_xor_b32 v{d}, v{d}, v{DA_+r}")
        E(f"  v_and_b32 v{DA_+r}, 1, v{c}")
        E(f"  v_lshl_or_b32 v{d}, v{d}, 1, v{DA_+r}")
        E(f"  v_lshlrev_b32 v{DA_+r}, 8, v{b}")
        E(f"  v_lshl_add_u32 v{DA_+r}, v{d}, 4, v{DA_+r}")
        E(f"  v_lshl_add_u32 v{d}, v{c}, 4, s42")
        E(f"  v_mad_u32_u24 v{SA_+r}, v{b}, s43, v{d}")
        E(f"  v_cmp_gt_u32 s[{70+2*r}:{71+2*r}], 14, v{c}")
        E(f"  v_cmp_gt_u32 vcc, s43, v{d}")
        E(f"  s_and_b64 s[{70+2*r}:{71+2*r}], s[{70+2*r}:{71+2*r}], vcc")
        E(f"  v_cmp_gt_u32 vcc, 640, v{a}")
        E(f"  s_and_b64 s[{70+2*r}:{71+2*r}], s[{70+2*r}:{71+2*r}], vcc")
    E("  s_lshr_b32 s40, s2, 5")
    E("  s_and_b32 s41, s2, 31")
    E("  s_movk_i32 s43, 6554")
    E("  s_mul_i32 s42, s40, 160")
    for r in range(3):
        wo = r == 2
        q = 2 + r
        E(f"  v_add_u32 v{a}, {0 if wo else 512*r}, v{tid}")
        E(f"  v_mul_u32_u24 v{b}, s43, v{a}")
        E(f"  v_lshrrev_b32 v{b}, 16, v{b}")
        E(f"  v_mul_u32_u24 v{c}, 10, v{b}")
        E(f"  v_sub_u32 v{c}, v{a}, v{c}")
        E(f"  s_mul_i32 s47, s41, {20 if wo else 54}")
        E(f"  v_add_u32 v{b}, s47, v{b}")
        E(f"  v_lshlrev_b32 v{c}, 4, v{c}")
        E(f"  v_mul_u32_u24 v{SA_+q}, 1280, v{b}")
        E(f"  v_add_u32 v{SA_+q}, v{SA_+q}, v{c}")
        E(f"  v_add_u32 v{SA_+q}, s42, v{SA_+q}")
        if wo:
            E(f"  v_mul_u32_u24 v{DA_+q}, 160, v{b}")
        else:
            E(f"  v_and_b32 v{d}, 0x13, v{b}")
            E(f"  v_bfe_u32 v{DA_+q}, v{b}, 2, 1")
            E(f"  v_lshl_or_b32 v{d}, v{DA_+q}, 3, v{d}")
            E(f"  v_bfe_u32 v{DA_+q}, v{b}, 3, 1")
            E(f"  v_lshl_or_b32 v{d}, v{DA_+q}, 2, v{d}")
            E(f"  v_mul_u32_u24 v{d}, 160, v{d}")
            E(f"  v_lshrrev_b32 v{DA_+q}, 5, v{b}")
            E(f"  v_mul_u32_u24 v{DA_+q}, 5120, v{DA_+q}")
            E(f"  v_add_u32 v{DA_+q}, v{DA_+q}, v{d}")
        E(f"  v_add_u32 v{DA_+q}, v{DA_+q}, v{c}")
        E(f"  v_cmp_gt_u32 vcc, {200 if wo else 540}, v{a}")
        E(f"  s_mov_b64 s[{70+2*q}:{71+2*q}], vcc")
    E("  s_waitcnt lgkmcnt(0)")
    for (dd, lo, nb) in [(84, 64, 640 * 3456), (88, 66, 1728 * 1280), (92, 68, 640 * 1280)]:
        srd(dd, lo, nb)
    for r in range(5):
        q = 84 if r < 2 else (88 if r < 4 else 92)
        E(f"  v_cndmask_b32 v{SA_+r}, 0, v{SA_+r}, s[{70+2*r}:{71+2*r}]")
        E(f"  buffer_load_dwordx4 {vr(DT+4*r,4)}, v{SA_+r}, s[{q}:{q+3}], 0 offen")
    return 5

def relayout_finish():
    SA_, DA_, DT = RL_SA, RL_DA, RL_DT
    srd(16, 38, WS_BYTES)
    E("  s_lshr_b32 s40, s2, 5")
    E("  s_lshr_b32 s41, s2, 4")
    E("  s_mul_i32 s41, s41, 163840")
    E(f"  s_add_u32 s41, s41, {W1T_OFF}")
    E("  s_mul_i32 s42, s40, 276480")
    E(f"  s_add_u32 s42, s42, {W2T_OFF}")
    E("  s_mul_i32 s43, s40, 102400")
    E(f"  s_add_u32 s43, s43, {WOT_OFF}")
    E("  s_waitcnt vmcnt(0)")
    for r in range(5):
        so = "s41" if r < 2 else ("s42" if r < 4 else "s43")
        E(f"  s_mov_b64 exec, s[{70+2*r}:{71+2*r}]")
        E(f"  s_cbranch_execz LRS{r}")
        E(f"  buffer_store_dwordx4 {vr(DT+4*r,4)}, v{DA_+r}, s[16:19], {so} offen sc0 sc1")
        E(f"LRS{r}:")
    E("  s_mov_b64 exec, -1")
    for i in range(4):
        E(f"  v_cndmask_b32 v{DT+4+i}, 0, v{DT+4+i}, s[72:73]")
    C = 64
    for i in range(4):
        for r in range(2):
            x = DT + 4 * r + i
            E(f"  v_lshlrev_b32 v60, 16, v{x}")
            E(f"  v_and_b32 v61, 0xffff0000, v{x}")
            if r == 0:
                E(f"  v_mov_b32 v{C+2*i}, v60")
                E(f"  v_mov_b32 v{C+2*i+1}, v61")
            else:
                E(f"  v_pk_add_f32 {vr(C+2*i,2)}, {vr(C+2*i,2)}, v[60:61]")
    for c in range(8):
        r = C + c
        E(f"  v_mov_b32 v62, v{r}")
        E("  s_nop 1")
        E(f"  v_permlane32_swap_b32 v{r}, v62")
        E("  s_nop 1")
        E(f"  v_add_f32 v{r}, v{r}, v62")
        E(f"  v_mov_b32 v62, v{r}")
        E("  s_nop 1")
        E(f"  v_permlane16_swap_b32 v{r}, v62")
        E("  s_nop 1")
        E(f"  v_add_f32 v{r}, v{r}, v62")
    E("  v_and_b32 v60, 15, v0")
    E("  v_lshlrev_b32 v60, 5, v60")
    E("  s_lshl_b32 s40, s27, 9")
    E(f"  s_add_u32 s40, s40, {A_CP}")
    E("  v_add_u32 v60, s40, v60")
    E(f"  ds_write_b128 v60, {vr(C,4)}")
    E(f"  ds_write_b128 v60, {vr(C+4,4)} offset:16")
    E("  s_waitcnt lgkmcnt(0)")
    E("  s_barrier")
    E("  s_cmp_ge_u32 s27, 2")
    E("  s_cbranch_scc1 L1_rf2")
    E("  v_lshl_or_b32 v60, s27, 6, v0")
    E("  v_lshlrev_b32 v60, 2, v60")
    E(f"  v_add_u32 v61, {A_CP}, v60")
    for q in range(8):
        E(f"  ds_read_b32 v{40+q}, v61 offset:{512*q}")
    E("  s_waitcnt lgkmcnt(0)")
    for q in range(1, 8):
        E(f"  v_add_f32 v40, v40, v{40+q}")
    E("  s_lshl_b32 s40, s2, 9")
    E(f"  s_add_u32 s40, s40, {CSP_OFF}")
    E("  buffer_store_dword v40, v60, s[16:19], s40 offen")
    E("L1_rf2:")
    E("  s_barrier")

def fin_stats(vs, vq, vrow, tmp):
    E("  s_mov_b32 s40, 0x3acccccd")
    E(f"  v_mul_f32 v{vs}, s40, v{vs}")
    E(f"  v_mul_f32 v{vq}, s40, v{vq}")
    E(f"  v_fma_f32 v{vq}, -v{vs}, v{vs}, v{vq}")
    E(f"  v_max_f32 v{vq}, 0, v{vq}")
    E(f"  v_add_f32 v{vq}, 0x3727c5ac, v{vq}")
    E(f"  v_rsq_f32 v{vq}, v{vq}")
    E(f"  v_lshlrev_b32 v{tmp}, 2, v{vrow}")
    E(f"  v_add_u32 v{tmp}, {A_MEAN}, v{tmp}")
    E(f"  ds_write_b32 v{tmp}, v{vs}")
    E(f"  ds_write_b32 v{tmp}, v{vq} offset:512")

def k1_epilogue():
    t0, t1, t2, t3, t4 = V_T, V_T + 1, V_T + 2, V_T + 3, V_T + 4
    CSN, CSV3, MN, RN, MS, RS = 16, 20, 24, 40, 56, 60
    pk = [64, 72, 144, 152]
    TM = 160
    E(f"  v_and_b32 v{t0}, 15, v0")
    E(f"  v_lshrrev_b32 v{t1}, 4, v0")
    E("  s_lshl_b32 s40, s27, 8")
    E(f"  s_add_u32 s40, s40, {A_MEAN}")
    E(f"  v_lshl_add_u32 v{t2}, v{t0}, 2, s40")
    E(f"  v_lshl_add_u32 v{t3}, v{t1}, 4, s40")
    for mt in range(4):
        E(f"  ds_read_b128 {vr(MN+4*mt,4)}, v{t3} offset:{64*mt}")
        E(f"  ds_read_b128 {vr(RN+4*mt,4)}, v{t3} offset:{512+64*mt}")
        E(f"  ds_read_b32 v{MS+mt}, v{t2} offset:{64*mt}")
        E(f"  ds_read_b32 v{RS+mt}, v{t2} offset:{512+64*mt}")
    E("  s_mul_i32 s41, s28, 80")
    E(f"  s_add_u32 s41, s41, {A_CS}")
    E(f"  v_lshl_add_u32 v{t2}, v{t0}, 2, s41")
    E(f"  ds_read_b32 v{CSN}, v{t2}")
    E(f"  ds_read_b32 v{CSN+1}, v{t2} offset:160")
    E(f"  v_add_u32 v{t3}, 64, v{t2}")
    E(f"  v_add_u32 v{t4}, {52*4}, v{t2}")
    E(f"  v_cmp_gt_u32 vcc, 4, v{t0}")
    E("  s_nop 1")
    E(f"  v_cndmask_b32 v{t3}, v{t4}, v{t3}, vcc")
    E(f"  v_lshlrev_b32 v{t4}, 2, v{t0}")
    E(f"  v_add_u32 v{t4}, {A_CS+104*4}, v{t4}")
    E(f"  v_cmp_gt_u32 vcc, 8, v{t0}")
    E("  s_nop 1")
    E(f"  v_cndmask_b32 v{t3}, v{t4}, v{t3}, vcc")
    E(f"  ds_read_b32 v{CSN+2}, v{t3}")
    E("  s_lshl_b32 s41, s28, 6")
    E(f"  s_add_u32 s41, s41, {A_CS+320}")
    E(f"  v_lshl_add_u32 v{t3}, v{t1}, 4, s41")
    E(f"  ds_read_b128 {vr(CSV3,4)}, v{t3}")
    E("  s_mov_b32 s46, 0x358637bd")
    E(f"  v_and_b32 v{t2}, 12, v{t0}")
    E(f"  v_cmp_eq_u32 s[48:49], 4, v{t2}")
    E("  s_waitcnt lgkmcnt(0)")
    def phi4(a):
        for r in range(4): E(f"  v_min_f32 v{TM+r}, 0, v{a+r}")
        for r in range(4): E(f"  v_mul_f32 v{TM+r}, s45, v{TM+r}")
        for r in range(4): E(f"  v_exp_f32 v{TM+r}, v{TM+r}")
        for r in range(4): E(f"  v_max_f32 v{a+r}, 0, v{a+r}")
        for r in range(4): E(f"  v_add_f32 v{TM+r}, s46, v{TM+r}")
        for r in range(4): E(f"  v_add_f32 v{a+r}, v{a+r}, v{TM+r}")
    for mt in range(4):
        for t in range(3):
            a = acc(mt, t)
            for r in range(4):
                E(f"  v_fma_f32 v{a+r}, -v{MN+4*mt+r}, v{CSN+t}, v{a+r}")
            for p in range(2):
                E(f"  v_pk_mul_f32 {vr(a+2*p,2)}, {vr(a+2*p,2)}, {vr(RN+4*mt+2*p,2)}")
        a = acc(mt, 3)
        for r in range(4):
            E(f"  v_fma_f32 v{a+r}, -v{MS+mt}, v{CSV3+r}, v{a+r}")
        for r in range(4):
            E(f"  v_mul_f32 v{a+r}, v{RS+mt}, v{a+r}")
        phi4(acc(mt, 0)); phi4(acc(mt, 3))
        a = acc(mt, 2)
        for r in range(4): E(f"  v_mov_b32 v{TM+4+r}, v{a+r}")
        phi4(a)
        for r in range(4): E(f"  v_cndmask_b32 v{a+r}, v{a+r}, v{TM+4+r}, s[48:49]")
        for t in range(4):
            a = acc(mt, t)
            E(f"  v_cvt_pk_bf16_f32 v{pk[t]+2*mt}, v{a}, v{a+1}")
            E(f"  v_cvt_pk_bf16_f32 v{pk[t]+2*mt+1}, v{a+2}, v{a+3}")
    E("  s_lshl_b32 s40, s24, 1")
    E("  s_add_u32 s40, s40, s27")
    E("  s_lshl_b32 s40, s40, 2")
    E("  s_lshr_b32 s41, s25, 2")
    E("  s_add_u32 s40, s40, s41")
    E("  s_mul_i32 s40, s40, 21504")
    E("  s_and_b32 s41, s25, 3")
    E("  s_mul_i32 s41, s41, 80")
    E("  s_add_u32 s41, s41, s40")
    E("  s_movk_i32 s42, 336")
    E(f"  v_mul_u32_u24 v{t2}, s42, v{t0}")
    E(f"  v_lshl_add_u32 v{t2}, v{t1}, 3, v{t2}")
    E("  s_lshl_b32 s43, s28, 5")
    E("  s_add_u32 s43, s43, s41")
    for mt in range(4):
        E(f"  s_add_u32 s47, s43, {mt*16*336+PQT_OFF}")
        E(f"  buffer_store_dwordx2 {vr(pk[3]+2*mt,2)}, v{t2}, s[16:19], s47 offen")
    M = V_ACC
    ON = TM
    for i in range(4):
        E(f"  v_mov_b32 v{ON+i}, 0x3f803f80")
    E("  s_nop 1")
    for p in range(2):
        P0, V1, X2 = pk[0] + 4 * p, pk[1] + 4 * p, pk[2] + 4 * p
        for i, (a, b) in enumerate(((P0, V1), (P0, X2), (X2, V1), (X2, X2), (P0, ON), (X2, ON))):
            c = "0" if p == 0 else vr(M + 4 * i, 4)
            E(f"  v_mfma_f32_16x16x32_bf16 {vr(M+4*i,4)}, {vr(a,4)}, {vr(b,4)}, {c}")
    E("  s_cmp_eq_u32 s28, 1")
    E("  s_cbranch_scc1 L1_noq2")
    E(f"  v_lshlrev_b32 v{t3}, 2, v{t1}")
    E(f"  v_mul_u32_u24 v{t3}, s42, v{t3}")
    E(f"  v_lshl_add_u32 v{t3}, v{t0}, 1, v{t3}")
    E(f"  v_cmp_lt_u32 vcc, 7, v{t0}")
    E("  s_and_saveexec_b64 s[50:51], vcc")
    for mt in range(4):
        E(f"  s_add_u32 s47, s41, {mt*16*336+PQT_OFF+64-16}")
        E(f"  buffer_store_short v{pk[2]+2*mt}, v{t3}, s[16:19], s47 offen")
        E(f"  buffer_store_short_d16_hi v{pk[2]+2*mt}, v{t3}, s[16:19], s47 offen offset:336")
        E(f"  buffer_store_short v{pk[2]+2*mt+1}, v{t3}, s[16:19], s47 offen offset:672")
        E(f"  buffer_store_short_d16_hi v{pk[2]+2*mt+1}, v{t3}, s[16:19], s47 offen offset:1008")
    E("  s_mov_b64 exec, s[50:51]")
    E("L1_noq2:")
    E("  s_lshl_b32 s40, s25, 2")
    E(f"  v_mov_b32 v{t3}, s40")
    E("  s_mul_i32 s40, s28, 1680")
    E(f"  s_add_u32 s40, s40, {A_KV}")
    E(f"  v_mul_u32_u24 v{t2}, 80, v{t0}")
    E(f"  v_lshl_add_u32 v{t2}, v{t1}, 4, v{t2}")
    E(f"  v_add_u32 v{t2}, s40, v{t2}")
    E("  s_lshl_b32 s41, s27, 12")
    E(f"  v_add_u32 v{t2}, s41, v{t2}")
    E("  s_nop 4")
    E(f"  ds_write_b128 v{t2}, {vr(M,4)}")
    E("  s_mov_b64 exec, s[48:49]")
    E(f"  ds_write_b128 v{t2}, {vr(M+4,4)} offset:960")
    E("  s_mov_b64 exec, 0xffff")
    E(f"  ds_write_b128 v{t2}, {vr(M+8,4)} offset:64")
    E("  s_mov_b64 exec, 0xf0")
    E(f"  ds_write_b128 v{t2}, {vr(M+12,4)} offset:{960+64}")
    E("  s_mov_b32 s50, 0x00010001")
    E("  s_mov_b32 s51, 0x00010001")
    E("  s_mov_b64 exec, s[50:51]")
    E(f"  ds_write_b128 v{t2}, {vr(M+16,4)} offset:1600")
    E("  s_mov_b64 exec, 1")
    E(f"  ds_write_b128 v{t2}, {vr(M+20,4)} offset:{1600+64}")
    stamp(1)
    E("  s_cmp_lg_u32 s26, 0")
    E("  s_cbranch_scc1 L1_nopoll")
    E("L1_poll:")
    E(f"  buffer_load_dword v{t4}, v{t3}, s[20:23], 0 offen sc0 sc1")
    E("  s_waitcnt vmcnt(0)")
    E(f"  v_readfirstlane_b32 s41, v{t4}")
    E("  s_nop 3")
    E("  s_cmp_lt_u32 s41, 4")
    E("  s_cbranch_scc1 L1_poll")
    E("L1_nopoll:")
    E("  s_mov_b64 exec, -1")
    E("  s_waitcnt lgkmcnt(0)")
    E("  s_barrier")
    stamp(1)
    E(f"  v_lshl_or_b32 v{t3}, s26, 6, v0")
    E(f"  v_lshlrev_b32 v{t3}, 2, v{t3}")
    E(f"  v_add_u32 v{t4}, {A_KV}, v{t3}")
    for j in range(4):
        E(f"  ds_read_b32 v{TM+j}, v{t4} offset:{1024*j}")
        E(f"  ds_read_b32 v{TM+4+j}, v{t4} offset:{4096+1024*j}")
    E("  s_mul_i32 s40, s25, 3360")
    E(f"  s_add_u32 s40, s40, {KV_OFF}")
    E("  s_waitcnt lgkmcnt(0)")
    for j in range(4):
        E(f"  v_add_f32 v{TM+j}, v{TM+j}, v{TM+4+j}")
    for j in range(3):
        E(f"  buffer_atomic_add_f32 v{TM+j}, v{t3}, s[16:19], s40 offen offset:{1024*j}")
    E(f"  v_cmp_gt_u32 vcc, {3360-3072}, v{t3}")
    E("  s_and_saveexec_b64 s[50:51], vcc")
    E("  s_cbranch_execz L1_fin")
    E(f"  buffer_atomic_add_f32 v{TM+3}, v{t3}, s[16:19], s40 offen offset:3072")
    E("L1_fin:")

def k3_epilogue():
    t0, t1, t2, t3, t4 = V_T, V_T + 1, V_T + 2, V_T + 3, V_T + 4
    MS, RS, CSV, PK, TM = 16, 24, 32, 48, 144
    E(f"  v_and_b32 v{t0}, 15, v0")
    E(f"  v_lshrrev_b32 v{t1}, 4, v0")
    E("  s_lshl_b32 s40, s27, 8")
    E(f"  s_add_u32 s40, s40, {A_MEAN}")
    E(f"  v_lshl_add_u32 v{t2}, v{t0}, 2, s40")
    for mt in range(4):
        E(f"  ds_read_b32 v{MS+2*mt}, v{t2} offset:{64*mt}")
        E(f"  ds_read_b32 v{RS+2*mt}, v{t2} offset:{512+64*mt}")
    E("  s_lshl_b32 s41, s28, 8")
    E(f"  s_add_u32 s41, s41, {A_CS}")
    E(f"  v_lshl_add_u32 v{t3}, v{t1}, 4, s41")
    for t in range(4):
        E(f"  ds_read_b128 {vr(CSV+4*t,4)}, v{t3} offset:{64*t}")
    E(f"  v_lshrrev_b32 v{t2}, 2, v{t0}")
    E(f"  v_sub_u32 v{t2}, 0, v{t2}")
    E(f"  v_lshrrev_b32 v{t4}, 1, v{t1}")
    E(f"  v_xor_b32 v{t2}, v{t2}, v{t4}")
    E(f"  v_and_b32 v{t2}, 3, v{t2}")
    E(f"  v_lshlrev_b32 v{t2}, 4, v{t2}")
    E(f"  v_lshl_add_u32 v{t2}, v{t0}, 6, v{t2}")
    E(f"  v_and_b32 v{t4}, 1, v{t1}")
    E("  s_lshl_b32 s40, s24, 1")
    E("  s_add_u32 s40, s40, s27")
    E("  s_mul_i32 s40, s40, 221184")
    E(f"  s_add_u32 s40, s40, {H1_OFF}")
    E("  s_mul_i32 s41, s25, 224")
    E("  s_lshl_b32 s43, s28, 7")
    E("  s_add_u32 s43, s43, s41")
    E("  s_mov_b32 s50, s45")
    E("  s_mov_b32 s51, s45")
    E("  s_waitcnt lgkmcnt(0)")
    for tp in range(2):
        for mt in range(4):
            for u in range(2):
                t = 2 * tp + u
                a = acc(mt, t)
                tm = TM + 4 * u
                for p in range(2):
                    E(f"  v_pk_fma_f32 {vr(a+2*p,2)}, {vr(CSV+4*t+2*p,2)}, {vr(MS+2*mt,2)}, {vr(a+2*p,2)} op_sel_hi:[1,0,1] neg_lo:[0,1,0] neg_hi:[0,1,0]")
                for p in range(2):
                    E(f"  v_pk_mul_f32 {vr(a+2*p,2)}, {vr(a+2*p,2)}, {vr(RS+2*mt,2)} op_sel_hi:[1,0]")
                for p in range(2):
                    E(f"  v_pk_mul_f32 {vr(tm+2*p,2)}, {vr(a+2*p,2)}, s[50:51]")
                for r in range(4): E(f"  v_exp_f32 v{tm+r}, -v{tm+r}")
                for p in range(2):
                    E(f"  v_pk_add_f32 {vr(tm+2*p,2)}, {vr(tm+2*p,2)}, 1.0 op_sel_hi:[1,0]")
                for r in range(4): E(f"  v_rcp_f32 v{tm+r}, v{tm+r}")
                E("  s_nop 0")
                for p in range(2): E(f"  v_pk_mul_f32 {vr(a+2*p,2)}, {vr(a+2*p,2)}, {vr(tm+2*p,2)}")
                d = PK + (tp * 4 + mt) * 4 + 2 * u
                E(f"  v_cvt_pk_bf16_f32 v{d}, v{a}, v{a+1}")
                E(f"  v_cvt_pk_bf16_f32 v{d+1}, v{a+2}, v{a+3}")
            d = PK + (tp * 4 + mt) * 4
            E("  s_nop 1")
            E(f"  v_permlane16_swap_b32 v{d}, v{d+2}")
            E(f"  v_permlane16_swap_b32 v{d+1}, v{d+3}")
        E(f"  s_add_u32 s46, s43, {64*tp}")
        E(f"  v_lshl_add_u32 v{t3}, v{t4}, 5, s46")
        E(f"  v_lshrrev_b32 v{TM+8}, 6, v{t3}")
        E(f"  v_lshlrev_b32 v{TM+8}, 12, v{TM+8}")
        E(f"  v_and_b32 v{TM+9}, 32, v{t3}")
        E(f"  v_xor_b32 v{TM+9}, v{TM+9}, v{t2}")
        E(f"  v_add_u32 v{TM+8}, v{TM+8}, v{TM+9}")
        E(f"  v_cmp_gt_u32 vcc, 3456, v{t3}")
        E(f"  v_subrev_u32 v{TM+9}, s41, v{t3}")
        E(f"  v_cmp_gt_u32 s[46:47], s42, v{TM+9}" if False else "  s_mov_b64 s[48:49], vcc")
        E(f"  v_cmp_gt_u32 vcc, 224, v{TM+9}")
        E("  s_and_b64 vcc, vcc, s[48:49]")
        E(f"  v_mov_b32 v{TM+9}, 0x7fffffff")
        E(f"  v_cndmask_b32 v{TM+8}, v{TM+9}, v{TM+8}, vcc")
        for mt in range(4):
            d = PK + (tp * 4 + mt) * 4
            E(f"  buffer_store_dwordx4 {vr(d,4)}, v{TM+8}, s[16:19], s40 offen offset:{mt*1024}")

def head_6480(which):
    E("  s_cmp_ge_u32 s2, 256")
    E(f"  s_cbranch_scc1 L{which}_done")
    E("  s_load_dwordx4 s[36:39], s[0:1], 56")
    E("  s_load_dwordx2 s[4:5], s[0:1], 48")
    E(f"  s_load_dwordx2 s[6:7], s[0:1], {16 if which == 2 else 40}")
    E("  s_load_dwordx2 s[42:43], s[0:1], 0")
    stamp(which)
    E("  s_and_b32 s40, s2, 7")
    E("  s_lshr_b32 s41, s2, 3")
    E("  s_lshl_b32 s24, s40, 2")
    E("  s_and_b32 s44, s41, 3")
    E("  s_add_u32 s24, s24, s44")
    E("  s_lshr_b32 s25, s41, 2")
    E("  v_lshrrev_b32 v1, 6, v0")
    E("  v_mov_b32 v2, v0")
    E("  v_and_b32 v0, 63, v0")
    E("  v_readfirstlane_b32 s26, v1")
    E("  s_nop 3")

def res_addr():
    E("  v_lshrrev_b32 v3, 2, v2")
    E("  s_lshl_b32 s40, s24, 6")
    E("  v_add_u32 v3, s40, v3")
    E("  s_movk_i32 s41, 1280")
    E("  v_mul_lo_u32 v7, v3, s41")
    E("  v_and_b32 v4, 3, v2")
    E("  v_mad_u32_u24 v7, v4, 40, v7")
    E("  s_mul_i32 s40, s25, 160")
    E("  v_add_u32 v7, s40, v7")

def chunk_addr(vc, vrow, vcol, tmp):
    E("  s_movk_i32 s41, 6554")
    E(f"  v_mul_u32_u24 v{vrow}, s41, v{vc}")
    E(f"  v_lshrrev_b32 v{vrow}, 16, v{vrow}")
    E(f"  v_mul_u32_u24 v{tmp}, 10, v{vrow}")
    E(f"  v_sub_u32 v{vcol}, v{vc}, v{tmp}")

def res_load(rounds, res_srd, RES, GA):
    for r, add in enumerate(rounds):
        E(f"  v_add_u32 v3, {add}, v2")
        chunk_addr(3, 4, 5, 6)
        E("  s_lshl_b32 s40, s24, 6")
        E("  v_add_u32 v4, s40, v4")
        E("  s_movk_i32 s41, 1280")
        E(f"  v_mul_lo_u32 v{GA+r}, v4, s41")
        E(f"  v_lshl_add_u32 v{GA+r}, v5, 4, v{GA+r}")
        E("  s_mul_i32 s40, s25, 160")
        E(f"  v_add_u32 v{GA+r}, s40, v{GA+r}")
        E("  v_cmp_gt_u32 vcc, 640, v3")
        E(f"  v_cndmask_b32 v{GA+r}, -1, v{GA+r}, vcc")
        E(f"  buffer_load_dwordx4 {vr(RES+4*r,4)}, v{GA+r}, {sr(res_srd,4)}, 0 offen")

def final_sum(which, rounds, RES, GA, dst_srd, wstride, B):
    for r, add in enumerate(rounds):
        E(f"  v_add_u32 v3, {add}, v2")
        E("  v_min_u32 v3, 639, v3")
        chunk_addr(3, 4, 5, 6)
        E("  v_mul_u32_u24 v6, 336, v4")
        E("  v_lshl_add_u32 v6, v5, 5, v6")
        E(f"  v_add_u32 v3, {2*wstride}, v6")
        for w in range(4):
            for j in range(2):
                E(f"  ds_read_b128 {vr(B+w*8+j*4,4)}, {'v6' if w < 2 else 'v3'} offset:{(w&1)*wstride+j*16}")
        E("  s_waitcnt lgkmcnt(0)")
        for i in range(4):
            E(f"  v_pk_add_f32 {vr(B+2*i,2)}, {vr(B+2*i,2)}, {vr(B+8+2*i,2)}")
            E(f"  v_pk_add_f32 {vr(B+16+2*i,2)}, {vr(B+16+2*i,2)}, {vr(B+24+2*i,2)}")
        for i in range(4):
            E(f"  v_pk_add_f32 {vr(B+2*i,2)}, {vr(B+2*i,2)}, {vr(B+16+2*i,2)}")
        E("  s_waitcnt vmcnt(0)")
        T = B + 8
        for i in range(4):
            E(f"  v_lshlrev_b32 v{T}, 16, v{RES+4*r+i}")
            E(f"  v_and_b32 v{T+1}, 0xffff0000, v{RES+4*r+i}")
            if which == 2:
                E(f"  v_cvt_pk_bf16_f32 v{T+2}, v{B+2*i}, v{B+2*i+1}")
                E(f"  v_lshlrev_b32 v{B+2*i}, 16, v{T+2}")
                E(f"  v_and_b32 v{B+2*i+1}, 0xffff0000, v{T+2}")
            E(f"  v_pk_add_f32 {vr(B+2*i,2)}, {vr(B+2*i,2)}, {vr(T,2)}")
            E(f"  v_cvt_pk_bf16_f32 v{T+4+i}, v{B+2*i}, v{B+2*i+1}")
        E(f"  buffer_store_dwordx4 {vr(T+4,4)}, v{GA+r}, {sr(dst_srd,4)}, 0 offen")
        if which == 2:
            S = T + 8
            for i in range(4):
                E(f"  v_lshlrev_b32 v{T}, 16, v{T+4+i}")
                E(f"  v_and_b32 v{T+1}, 0xffff0000, v{T+4+i}")
                if i == 0:
                    E(f"  v_mov_b32 v{S}, v{T}")
                    E(f"  v_mov_b32 v{S+1}, v{T+1}")
                    E(f"  v_pk_mul_f32 {vr(S+2,2)}, {vr(T,2)}, {vr(T,2)}")
                else:
                    E(f"  v_pk_add_f32 {vr(S,2)}, {vr(S,2)}, {vr(T,2)}")
                    E(f"  v_pk_fma_f32 {vr(S+2,2)}, {vr(T,2)}, {vr(T,2)}, {vr(S+2,2)}")
            E(f"  v_add_f32 v{S}, v{S}, v{S+1}")
            E(f"  v_add_f32 v{S+1}, v{S+2}, v{S+3}")
            E("  v_mul_u32_u24 v6, 10, v4")
            E("  v_add_u32 v6, v6, v5")
            E("  v_lshlrev_b32 v6, 3, v6")
            E(f"  v_add_u32 v6, {K2_STAT}, v6")
            E(f"  v_add_u32 v3, {add}, v2")
            E("  v_cmp_gt_u32 vcc, 640, v3")
            E("  s_and_saveexec_b64 s[50:51], vcc")
            E(f"  ds_write_b64 v6, {vr(S,2)}")
            E("  s_mov_b64 exec, s[50:51]")

K2_STAT = 4 * 40960 - 5120 - 16

def k4(name):
    kernel_head(name)
    head_6480(4)
    E("  s_mul_i32 s40, s24, 221184")
    E(f"  s_add_u32 s40, s40, {H1_OFF}")
    E("  s_mul_i32 s41, s25, 276480")
    E(f"  s_add_u32 s41, s41, {W2T_OFF}")
    E("  s_waitcnt lgkmcnt(0)")
    E("  s_add_u32 s8, s38, s40")
    E("  s_addc_u32 s9, s39, 0")
    E("  s_mov_b32 s10, 221184")
    E("  s_mov_b32 s11, 0x00020000")
    E("  s_add_u32 s12, s38, s41")
    E("  s_addc_u32 s13, s39, 0")
    E("  s_mov_b32 s14, 276480")
    E("  s_mov_b32 s15, 0x00020000")
    srd(16, 38, 2048 * 1280, H_OFF)
    srd(20, 4, 2048 * 1280)
    E("  s_cmp_ge_u32 s26, 4")
    E("  s_cbranch_scc1 L4_loader")
    E("  s_mul_i32 s34, s26, 36864")
    E("  v_and_b32 v3, 15, v0")
    E("  v_lshrrev_b32 v4, 4, v0")
    E("  v_lshrrev_b32 v5, 2, v3")
    E("  v_sub_u32 v6, 0, v5")
    E("  v_xor_b32 v6, v6, v4")
    E("  v_and_b32 v6, 3, v6")
    E("  v_lshlrev_b32 v6, 4, v6")
    E("  v_lshl_add_u32 v6, v3, 6, v6")
    E("  v_add_u32 v8, s34, v6")
    E("  v_lshrrev_b32 v6, 1, v4")
    E("  v_lshl_add_u32 v6, v6, 4, v5")
    E("  v_and_b32 v4, 1, v4")
    E("  v_lshl_add_u32 v6, v4, 2, v6")
    E("  v_mul_u32_u24 v6, 160, v6")
    E("  v_and_b32 v3, 3, v3")
    E("  v_lshl_add_u32 v6, v3, 3, v6")
    E("  v_add_u32 v6, 4096, v6")
    E("  v_add_u32 v9, s34, v6")
    ACC = 16
    def accf(mt, nt): return ACC + (mt * 5 + nt) * 4
    for i in range(80):
        E(f"  v_mov_b32 v{ACC+i}, 0")
    RES = 96
    X, Y = 96 + 12, 96 + 12 + 36
    X, Y = 96, 132
    RES = 168 - 0
    def reads(step, base):
        sl = step % 4
        r = []
        for mt in range(4):
            r.append(f"  ds_read_b128 {vr(base+4*mt,4)}, v8 offset:{sl*9216+mt*1024}")
        for nt in range(5):
            for h in range(2):
                r.append(f"  ds_read_b64_tr_b16 {vr(base+16+4*nt+2*h,2)}, v9 offset:{sl*9216+h*1280+nt*32}")
        return r
    NSTEP = 14
    E("  s_barrier")
    stamp(4)
    for r in reads(0, X): E(r)
    for i in range(NSTEP):
        cur, nxt = (X, Y) if i % 2 == 0 else (Y, X)
        E("  s_waitcnt lgkmcnt(0)")
        if i + 1 < NSTEP:
            E("  s_barrier")
        mfs = [f"  v_mfma_f32_16x16x32_bf16 {vr(accf(mt,nt),4)}, {vr(cur+16+4*nt,4)}, {vr(cur+4*mt,4)}, {vr(accf(mt,nt),4)}" for mt in range(4) for nt in range(5)]
        interleave(mfs, reads(i + 1, nxt) if i + 1 < NSTEP else [])
        if i == NSTEP - 2:
            pass
    stamp(4)
    pads_on()
    E("  v_and_b32 v3, 15, v0")
    E("  v_lshrrev_b32 v4, 4, v0")
    E("  v_mul_u32_u24 v5, 336, v3")
    E("  v_lshl_add_u32 v5, v4, 4, v5")
    E("  v_add_u32 v5, s34, v5")
    E("  s_nop 7")
    for mt in range(4):
        for nt in range(5):
            E(f"  ds_write_b128 v5, {vr(accf(mt,nt),4)} offset:{mt*16*336+nt*64}")
    E("  s_waitcnt lgkmcnt(0)")
    pads_off()
    E("  s_branch L4_fin")
    E("L4_loader:")
    E("  s_sub_u32 s27, s26, 4")
    E("  s_lshr_b32 s28, s27, 1")
    E("  s_and_b32 s27, s27, 1")
    E("  s_mul_i32 s34, s28, 36864")
    E(f"  s_mul_i32 s32, s28, {14*4096}")
    E(f"  s_mul_i32 s33, s28, {14*5120}")
    E("  v_lshlrev_b32 v8, 4, v0")
    for half in range(2):
        if half == 0:
            E("  s_cmp_eq_u32 s27, 1")
            E("  s_cbranch_scc1 L4_ld1")
        else:
            E("L4_ld1:")
        n = 5 if half == 0 else 4
        def dma(step):
            sl = step % 4
            if half == 0:
                E(f"  s_add_u32 s35, s34, {sl*9216}")
                E("  s_mov_b32 m0, s35")
                E("  s_add_u32 s35, s35, 8192")
                for j in range(4):
                    E(f"  buffer_load_dwordx4 v8, s[8:11], s32 offen offset:{j*1024} lds")
                E("  s_mov_b32 m0, s35")
                E("  s_add_u32 s32, s32, 4096")
                E("  s_add_u32 s35, s33, 4096")
                E("  buffer_load_dwordx4 v8, s[12:15], s35 offen lds")
            else:
                E(f"  s_add_u32 s35, s34, {sl*9216+4096}")
                E("  s_mov_b32 m0, s35")
                E("  s_nop 0")
                for j in range(4):
                    E(f"  buffer_load_dwordx4 v8, s[12:15], s33 offen offset:{j*1024} lds")
            E(f"  s_add_u32 s33, s33, 5120")
        for s in range(4): dma(s)
        last = 3
        if half == 0: pf_enter("L4", 4, "s28")
        PF = int(os.environ.get("K4PF", "0"))
        npf = 0
        if PF:
            E("  s_mov_b32 s48, s32")
            E("  s_mov_b32 s49, s33")
            for st in range(4, 4 + PF):
                if half == 0:
                    for j in range(4):
                        E(f"  buffer_load_dwordx4 v[20:23], v{8+j}, s[8:11], s48 offen offset:{j*1024}")
                    E("  buffer_load_dwordx4 v[20:23], v16, s[12:15], s49 offen")
                    E("  s_add_u32 s48, s48, 64")
                else:
                    for j in range(4):
                        E(f"  buffer_load_dwordx4 v[20:23], v{12+j}, s[12:15], s49 offen offset:{j*1024}")
                E(f"  s_add_u32 s49, s49, {32*1280}")
                npf += n
        E(f"  s_waitcnt vmcnt({3*n+npf})")
        E("  s_barrier")
        for i in range(NSTEP - 1):
            E(f"  s_waitcnt vmcnt({min(63,(last-(i+1))*n + (npf if i+1 <= 3 else 0))})")
            E("  s_barrier")
            if i + 4 < NSTEP:
                dma(i + 4); last = i + 4
            if i == NSTEP - 5:
                pass
        E("  s_branch L4_fin")
    E("L4_fin:")
    pad["on"] = True
    res_load([0], 16, 16, 12)
    E("  s_barrier")
    final_sum(4, [0], 16, 12, 20, 36864, 24)
    pads_off()
    stamp(4)
    stamp_flush(4, 36)
    rt_end(4)
    E("L4_done:")
    E("  s_endpgm")

def k2(name):
    kernel_head(name)
    head_6480(2)
    E("  s_and_b32 s27, s26, 3")
    E("  s_lshr_b32 s33, s26, 2")
    E("  s_mul_i32 s34, s27, 40960")
    E("  v_lshlrev_b32 v8, 4, v0")
    E("  s_lshl_b32 s40, s24, 2")
    E("  s_add_u32 s40, s40, s27")
    E("  s_mul_i32 s44, s40, 21504")
    E("  s_mul_i32 s45, s33, 11264")
    E("  s_add_u32 s44, s44, s45")
    E("  s_add_u32 s35, s34, s45")
    E("  s_mov_b32 m0, s35")
    E("  s_waitcnt lgkmcnt(0)")
    srd(8, 38, 128 * 21504, PQT_OFF)
    srd(28, 38, 53760, KV_OFF)
    srd(12, 38, 8 * 102400, WOT_OFF)
    for j in range(11):
        if j == 10:
            E("  s_cmp_eq_u32 s33, 1")
            E("  s_cbranch_scc1 L2_pq10")
        E("  buffer_load_dwordx4 v8, s[8:11], s44 offen lds")
        E("  s_add_u32 m0, m0, 1024")
        E("  s_add_u32 s44, s44, 1024")
    E("L2_pq10:")
    E("  s_mul_i32 s44, s27, 13440")
    E("  s_mul_i32 s45, s33, 7168")
    E("  s_add_u32 s44, s44, s45")
    E("  s_add_u32 s35, s34, 21504")
    E("  s_add_u32 s45, s45, s35")
    E("  s_mov_b32 m0, s45")
    E("  s_nop 0")
    for j in range(7):
        E("  buffer_load_dwordx4 v8, s[28:31], s44 offen lds")
        E("  s_add_u32 m0, m0, 1024")
        E("  s_add_u32 s44, s44, 1024")
    WR = 196
    E("  s_mul_i32 s32, s27, 25600")
    E("  s_mul_i32 s45, s25, 102400")
    E("  s_add_u32 s32, s32, s45")
    E("  s_mul_i32 s45, s33, 13312")
    E("  s_add_u32 s32, s32, s45")
    E("  v_mov_b32 v7, v8")
    srd(16, 42, 2048 * 1280)
    srd(20, 38, 2048 * 1280, H_OFF)
    srd(28, 38, WS_BYTES)
    RES, GA = 248, 194
    res_load([0, 512], 16, RES, GA)
    E("  v_and_b32 v3, 15, v0")
    E("  v_lshrrev_b32 v4, 4, v0")
    E("  v_cmp_eq_u32 s[46:47], 0, v4")
    E("  v_lshrrev_b32 v5, 2, v3")
    for q in range(4):
        E(f"  v_cmp_eq_u32 s[{48+2*q}:{49+2*q}], {q}, v5")
        E(f"  v_cmp_eq_u32 s[{56+2*q}:{57+2*q}], {q}, v4")
    E("  v_mul_u32_u24 v8, 80, v3")
    E("  v_add_u32 v8, s35, v8")
    E("  v_lshl_add_u32 v9, v4, 4, v8")
    E("  v_and_b32 v10, 3, v3")
    E("  v_mul_u32_u24 v10, 80, v10")
    E("  v_add_u32 v10, s35, v10")
    E("  v_add_u32 v10, 1280, v10")
    E("  v_lshl_add_u32 v11, v4, 4, v10")
    E("  v_mov_b32 v12, s35")
    E("  v_add_u32 v12, 1600, v12")
    E("  v_lshl_add_u32 v13, v4, 4, v12")
    E("  s_mul_i32 s40, s33, 10752")
    E("  s_add_u32 s40, s40, s34")
    E("  v_mul_u32_u24 v14, 336, v3")
    E("  v_add_u32 v14, s40, v14")
    E("  v_add_u32 v15, 32, v14")
    E("  v_lshl_add_u32 v14, v4, 3, v14")
    pf_enter("L2", 8, "s26")
    E("  s_waitcnt vmcnt(2)")
    for j in range(13):
        E(f"  buffer_load_dwordx4 {vr(WR+4*j,4)}, v7, s[12:15], s32 offen")
        E("  s_add_u32 s32, s32, 1024")
    stamp(2)
    E("  s_barrier")
    stamp(2)
    pads_on()
    KF, T = 32, 128
    for hh in range(8):
        o = hh * 1680
        tt0 = T + 24 * (hh % 2)
        E(f"  ds_read_b128 {vr(tt0,4)}, v9 offset:{o}")
        E(f"  ds_read_b128 {vr(tt0+4,4)}, v8 offset:{o+64}")
        E(f"  ds_read_b128 {vr(tt0+8,4)}, v11 offset:{o}")
        E(f"  ds_read_b128 {vr(tt0+12,4)}, v10 offset:{o+64}")
        E(f"  ds_read_b128 {vr(tt0+16,4)}, v13 offset:{o}")
        E(f"  ds_read_b128 {vr(tt0+20,4)}, v12 offset:{o+64}")
        if hh % 2 == 1:
            E("  s_waitcnt lgkmcnt(0)")
            for h2 in (hh - 1, hh):
                f = KF + 12 * h2
                tt0 = T + 24 * (h2 % 2)
                for tt in range(3):
                    for p in range(4):
                        E(f"  v_cvt_pk_bf16_f32 v{f+4*tt+p}, v{tt0+8*tt+2*p}, v{tt0+8*tt+2*p+1}")
                m = f"s[{48+2*(h2%4)}:{49+2*(h2%4)}]"
                for tt in range(3):
                    E(f"  v_cndmask_b32 v{f+4*tt+2}, 0, v{f+4*tt+2}, s[46:47]")
                    E(f"  v_cndmask_b32 v{f+4*tt+3}, 0, v{f+4*tt+3}, s[46:47]")
                for p in range(4):
                    E(f"  v_cndmask_b32 v{f+4+p}, 0, v{f+4+p}, {m}")
    stamp(2)
    OF = 128
    def of(u, ks): return OF + u * 20 + ks * 4
    PQa, PQb, N0, D, N1, RS = 168, 16, 176, 24, 184, 192
    E("  s_mov_b32 s45, 0x358637bd")
    def pqreads(hh):
        P = PQa if hh % 2 == 0 else PQb
        for u in range(2):
            E(f"  ds_read_b64 {vr(P+4*u,2)}, v14 offset:{u*16*336+40*hh}")
            E(f"  ds_read_b64 {vr(P+4*u+2,2)}, v15 offset:{u*16*336+40*hh}")
    pqreads(0)
    for hh in range(8):
        P = PQa if hh % 2 == 0 else PQb
        f = KF + 12 * hh
        if hh + 1 < 8:
            pqreads(hh + 1)
            E("  s_waitcnt lgkmcnt(4)")
        else:
            E("  s_waitcnt lgkmcnt(0)")
        for u in range(2):
            E(f"  v_mfma_f32_16x16x32_bf16 {vr(D+4*u,4)}, {vr(f+8,4)}, {vr(P+4*u,4)}, 0")
        for u in range(2):
            E(f"  v_mfma_f32_16x16x32_bf16 {vr(N0+4*u,4)}, {vr(f,4)}, {vr(P+4*u,4)}, 0")
        for u in range(2):
            c = "0" if hh % 4 == 0 else vr(N1 + 4 * u, 4)
            E(f"  v_mfma_f32_16x16x32_bf16 {vr(N1+4*u,4)}, {vr(f+4,4)}, {vr(P+4*u,4)}, {c}")
        E("  s_nop 4")
        for u in range(2):
            E(f"  v_add_f32 v{D+4*u}, s45, v{D+4*u}")
            E(f"  v_rcp_f32 v{D+4*u}, v{D+4*u}")
        E("  s_nop 1")
        for u in range(2):
            for r in range(4):
                E(f"  v_mul_f32 v{N0+4*u+r}, v{N0+4*u+r}, v{D+4*u}")
            dst = of(u, hh // 2) + 2 * (hh % 2)
            E(f"  v_cvt_pk_bf16_f32 v{dst}, v{N0+4*u}, v{N0+4*u+1}")
            E(f"  v_cvt_pk_bf16_f32 v{dst+1}, v{N0+4*u+2}, v{N0+4*u+3}")
            gm = f"s[{56+2*(hh%4)}:{57+2*(hh%4)}]"
            E(f"  v_cndmask_b32 v{RS+u}, v{RS+u}, v{D+4*u}, {gm}")
        if hh % 4 == 3:
            E("  s_nop 4")
            for u in range(2):
                for r in range(4):
                    E(f"  v_mul_f32 v{D+4*u+r}, v{N1+4*u+r}, v{RS+u}")
                dst = of(u, 4) + 2 * (hh // 4)
                E(f"  v_cvt_pk_bf16_f32 v{dst}, v{D+4*u}, v{D+4*u+1}")
                E(f"  v_cvt_pk_bf16_f32 v{dst+1}, v{D+4*u+2}, v{D+4*u+3}")
    stamp(2)
    E("  v_lshlrev_b32 v16, 4, v0")
    E("  s_mul_i32 s40, s33, 13312")
    E("  s_add_u32 s40, s40, s34")
    E("  v_add_u32 v16, s40, v16")
    E("  v_lshl_add_u32 v8, v4, 2, v5")
    E("  v_mul_u32_u24 v8, 160, v8")
    E("  v_and_b32 v6, 3, v3")
    E("  v_lshl_add_u32 v8, v6, 3, v8")
    E("  v_add_u32 v8, s34, v8")
    E("  v_mul_u32_u24 v9, 20, v4")
    E("  v_add_u32 v9, v9, v5")
    E("  v_add_u32 v9, 16, v9")
    E("  v_mul_u32_u24 v9, 160, v9")
    E("  v_lshl_add_u32 v9, v6, 3, v9")
    E("  v_add_u32 v9, s34, v9")
    E("  s_waitcnt vmcnt(0)")
    E("  s_barrier")
    for j in range(13):
        if j == 12:
            E("  s_cmp_eq_u32 s33, 1")
            E("  s_cbranch_scc1 L2_w12")
        E(f"  ds_write_b128 v16, {vr(WR+4*j,4)} offset:{1024*j}")
    E("L2_w12:")
    E("  s_waitcnt lgkmcnt(0)")
    E("  s_barrier")
    stamp(2)
    ACC = 32
    def accf(u, nt): return ACC + (u * 5 + nt) * 4
    WFS = [72, 92]
    def wreads(ks):
        W = WFS[ks % 2]
        r = []
        for nt in range(5):
            for h in range(2):
                if ks < 4:
                    r.append(f"  ds_read_b64_tr_b16 {vr(W+4*nt+2*h,2)}, v8 offset:{ks*6400+h*3200+nt*32}")
                else:
                    r.append(f"  ds_read_b64_tr_b16 {vr(W+4*nt+2*h,2)}, v9 offset:{h*12800+nt*32}")
        return r
    for r in wreads(0): E(r)
    for ks in range(5):
        W = WFS[ks % 2]
        E("  s_waitcnt lgkmcnt(0)")
        mfs = []
        for nt in range(5):
            for u in range(2):
                c = "0" if ks == 0 else vr(accf(u, nt), 4)
                mfs.append(f"  v_mfma_f32_16x16x32_bf16 {vr(accf(u,nt),4)}, {vr(W+4*nt,4)}, {vr(of(u,ks),4)}, {c}")
        interleave(mfs, wreads(ks + 1) if ks < 4 else [], per=1)
    stamp(2)
    E("  s_barrier")
    E("  s_mul_i32 s40, s33, 10752")
    E("  s_add_u32 s40, s40, s34")
    E("  v_mul_u32_u24 v5, 336, v3")
    E("  v_lshl_add_u32 v5, v4, 4, v5")
    E("  v_add_u32 v5, s40, v5")
    for u in range(2):
        for nt in range(5):
            E(f"  ds_write_b128 v5, {vr(accf(u,nt),4)} offset:{u*16*336+nt*64}")
    E("  s_waitcnt lgkmcnt(0)")
    E("  s_barrier")
    final_sum(2, [0, 512], RES, GA, 20, 40960, 32)
    E("  s_waitcnt lgkmcnt(0)")
    E("  s_barrier")
    E("  s_cmp_lg_u32 s26, 0")
    E("  s_cbranch_scc1 L2_nost")
    E("  v_mul_u32_u24 v6, 80, v0")
    E(f"  v_add_u32 v6, {K2_STAT}, v6")
    for j in range(5):
        E(f"  ds_read_b128 {vr(32+4*j,4)}, v6 offset:{16*j}")
    E("  s_waitcnt lgkmcnt(0)")
    for j in range(1, 10):
        E(f"  v_pk_add_f32 v[32:33], v[32:33], {vr(32+2*j,2)}")
    E("  s_lshl_b32 s40, s24, 12")
    E("  s_lshl_b32 s41, s25, 3")
    E("  s_add_u32 s40, s40, s41")
    E(f"  s_add_u32 s40, s40, {RS_OFF}")
    E("  v_lshlrev_b32 v3, 6, v0")
    E("  buffer_store_dwordx2 v[32:33], v3, s[28:31], s40 offen")
    E("L2_nost:")
    pads_off()
    stamp(2)
    stamp_flush(2, 36)
    rt_end(2)
    E("L2_done:")
    E("  s_endpgm")

def main():
    N = ["k1_qkv_kernel", "k2_attn_kernel", "k3_ffn1_kernel", "k4_ffn2_kernel"]
    hdr = open('cdna_kernels/' + NAME + '.s.ref').read().split("; Override")[0]
    E(hdr.rstrip())
    lds = [163840, 163840, 163840, 4 * 36864]
    blk = [768, 512, 768, 768]
    for i, n in enumerate(N):
        E(f"; @launch kernel={n} grid=(256,1,1) block=({blk[i]},1,1) lds={lds[i]}")
    E('.amdgcn_target "amdgcn-amd-amdhsa--gfx950"')
    E(".text")
    st = len(out); ln_gemm(N[0], 1); resolve_pads("L1", st)
    st = len(out); k2(N[1]); resolve_pads("L2", st)
    st = len(out); ln_gemm(N[2], 3); resolve_pads("L3", st)
    st = len(out); k4(N[3]); resolve_pads("L4", st)
    E('.section .rodata,"a"')
    E(kernel_desc(N[0]))
    E(kernel_desc(N[1], vgpr=256))
    E(kernel_desc(N[2]))
    E(kernel_desc(N[3]))
    open(sys.argv[1], 'w').write("\n".join(out) + "\n")
main()
```

```python
import sys, os
NAME = "sequential_preLN__linear_attn_block__dense_activation_silu__prompt"
PQ_OFF = 0
KV_OFF = 0x280000
H_OFF = 0x290000
H1_OFF = 0x510000
RS_OFF = H1_OFF + 2048 * 1728 * 2
W1T_OFF = RS_OFF + 2048 * 64
W2T_OFF = W1T_OFF + 16 * 163840
WOT_OFF = W2T_OFF + 8 * 276480
PQT_OFF = WOT_OFF + 8 * 102400
CSP_OFF = PQT_OFF + 128 * 21504
WS_BYTES = CSP_OFF + 16 * 16 * 512
out = []
PADN = int(os.environ.get("PADN", "0"))
pad = {"on": False, "cnt": 0, "masked": False, "n": 0}
def E(s=""):
    out.append(s)
    t = s.strip()
    if not pad["on"] or not t or t.endswith(":") or t.startswith("."): return
    if t.startswith("s_mov_b64 exec") or "saveexec" in t:
        pad["masked"] = not t.endswith("exec, -1")
    pad["cnt"] += 1
    if PADN and pad["cnt"] >= PADN and not pad["masked"] and t.startswith(("v_", "ds_")) and not t.startswith(("v_cmp", "v_readfirst")):
        out.append(f"@PAD {pad['n']}")
        pad["n"] += 1
        pad["cnt"] = 0
def pads_on(): pad["on"] = True; pad["cnt"] = 0; pad["masked"] = False
def pads_off(): pad["on"] = False
def pf_enter(L, nw, wave_sreg, wbase=0):
    out.append(f"@PFENTER {L} {nw} {wave_sreg} {wbase}")
    E(f"{L}_PFRET:")
    E("  s_mov_b64 exec, -1")
def resolve_pads(L, start):
    n = pad["n"]
    ent = [i for i in range(start, len(out)) if out[i].startswith("@PFENTER")]
    nw = int(out[ent[0]].split()[2]) if ent else 1
    starts = [k * n // nw for k in range(nw)]
    sset = set(starts[1:])
    for i in range(start, len(out)):
        if out[i].startswith("@PAD"):
            k = int(out[i].split()[1])
            nxt = f"{L}_PFRET" if (k + 1 == n or (k + 1) in sset) else f"{L}_P{k+1}"
            out[i] = f"{L}_P{k}:\n  s_cbranch_execz {nxt}"
        elif out[i].startswith("@PFENTER"):
            _, L_, nw_, sreg, wb = out[i].split()
            txt = []
            if n:
                txt.append("  s_mov_b64 exec, 0")
                for k in range(nw):
                    txt.append(f"  s_cmp_eq_u32 {sreg}, {int(wb)+k}")
                    txt.append(f"  s_cbranch_scc1 {L}_P{starts[k]}")
            out[i] = "\n".join(txt)
    pad["n"] = 0; pad["on"] = False
def vr(b, n=1):
    return f"v{b}" if n == 1 else f"v[{b}:{b+n-1}]"
def sr(b, n=1):
    return f"s{b}" if n == 1 else f"s[{b}:{b+n-1}]"
def srd(dst, lo, nbytes, add=0):
    if add:
        E(f"  s_add_u32 s{dst}, s{lo}, {add}")
        E(f"  s_addc_u32 s{dst+1}, s{lo+1}, 0")
    else:
        E(f"  s_mov_b32 s{dst}, s{lo}")
        E(f"  s_mov_b32 s{dst+1}, s{lo+1}")
    E(f"  s_mov_b32 s{dst+2}, {nbytes}")
    E(f"  s_mov_b32 s{dst+3}, 0x00020000")
STAMP = os.environ.get("STAMP", "")
stamp_n = [0]
SB0 = 64 if STAMP == "2" else 60
def stamp(which):
    if STAMP != str(which): return
    i = stamp_n[0]; stamp_n[0] += 1
    E(f"  s_memtime s[{SB0+2*i}:{SB0+1+2*i}]")
def stamp_flush(which, dbg_lo, wave=0):
    if STAMP != str(which): return
    n = stamp_n[0]
    E("  s_waitcnt lgkmcnt(0) vmcnt(0)")
    E("  s_mov_b64 exec, -1")
    E(f"  s_cmp_lg_u32 s2, {os.environ.get('STAMPWG','0')}")
    E(f"  s_cbranch_scc1 LS{which}_skip")
    E("  s_cmp_lg_u32 s26, 0")
    E(f"  s_cbranch_scc1 LS{which}_skip")
    E(f"  s_mov_b32 s92, s{dbg_lo}")
    E(f"  s_mov_b32 s93, s{dbg_lo+1}")
    E("  s_mov_b32 s94, 256")
    E("  s_mov_b32 s95, 0x00020000")
    E("  s_mov_b64 exec, 1")
    E("  v_mov_b32 v1, 0")
    for i in range(n):
        E(f"  s_sub_u32 s58, s{SB0+2*i}, s{SB0}")
        E("  v_mov_b32 v2, s58")
        E(f"  buffer_store_dword v2, v1, s[92:95], 0 offen offset:{128+4*i}")
    E(f"LS{which}_skip:")
    stamp_n[0] = 0
RT = os.environ.get("RT")
def kernel_head(name):
    E(f".globl {name}")
    E(".p2align 8")
    E(f".type {name},@function")
    E(f"{name}:")
    if RT: E("  s_memrealtime s[98:99]")
def rt_end(which):
    if not RT: return
    E("  s_mov_b64 exec, -1")
    E("  s_waitcnt vmcnt(0) lgkmcnt(0)")
    E("  s_memrealtime s[100:101]")
    E("  s_cmp_lg_u32 s26, 0")
    E(f"  s_cbranch_scc1 LRT{which}")
    E(f"  s_add_u32 s92, s38, {(48<<20) + which*4096}")
    E("  s_addc_u32 s93, s39, 0")
    E("  s_mov_b32 s94, 4096")
    E("  s_mov_b32 s95, 0x00020000")
    E("  s_waitcnt lgkmcnt(0)")
    E("  s_mov_b64 exec, 1")
    E("  v_mov_b32 v2, s98")
    E("  v_mov_b32 v3, s100")
    E("  s_lshl_b32 s58, s2, 3")
    E("  v_mov_b32 v1, s58")
    E("  buffer_store_dwordx2 v[2:3], v1, s[92:95], 0 offen")
    E(f"LRT{which}:")
def kernel_desc(name, vgpr=168, sgpr=(102 if os.environ.get("RT") else 96), accoff=None):
    return f""".p2align 6
.amdhsa_kernel {name}
  .amdhsa_next_free_vgpr {vgpr}
  .amdhsa_next_free_sgpr {sgpr}
  .amdhsa_accum_offset {accoff or (vgpr+3)//4*4}
  .amdhsa_group_segment_fixed_size 0
  .amdhsa_kernarg_size 72
  .amdhsa_user_sgpr_count 2
  .amdhsa_user_sgpr_kernarg_segment_ptr 1
  .amdhsa_system_sgpr_workgroup_id_x 1
.end_amdhsa_kernel"""

def interleave(mf, other, per=int(os.environ.get("PER","1"))):
    other = list(other)
    for m in mf:
        E(m)
        for _ in range(per):
            if other: E(other.pop(0))
    for o in other: E(o)

NS = 4
SLOT = 32768
NST = 10
AUX = NS * SLOT
A_SUM, A_SQ, A_CS = AUX, AUX + 512, AUX + 1024
A_MEAN, A_RSTD = AUX + 2048, AUX + 2560
A_KV = AUX + 4096
A_CP = AUX + 12288
U2 = 62

V_RA, V_RB = 2, 4
V_T = 8
V_X, V_Y, V_ACC, V_E = 16, 48, 80, 144
def acc(mt, t): return V_ACC + (mt * 4 + t) * 4

def ln_gemm(name, which):
    k1 = which == 1
    L = f"L{which}"
    ldb = 3840 if k1 else 3456
    swapped = [False, False, False, True] if k1 else [True] * 4
    t0, t1, t2, t3, t4 = V_T, V_T + 1, V_T + 2, V_T + 3, V_T + 4
    kernel_head(name)
    E("  s_cmp_ge_u32 s2, 256")
    E(f"  s_cbranch_scc1 {L}_done")
    E("  s_load_dwordx2 s[4:5], s[0:1], 0" if k1 else "  s_load_dwordx2 s[4:5], s[0:1], 64")
    E(f"  s_load_dwordx2 s[6:7], s[0:1], {8 if k1 else 32}")
    E("  s_load_dwordx4 s[36:39], s[0:1], 56")
    stamp(which)
    E("  s_and_b32 s40, s2, 7")
    E("  s_lshr_b32 s41, s2, 3")
    E("  s_lshr_b32 s24, s40, 1")
    E("  s_lshl_b32 s24, s24, 2")
    E("  s_and_b32 s42, s41, 3")
    E("  s_add_u32 s24, s24, s42")
    E("  s_and_b32 s25, s40, 1")
    E("  s_lshl_b32 s25, s25, 3")
    E("  s_lshr_b32 s42, s41, 2")
    E("  s_add_u32 s25, s25, s42")
    E("  v_lshrrev_b32 v1, 6, v0")
    E("  v_and_b32 v0, 63, v0")
    E("  v_readfirstlane_b32 s26, v1")
    E("  s_waitcnt lgkmcnt(0)")
    if k1: srd(8, 4, 2048 * 1280)
    else: srd(8, 4, 2048 * 1280, H_OFF)
    if k1: srd(12, 6, 640 * ldb)
    else: srd(12, 4, 16 * 163840, W1T_OFF)
    srd(16, 38, WS_BYTES)
    srd(20, 36, 256)
    E("  s_cmp_ge_u32 s26, 4")
    E(f"  s_cbranch_scc1 {L}_loader")
    E("  s_lshr_b32 s27, s26, 1")
    E("  s_and_b32 s28, s26, 1")
    E(f"  v_and_b32 v{t0}, 15, v0")
    E(f"  v_lshrrev_b32 v{t1}, 4, v0")
    E(f"  v_and_b32 v{t2}, 7, v{t0}")
    E(f"  v_xor_b32 v{t2}, v{t2}, v{t1}")
    E(f"  v_lshlrev_b32 v{t2}, 4, v{t2}")
    E(f"  v_lshl_add_u32 v{t2}, v{t0}, 7, v{t2}")
    E("  s_lshl_b32 s40, s27, 13")
    E(f"  v_add_u32 v{V_RA}, s40, v{t2}")
    E(f"  v_xor_b32 v{V_RA+1}, 64, v{V_RA}")
    E(f"  v_lshrrev_b32 v{t2}, 2, v{t0}")
    E(f"  v_and_b32 v{t3}, 1, v{t1}")
    E(f"  v_lshl_add_u32 v{t3}, v{t3}, 2, v{t2}")
    E(f"  v_lshl_add_u32 v{t2}, v{t1}, 3, v{t2}")
    E(f"  v_lshlrev_b32 v{t2}, 8, v{t2}")
    E(f"  v_add_u32 v{t2}, 16384, v{t2}")
    E(f"  v_and_b32 v{t4}, 3, v{t0}")
    for t in range(4):
        u = V_E
        if k1:
            E("  s_mul_i32 s40, s28, 5")
            if t == 0:
                E(f"  v_add_u32 v{u}, s40, v{t4}")
            elif t == 1:
                E("  s_add_u32 s40, s40, 10")
                E(f"  v_add_u32 v{u}, s40, v{t4}")
            elif t == 3:
                E("  s_lshl_b32 s40, s28, 2")
                E("  s_add_u32 s40, s40, 20")
                E(f"  v_add_u32 v{u}, s40, v{t4}")
            else:
                E(f"  v_mul_u32_u24 v{u}, 10, v{t4}")
                E("  s_add_u32 s40, s40, 4")
                E(f"  v_add_u32 v{u}, s40, v{u}")
                E(f"  v_add_u32 v{u+1}, 26, v{t4}")
                E(f"  v_cmp_gt_u32 vcc, 2, v{t4}")
                E("  s_nop 1")
                E(f"  v_cndmask_b32 v{u}, v{u+1}, v{u}, vcc")
        else:
            E("  s_lshl_b32 s40, s28, 4")
            E(f"  s_add_u32 s40, s40, {4*t}")
            E(f"  v_add_u32 v{u}, s40, v{t4}")
        E(f"  v_lshrrev_b32 v{u+1}, 2, v{u}")
        E(f"  v_xor_b32 v{u+1}, v{u+1}, v{t3}")
        E(f"  v_lshl_add_u32 v{u+1}, v{u+1}, 5, v{t2}")
        E(f"  v_and_b32 v{u}, 3, v{u}")
        E(f"  v_lshl_add_u32 v{V_RB+t}, v{u}, 3, v{u+1}")
    for i in range(64):
        E(f"  v_mov_b32 v{V_ACC+i}, 0")
    E(f"  s_mov_b32 s52, {SLOT}")
    E(f"  v_lshl_or_b32 v{t3}, s26, 6, v0")
    if k1 and not os.environ.get("NOPF"):
        a, b, c = V_X, V_X + 1, V_X + 2
        PFR = [165, 166, 167, 15]
        E("  s_movk_i32 s41, 6554")
        E(f"  v_mul_u32_u24 v{a}, s41, v{t3}")
        E(f"  v_lshrrev_b32 v{a}, 16, v{a}")
        E(f"  v_mul_u32_u24 v{b}, 10, v{a}")
        E(f"  v_sub_u32 v{b}, v{t3}, v{b}")
        E("  s_movk_i32 s41, 10923")
        E("  s_and_b32 s40, s25, 7")
        E("  s_lshl_b32 s40, s40, 4")
        E("  s_lshl_b32 s42, s24, 7")
        E("  s_add_u32 s40, s40, s42")
        E(f"  v_add_u32 v{a}, s40, v{a}")
        E(f"  v_mul_u32_u24 v{a}, 1280, v{a}")
        E(f"  v_lshl_add_u32 v{a}, v{b}, 7, v{a}")
        E(f"  v_cmp_gt_u32 vcc, 160, v{t3}")
        E(f"  v_cndmask_b32 v164, -1, v{a}, vcc")
        E("  s_and_b32 s40, s24, 3")
        E("  s_mul_i32 s40, s40, 160")
        E("  s_mul_i32 s42, s25, 80")
        for r in range(4):
            E(f"  v_add_u32 v{c}, {256*r}, v{t3}")
            E(f"  v_mul_u32_u24 v{a}, s41, v{c}")
            E(f"  v_lshrrev_b32 v{a}, 16, v{a}")
            E(f"  v_mul_u32_u24 v{b}, 6, v{a}")
            E(f"  v_sub_u32 v{b}, v{c}, v{b}")
            E(f"  v_add_u32 v{a}, s40, v{a}")
            E(f"  v_mul_u32_u24 v{a}, 3840, v{a}")
            E(f"  v_add_u32 v{a}, s42, v{a}")
            E(f"  v_lshrrev_b32 v{V_X+3}, 1, v{b}")
            E(f"  v_add_u32 v{V_X+3}, 1, v{V_X+3}")
            E(f"  v_cmp_eq_u32 vcc, 3, v{V_X+3}")
            E(f"  v_cndmask_b32 v{V_X+3}, v{V_X+3}, 0, vcc")
            E(f"  v_mul_u32_u24 v{V_X+3}, 1280, v{V_X+3}")
            E(f"  v_add_u32 v{a}, v{a}, v{V_X+3}")
            E(f"  v_and_b32 v{b}, 1, v{b}")
            E(f"  v_mul_u32_u24 v{b}, 76, v{b}")
            E(f"  v_add_u32 v{a}, v{a}, v{b}")
            E(f"  v_cmp_gt_u32 vcc, 960, v{c}")
            E(f"  v_cndmask_b32 v{PFR[r]}, -1, v{a}, vcc")
    if k1:
        for i in range(4):
            E(f"  v_mov_b32 v{V_E+i}, 0")
        E(f"  v_lshlrev_b32 v{t4}, 4, v{t3}")
        E(f"  v_add_u32 v{t2}, {A_KV}, v{t4}")
        E(f"  ds_write_b128 v{t2}, {vr(V_E,4)}")
        E("  s_cmp_ge_u32 s2, 16")
        E(f"  s_cbranch_scc1 {L}_nozero")
        E("  s_mul_i32 s40, s2, 3360")
        E(f"  s_add_u32 s40, s40, {KV_OFF}")
        E(f"  v_cmp_gt_u32 vcc, 210, v{t3}")
        E("  s_and_saveexec_b64 s[46:47], vcc")
        E(f"  buffer_store_dwordx4 {vr(V_E,4)}, v{t4}, s[16:19], s40 offen sc0 sc1")
        E("  s_mov_b64 exec, s[46:47]")
        E("  s_waitcnt vmcnt(0)")
        E("  s_lshl_b32 s40, s2, 2")
        E(f"  v_mov_b32 v{t2}, s40")
        E(f"  v_mov_b32 v{t4}, 1")
        E("  s_mov_b64 exec, 1")
        E(f"  buffer_atomic_add v{t4}, v{t2}, s[20:23], 0 offen sc1")
        E("  s_mov_b64 exec, -1")
        E(f"{L}_nozero:")
    else:
        E("  s_cmp_ge_u32 s26, 2")
        E(f"  s_cbranch_scc1 {L}_nors")
        E("  s_lshl_b32 s40, s24, 13")
        E(f"  s_add_u32 s40, s40, {RS_OFF}")
        E(f"  v_lshlrev_b32 v{t4}, 6, v{t3}")
        for i in range(4):
            E(f"  buffer_load_dwordx4 {vr(V_X+4*i,4)}, v{t4}, s[16:19], s40 offen offset:{16*i}")
        E("  s_waitcnt vmcnt(0)")
        for i in range(1, 8):
            E(f"  v_add_f32 v{V_X}, v{V_X}, v{V_X+2*i}")
            E(f"  v_add_f32 v{V_X+1}, v{V_X+1}, v{V_X+2*i+1}")
        fin_stats(V_X, V_X + 1, t3, t4)
        E(f"  s_branch {L}_nors2")
        E(f"{L}_nors:")
        E("  s_lshl_b32 s40, s25, 13")
        E(f"  s_add_u32 s40, s40, {CSP_OFF-512}")
        E(f"  v_lshlrev_b32 v{t4}, 2, v{t3}")
        for i in range(16):
            E(f"  buffer_load_dword v{V_X+i}, v{t4}, s[16:19], s40 offen offset:{512*i if 512*i < 4096 else 0}" if i < 8 else f"  buffer_load_dword v{V_X+i}, v{t4}, s[16:19], s41 offen offset:{512*(i-8)}")
            if i == 0: E("  s_add_u32 s41, s40, 4096")
        E("  s_waitcnt vmcnt(0)")
        for i in range(1, 16):
            E(f"  v_add_f32 v{V_X}, v{V_X}, v{V_X+i}")
        E(f"  v_add_u32 v{t4}, {A_CS-512}, v{t4}")
        E(f"  ds_write_b32 v{t4}, v{V_X}")
        E(f"{L}_nors2:")
    E("  s_waitcnt lgkmcnt(0)")
    stamp(which)
    PFE = os.environ.get("PFE", "late")
    def pf_issue():
        E("  buffer_load_dword v164, v164, s[8:11], 0 offen")
        for r in (165, 166, 167, 15):
            E(f"  buffer_load_dword v{r}, v{r}, s[12:15], 0 offen")
    if k1 and PFE == "early": pf_issue()
    E("  s_barrier")
    if k1 and PFE == "late": pf_issue()
    stamp(which)
    def rd(base, kk):
        r = []
        for mt in range(4):
            r.append(f"  ds_read_b128 {vr(base+mt*4,4)}, v{V_RA+kk} offset:{mt*2048}")
        for t in range(4):
            for h in range(2):
                r.append(f"  ds_read_b64_tr_b16 {vr(base+16+t*4+h*2,2)}, v{V_RB+t} offset:{kk*8192+h*1024}")
        return r
    def mf(base):
        seq = []
        for mt in range(4):
            for t in range(4):
                a, b = vr(base + mt * 4, 4), vr(base + 16 + t * 4, 4)
                if swapped[t]: a, b = b, a
                seq.append(f"  v_mfma_f32_16x16x32_bf16 {vr(acc(mt,t),4)}, {a}, {b}, {vr(acc(mt,t),4)}")
        return seq
    for r in rd(V_X, 0): E(r)
    E("  s_mov_b32 s29, 0")
    E("  s_mov_b32 s30, 0")
    ST = V_E
    if k1:
        for i in range(16): E(f"  v_mov_b32 v{ST+i}, 0")
        for i in range(4): E(f"  v_mov_b32 v{ST+16+i}, 0x3f803f80")
        E(f"  v_and_b32 v{t0}, 15, v0")
        E(f"  v_cmp_lt_u32 s[48:49], 7, v{t0}")
        E("  s_cmp_eq_u32 s26, 1")
        E(f"  s_cbranch_scc1 {L}_loop1")
        E("  s_cmp_eq_u32 s26, 2")
        E(f"  s_cbranch_scc1 {L}_loop2")
        E("  s_cmp_eq_u32 s26, 3")
        E(f"  s_cbranch_scc1 {L}_loop3")
    def mfs(base, WM, WN):
        seq = mf(base)
        if not k1: return seq
        pre = []
        if WN == 1:
            pre = [f"  v_cndmask_b32 v{base+16+8+r}, v{base+16+8+r}, v{ST+16}, s[48:49]" for r in range(4)]
        ex = []
        for q in range(2):
            mt = 2 * WN + q
            ex.append(f"  v_mfma_f32_16x16x32_bf16 {vr(ST+4*q,4)}, {vr(base+4*mt,4)}, {vr(base+4*mt,4)}, {vr(ST+4*q,4)}")
            t = 2 * WM + q
            ex.append(None if False else (t, q))
        out_ = pre + seq[:8]
        for q in range(2):
            mt = 2 * WN + q
            out_.append(f"  v_mfma_f32_16x16x32_bf16 {vr(ST+4*q,4)}, {vr(base+4*mt,4)}, {vr(base+4*mt,4)}, {vr(ST+4*q,4)}")
        out_ += seq[8:]
        for q in range(2):
            t = 2 * WM + q
            out_.append(f"  v_mfma_f32_16x16x32_bf16 {vr(ST+8+4*q,4)}, {vr(ST+16,4)}, {vr(base+16+4*t,4)}, {vr(ST+8+4*q,4)}")
        return out_
    for w in range(4 if k1 else 1):
        WM, WN = w >> 1, w & 1
        E(f"{L}_loop{w}:")
        E(f"  s_add_u32 s30, s30, {SLOT}")
        E(f"  s_cmp_eq_u32 s30, {NS*SLOT}")
        E(f"  s_cselect_b32 s40, {-(NS-1)*SLOT}, s52")
        E("  s_cselect_b32 s30, 0, s30")
        E("  s_waitcnt lgkmcnt(0)")
        adds = [f"  v_add_u32 v{r}, s40, v{r}" for r in (V_RA, V_RA + 1, V_RB, V_RB + 1, V_RB + 2, V_RB + 3)]
        interleave(mfs(V_X, WM, WN), rd(V_Y, 1) + adds)
        E(f"  s_cmp_eq_u32 s29, {NST-1}")
        E(f"  s_cbranch_scc1 {L}_last{w}")
        E("  s_add_u32 s29, s29, 1")
        E("  s_waitcnt lgkmcnt(0)")
        E("  s_barrier")
        interleave(mfs(V_Y, WM, WN), rd(V_X, 0))
        E(f"  s_branch {L}_loop{w}")
        E(f"{L}_last{w}:")
        E("  s_waitcnt lgkmcnt(0)")
        for m in mfs(V_Y, WM, WN): E(m)
        if k1:
            E(f"  v_lshrrev_b32 v{t1}, 4, v0")
            E(f"  v_lshrrev_b32 v{t2}, 2, v{t0}")
            E(f"  v_cmp_eq_u32 s[50:51], v{t1}, v{t2}")
            E(f"  v_and_b32 v{t2}, 3, v{t0}")
            E("  s_nop 7")
            for q in range(2):
                E(f"  v_mov_b32 v{t3}, v{ST+4*q}")
                for r in range(1, 4):
                    E(f"  v_cmp_eq_u32 vcc, {r}, v{t2}")
                    E("  s_nop 1")
                    E(f"  v_cndmask_b32 v{t3}, v{t3}, v{ST+4*q+r}, vcc")
                E(f"  v_lshlrev_b32 v{t4}, 2, v{t0}")
                E(f"  v_add_u32 v{t4}, {A_SQ + (64*WM + 16*(2*WN+q))*4}, v{t4}")
                E("  s_mov_b64 exec, s[50:51]")
                E(f"  ds_write_b32 v{t4}, v{t3}")
                E("  s_mov_b64 exec, -1")
            for q in range(2):
                t = 2 * WM + q
                if t == 0: E(f"  v_lshlrev_b32 v{t4}, 2, v{t0}"); off = (20*WN)*4
                elif t == 1: E(f"  v_lshlrev_b32 v{t4}, 2, v{t0}"); off = (40+20*WN)*4
                elif t == 3: E(f"  v_lshlrev_b32 v{t4}, 2, v{t0}"); off = (80+16*WN)*4
                else:
                    E(f"  v_lshlrev_b32 v{t4}, 2, v{t0}")
                    E(f"  v_add_u32 v{t3}, {(20*WN+16)*4}, v{t4}")
                    E(f"  v_add_u32 v{t1}, {(52+20*WN)*4}, v{t4}")
                    E(f"  v_cmp_gt_u32 vcc, 4, v{t0}")
                    E("  s_nop 1")
                    E(f"  v_cndmask_b32 v{t3}, v{t1}, v{t3}, vcc")
                    E(f"  v_add_u32 v{t1}, {104*4}, v{t4}")
                    E(f"  v_cmp_gt_u32 vcc, 8, v{t0}")
                    E("  s_nop 1")
                    E(f"  v_cndmask_b32 v{t4}, v{t1}, v{t3}, vcc")
                    off = 0
                E(f"  v_add_u32 v{t4}, {A_CS+off}, v{t4}")
                if t == 2 and WN == 1:
                    E("  s_mov_b64 exec, 0xff")
                else:
                    E("  s_mov_b64 exec, 0xffff")
                E(f"  ds_write_b32 v{t4}, v{ST+8+4*q}")
                E("  s_mov_b64 exec, -1")
            if WN == 1:
                E(f"  v_lshrrev_b32 v{t1}, 4, v0")
                E(f"  v_lshlrev_b32 v{t4}, 4, v{t1}")
                E(f"  v_add_u32 v{t4}, {A_SUM + 64*WM*4}, v{t4}")
                E("  s_mov_b32 s50, 0x01000100")
                E("  s_mov_b32 s51, 0x01000100")
                E("  s_mov_b64 exec, s[50:51]")
                for mt in range(4):
                    E(f"  ds_write_b128 v{t4}, {vr(acc(mt,2),4)} offset:{64*mt}")
                E("  s_mov_b64 exec, -1")
            E(f"  s_branch {L}_fins")
    if not k1: stamp(which)
    if k1:
        E(f"{L}_fins:")
        stamp(which)
        E("  s_waitcnt lgkmcnt(0)")
        E("  s_barrier")
        E("  s_cmp_ge_u32 s26, 2")
        E(f"  s_cbranch_scc1 {L}_fb")
        E(f"  v_lshl_or_b32 v{t3}, s26, 6, v0")
        E(f"  v_lshlrev_b32 v{t4}, 2, v{t3}")
        E(f"  v_add_u32 v{t4}, {A_SUM}, v{t4}")
        E(f"  ds_read_b32 v{V_X}, v{t4}")
        E(f"  ds_read_b32 v{V_X+1}, v{t4} offset:512")
        E("  s_waitcnt lgkmcnt(0)")
        fin_stats(V_X, V_X + 1, t3, t4)
        E("  s_waitcnt lgkmcnt(0)")
        E(f"{L}_fb:")
        E("  s_barrier")
    stamp(which)
    E("  s_mov_b32 s45, 0x3fb8aa3b")
    pads_on()
    if k1: k1_epilogue()
    else: k3_epilogue()
    pads_off()
    stamp(which)
    stamp_flush(which, 36)
    rt_end(which)
    E(f"  s_branch {L}_done")
    E(f"{L}_loader:")
    E("  s_sub_u32 s27, s26, 4")
    LA, LB = 2, 4
    E(f"  v_lshrrev_b32 v{t0}, 3, v0")
    E(f"  v_and_b32 v{t1}, 7, v0")
    E(f"  v_xor_b32 v{t1}, v{t1}, v{t0}")
    E(f"  v_lshlrev_b32 v{t1}, 4, v{t1}")
    E("  s_lshl_b32 s40, s24, 7")
    E("  s_lshl_b32 s41, s27, 4")
    E("  s_add_u32 s40, s40, s41")
    E(f"  v_add_u32 v{t0}, s40, v{t0}")
    E("  s_movk_i32 s41, 1280")
    E(f"  v_mad_u32_u24 v{LA}, v{t0}, s41, v{t1}")
    E(f"  v_add_u32 v{LA+1}, {8*1280-1024}, v{LA}")
    E(f"  v_lshrrev_b32 v{t0}, 4, v0")
    E(f"  v_and_b32 v{t1}, 15, v0")
    E("  s_lshl_b32 s40, s27, 3")
    E(f"  v_add_u32 v{t4}, s40, v{t0}")
    E("  s_and_b32 s40, s27, 1")
    E("  s_lshl_b32 s40, s40, 2")
    E(f"  v_add_u32 v{t0}, s40, v{t0}")
    E(f"  v_lshrrev_b32 v{t2}, 1, v{t1}")
    E(f"  v_xor_b32 v{t2}, v{t2}, v{t0}")
    E(f"  v_lshlrev_b32 v{t2}, 1, v{t2}")
    E(f"  v_and_b32 v{t3}, 1, v{t1}")
    E(f"  v_or_b32 v{t2}, v{t2}, v{t3}")
    if k1:
        E(f"  v_min_u32 v{t2}, 14, v{t2}")
        E(f"  v_lshlrev_b32 v{t3}, 4, v{t2}")
        E(f"  v_add_u32 v20, 1280, v{t3}")
        E(f"  v_add_u32 v21, {2560-80}, v{t3}")
        E(f"  v_subrev_u32 v22, 160, v{t3}")
        E(f"  v_cmp_gt_u32 vcc, 5, v{t2}")
        E("  s_nop 1")
        E("  v_cndmask_b32 v21, v21, v20, vcc")
        E(f"  v_cmp_gt_u32 vcc, 10, v{t2}")
        E("  s_nop 1")
        E(f"  v_cndmask_b32 v{t3}, v22, v21, vcc")
        E("  s_mul_i32 s42, s25, 80")
    else:
        E(f"  v_lshlrev_b32 v{t3}, 4, v{t2}")
        E("  s_mul_i32 s42, s25, 224")
    if k1:
        E(f"  v_add_u32 v{t3}, s42, v{t3}")
        E(f"  s_movk_i32 s41, {ldb}")
        E(f"  v_mad_u32_u24 v{LB}, v{t4}, s41, v{t3}")
        E(f"  v_add_u32 v{LB+1}, {4*ldb-1024}, v{LB}")
    else:
        E("  s_mul_i32 s42, s25, 163840")
        E("  s_lshl_b32 s41, s27, 11")
        E("  s_add_u32 s42, s42, s41")
        E(f"  v_lshlrev_b32 v{LB}, 4, v0")
        E(f"  v_add_u32 v{LB}, s42, v{LB}")
        E(f"  v_mov_b32 v{LB+1}, v{LB}")
    E("  s_lshl_b32 s34, s27, 11")
    E("  s_mov_b32 s31, 0")
    E("  s_mov_b32 s32, 0")
    E("  s_mov_b32 s33, 0")
    ROT = k1 and not os.environ.get("NOROT")
    if ROT:
        E("  s_mul_i32 s40, s24, 3")
        E("  s_add_u32 s40, s40, s25")
        E("  s_mul_i32 s41, s40, 205")
        E("  s_lshr_b32 s41, s41, 11")
        E("  s_mul_i32 s41, s41, 10")
        E("  s_sub_u32 s40, s40, s41")
        E("  s_lshl_b32 s32, s40, 7")
        E(f"  s_mul_i32 s33, s40, {64*ldb}")
    def dma_stage():
        E("  s_add_u32 s35, s31, s34")
        E("  s_mov_b32 m0, s35")
        E("  s_add_u32 s35, s35, 16384")
        for j in range(2):
            E(f"  buffer_load_dwordx4 v{LA+j}, s[8:11], s32 offen offset:{j*1024} lds")
        E("  s_mov_b32 m0, s35")
        E("  s_add_u32 s32, s32, 128")
        for j in range(2):
            E(f"  buffer_load_dwordx4 v{LB+j}, s[12:15], s33 offen offset:{j*1024} lds")
        E(f"  s_add_u32 s33, s33, {64*ldb if k1 else 16384}")
        if ROT:
            E("  s_cmp_eq_u32 s32, 1280")
            E("  s_cselect_b32 s32, 0, s32")
            E("  s_cselect_b32 s33, 0, s33")
        E(f"  s_add_u32 s31, s31, {SLOT}")
        E(f"  s_cmp_eq_u32 s31, {NS*SLOT}")
        E("  s_cselect_b32 s31, 0, s31")
    for s in range(NS):
        dma_stage()
    pf_enter(L, 8, "s27")
    E(f"  s_waitcnt vmcnt({4*(NS-1)})")
    E("  s_barrier")
    NX = 0
    for sv in range(NST - 1):
        issued = min(NST - 1, sv + NS - 1)
        extra = NX if sv > NST - NS else 0
        E(f"  s_waitcnt vmcnt({4*(issued-(sv+1)) + NX})")
        E("  s_barrier")
        if sv + NS < NST:
            dma_stage()
        if k1 and sv + NS == NST - 1:
            NX = relayout_loads()
    if k1:
        relayout_finish()
    E(f"{L}_done:")
    E("  s_endpgm")

RL_SA, RL_DA, RL_DT = 16, 24, 32
def relayout_loads():
    E("  s_load_dwordx2 s[64:65], s[0:1], 32")
    E("  s_load_dwordx2 s[66:67], s[0:1], 40")
    E("  s_load_dwordx2 s[68:69], s[0:1], 16")
    SA_, DA_, DT = RL_SA, RL_DA, RL_DT
    a, b, c, d, tid = 60, 61, 62, 63, 59
    E(f"  v_lshl_or_b32 v{tid}, s27, 6, v0")
    for i in range(20): E(f"  v_mov_b32 v{DT+i}, 0")
    E("  s_lshr_b32 s40, s2, 4")
    E("  s_and_b32 s41, s2, 15")
    E("  s_mul_i32 s41, s41, 40")
    E("  s_mul_i32 s42, s40, 224")
    E("  s_movk_i32 s43, 3456")
    for r in range(2):
        E(f"  v_add_u32 v{a}, {512*r}, v{tid}")
        E(f"  v_lshrrev_b32 v{b}, 4, v{a}")
        E(f"  v_add_u32 v{b}, s41, v{b}")
        E(f"  v_and_b32 v{c}, 15, v{a}")
        E(f"  v_bfe_u32 v{d}, v{b}, 3, 1")
        E(f"  v_lshlrev_b32 v{d}, 2, v{d}")
        E(f"  v_and_or_b32 v{d}, v{b}, 3, v{d}")
        E(f"  v_lshrrev_b32 v{DA_+r}, 1, v{c}")
        E(f"  v_xor_b32 v{d}, v{d}, v{DA_+r}")
        E(f"  v_and_b32 v{DA_+r}, 1, v{c}")
        E(f"  v_lshl_or_b32 v{d}, v{d}, 1, v{DA_+r}")
        E(f"  v_lshlrev_b32 v{DA_+r}, 8, v{b}")
        E(f"  v_lshl_add_u32 v{DA_+r}, v{d}, 4, v{DA_+r}")
        E(f"  v_lshl_add_u32 v{d}, v{c}, 4, s42")
        E(f"  v_mad_u32_u24 v{SA_+r}, v{b}, s43, v{d}")
        E(f"  v_cmp_gt_u32 s[{80+2*r}:{81+2*r}], 14, v{c}")
        E(f"  v_cmp_gt_u32 vcc, s43, v{d}")
        E(f"  s_and_b64 s[{80+2*r}:{81+2*r}], s[{80+2*r}:{81+2*r}], vcc")
        E(f"  v_cmp_gt_u32 vcc, 640, v{a}")
        E(f"  s_mov_b64 s[{70+2*r}:{71+2*r}], vcc")
        E(f"  s_and_b64 s[{80+2*r}:{81+2*r}], s[{80+2*r}:{81+2*r}], vcc")
    E("  s_lshr_b32 s40, s2, 5")
    E("  s_and_b32 s41, s2, 31")
    E("  s_movk_i32 s43, 6554")
    E("  s_mul_i32 s42, s40, 160")
    for r in range(3):
        wo = r == 2
        q = 2 + r
        E(f"  v_add_u32 v{a}, {0 if wo else 512*r}, v{tid}")
        E(f"  v_mul_u32_u24 v{b}, s43, v{a}")
        E(f"  v_lshrrev_b32 v{b}, 16, v{b}")
        E(f"  v_mul_u32_u24 v{c}, 10, v{b}")
        E(f"  v_sub_u32 v{c}, v{a}, v{c}")
        E(f"  s_mul_i32 s47, s41, {20 if wo else 54}")
        E(f"  v_add_u32 v{b}, s47, v{b}")
        E(f"  v_lshlrev_b32 v{c}, 4, v{c}")
        E(f"  v_mul_u32_u24 v{SA_+q}, 1280, v{b}")
        E(f"  v_add_u32 v{SA_+q}, v{SA_+q}, v{c}")
        E(f"  v_add_u32 v{SA_+q}, s42, v{SA_+q}")
        if wo:
            E(f"  v_mul_u32_u24 v{DA_+q}, 160, v{b}")
        else:
            E(f"  v_and_b32 v{d}, 0x13, v{b}")
            E(f"  v_bfe_u32 v{DA_+q}, v{b}, 2, 1")
            E(f"  v_lshl_or_b32 v{d}, v{DA_+q}, 3, v{d}")
            E(f"  v_bfe_u32 v{DA_+q}, v{b}, 3, 1")
            E(f"  v_lshl_or_b32 v{d}, v{DA_+q}, 2, v{d}")
            E(f"  v_mul_u32_u24 v{d}, 160, v{d}")
            E(f"  v_lshrrev_b32 v{DA_+q}, 5, v{b}")
            E(f"  v_mul_u32_u24 v{DA_+q}, 5120, v{DA_+q}")
            E(f"  v_add_u32 v{DA_+q}, v{DA_+q}, v{d}")
        E(f"  v_add_u32 v{DA_+q}, v{DA_+q}, v{c}")
        E(f"  v_cmp_gt_u32 vcc, {200 if wo else 540}, v{a}")
        E(f"  s_mov_b64 s[{70+2*q}:{71+2*q}], vcc")
    E("  s_waitcnt lgkmcnt(0)")
    for (dd, lo, nb) in [(84, 64, 640 * 3456), (88, 66, 1728 * 1280), (92, 68, 640 * 1280)]:
        srd(dd, lo, nb)
    for r in range(5):
        q = 84 if r < 2 else (88 if r < 4 else 92)
        mk = 80 + 2 * r if r < 2 else 70 + 2 * r
        E(f"  v_cndmask_b32 v{SA_+r}, 0, v{SA_+r}, s[{mk}:{mk+1}]")
        E(f"  buffer_load_dwordx4 {vr(DT+4*r,4)}, v{SA_+r}, s[{q}:{q+3}], 0 offen")
    return 5

def relayout_finish():
    SA_, DA_, DT = RL_SA, RL_DA, RL_DT
    srd(16, 38, WS_BYTES)
    E("  s_lshr_b32 s40, s2, 5")
    E("  s_lshr_b32 s41, s2, 4")
    E("  s_mul_i32 s41, s41, 163840")
    E(f"  s_add_u32 s41, s41, {W1T_OFF}")
    E("  s_mul_i32 s42, s40, 276480")
    E(f"  s_add_u32 s42, s42, {W2T_OFF}")
    E("  s_mul_i32 s43, s40, 102400")
    E(f"  s_add_u32 s43, s43, {WOT_OFF}")
    E("  s_waitcnt vmcnt(0)")
    for r in range(5):
        so = "s41" if r < 2 else ("s42" if r < 4 else "s43")
        E(f"  s_mov_b64 exec, s[{70+2*r}:{71+2*r}]")
        E(f"  s_cbranch_execz LRS{r}")
        E(f"  buffer_store_dwordx4 {vr(DT+4*r,4)}, v{DA_+r}, s[16:19], {so} offen sc0 sc1")
        E(f"LRS{r}:")
    E("  s_mov_b64 exec, -1")
    for i in range(4):
        E(f"  v_cndmask_b32 v{DT+4+i}, 0, v{DT+4+i}, s[72:73]")
    C = 64
    for i in range(4):
        for r in range(2):
            x = DT + 4 * r + i
            E(f"  v_lshlrev_b32 v60, 16, v{x}")
            E(f"  v_and_b32 v61, 0xffff0000, v{x}")
            if r == 0:
                E(f"  v_mov_b32 v{C+2*i}, v60")
                E(f"  v_mov_b32 v{C+2*i+1}, v61")
            else:
                E(f"  v_pk_add_f32 {vr(C+2*i,2)}, {vr(C+2*i,2)}, v[60:61]")
    for c in range(8):
        r = C + c
        E(f"  v_mov_b32 v62, v{r}")
        E("  s_nop 1")
        E(f"  v_permlane32_swap_b32 v{r}, v62")
        E("  s_nop 1")
        E(f"  v_add_f32 v{r}, v{r}, v62")
        E(f"  v_mov_b32 v62, v{r}")
        E("  s_nop 1")
        E(f"  v_permlane16_swap_b32 v{r}, v62")
        E("  s_nop 1")
        E(f"  v_add_f32 v{r}, v{r}, v62")
    E("  v_and_b32 v60, 15, v0")
    E("  v_lshlrev_b32 v60, 5, v60")
    E("  s_lshl_b32 s40, s27, 9")
    E(f"  s_add_u32 s40, s40, {A_CP}")
    E("  v_add_u32 v60, s40, v60")
    E(f"  ds_write_b128 v60, {vr(C,4)}")
    E(f"  ds_write_b128 v60, {vr(C+4,4)} offset:16")
    E("  s_waitcnt lgkmcnt(0)")
    E("  s_barrier")
    E("  s_cmp_ge_u32 s27, 2")
    E("  s_cbranch_scc1 L1_rf2")
    E("  v_lshl_or_b32 v60, s27, 6, v0")
    E("  v_lshlrev_b32 v60, 2, v60")
    E(f"  v_add_u32 v61, {A_CP}, v60")
    for q in range(8):
        E(f"  ds_read_b32 v{40+q}, v61 offset:{512*q}")
    E("  s_waitcnt lgkmcnt(0)")
    for q in range(1, 8):
        E(f"  v_add_f32 v40, v40, v{40+q}")
    E("  s_lshl_b32 s40, s2, 9")
    E(f"  s_add_u32 s40, s40, {CSP_OFF}")
    E("  buffer_store_dword v40, v60, s[16:19], s40 offen")
    E("L1_rf2:")
    E("  s_barrier")

def fin_stats(vs, vq, vrow, tmp):
    E("  s_mov_b32 s40, 0x3acccccd")
    E(f"  v_mul_f32 v{vs}, s40, v{vs}")
    E(f"  v_mul_f32 v{vq}, s40, v{vq}")
    E(f"  v_fma_f32 v{vq}, -v{vs}, v{vs}, v{vq}")
    E(f"  v_max_f32 v{vq}, 0, v{vq}")
    E(f"  v_add_f32 v{vq}, 0x3727c5ac, v{vq}")
    E(f"  v_rsq_f32 v{vq}, v{vq}")
    E(f"  v_lshlrev_b32 v{tmp}, 2, v{vrow}")
    E(f"  v_add_u32 v{tmp}, {A_MEAN}, v{tmp}")
    E(f"  ds_write_b32 v{tmp}, v{vs}")
    E(f"  ds_write_b32 v{tmp}, v{vq} offset:512")

def k1_epilogue():
    t0, t1, t2, t3, t4 = V_T, V_T + 1, V_T + 2, V_T + 3, V_T + 4
    CSN, CSV3, MN, RN, MS, RS = 2, 16, 20, 36, 52, 53
    pk = [64, 72, 144, 152]
    TM = 160
    E("  s_waitcnt vmcnt(0)")
    E(f"  v_and_b32 v{t0}, 15, v0")
    E(f"  v_lshrrev_b32 v{t1}, 4, v0")
    E("  s_lshl_b32 s40, s27, 8")
    E(f"  s_add_u32 s40, s40, {A_MEAN}")
    E(f"  v_lshl_add_u32 v{t2}, v{t0}, 2, s40")
    E(f"  v_lshl_add_u32 v{t3}, v{t1}, 4, s40")
    for mt in range(4):
        E(f"  ds_read_b128 {vr(MN+4*mt,4)}, v{t3} offset:{64*mt}")
        E(f"  ds_read_b128 {vr(RN+4*mt,4)}, v{t3} offset:{512+64*mt}")
        E(f"  ds_read_b32 v{MS+2*mt}, v{t2} offset:{64*mt}")
        E(f"  ds_read_b32 v{RS+2*mt}, v{t2} offset:{512+64*mt}")
    E("  s_mul_i32 s41, s28, 80")
    E(f"  s_add_u32 s41, s41, {A_CS}")
    E(f"  v_lshl_add_u32 v{t2}, v{t0}, 2, s41")
    E(f"  ds_read_b32 v{CSN}, v{t2}")
    E(f"  ds_read_b32 v{CSN+2}, v{t2} offset:160")
    E(f"  v_add_u32 v{t3}, 64, v{t2}")
    E(f"  v_add_u32 v{t4}, {52*4}, v{t2}")
    E(f"  v_cmp_gt_u32 vcc, 4, v{t0}")
    E("  s_nop 1")
    E(f"  v_cndmask_b32 v{t3}, v{t4}, v{t3}, vcc")
    E(f"  v_lshlrev_b32 v{t4}, 2, v{t0}")
    E(f"  v_add_u32 v{t4}, {A_CS+104*4}, v{t4}")
    E(f"  v_cmp_gt_u32 vcc, 8, v{t0}")
    E("  s_nop 1")
    E(f"  v_cndmask_b32 v{t3}, v{t4}, v{t3}, vcc")
    E(f"  ds_read_b32 v{CSN+4}, v{t3}")
    E("  s_lshl_b32 s41, s28, 6")
    E(f"  s_add_u32 s41, s41, {A_CS+320}")
    E(f"  v_lshl_add_u32 v{t3}, v{t1}, 4, s41")
    E(f"  ds_read_b128 {vr(CSV3,4)}, v{t3}")
    E("  s_mov_b32 s46, 0x358637bd")
    E(f"  v_and_b32 v{t2}, 12, v{t0}")
    E(f"  v_cmp_eq_u32 s[48:49], 4, v{t2}")
    E("  s_waitcnt lgkmcnt(0)")
    E("  s_mov_b32 s54, s45")
    E("  s_mov_b32 s55, s45")
    E("  s_mov_b32 s56, s46")
    E("  s_mov_b32 s57, s46")
    def phi4(a):
        for r in range(4): E(f"  v_min_f32 v{TM+r}, 0, v{a+r}")
        for p in range(2): E(f"  v_pk_mul_f32 {vr(TM+2*p,2)}, {vr(TM+2*p,2)}, s[54:55]")
        for r in range(4): E(f"  v_exp_f32 v{TM+r}, v{TM+r}")
        for r in range(4): E(f"  v_max_f32 v{a+r}, 0, v{a+r}")
        for p in range(2): E(f"  v_pk_add_f32 {vr(TM+2*p,2)}, {vr(TM+2*p,2)}, s[56:57]")
        for p in range(2): E(f"  v_pk_add_f32 {vr(a+2*p,2)}, {vr(a+2*p,2)}, {vr(TM+2*p,2)}")
    for mt in range(4):
        for t in range(3):
            a = acc(mt, t)
            for p in range(2):
                E(f"  v_pk_fma_f32 {vr(a+2*p,2)}, {vr(MN+4*mt+2*p,2)}, {vr(CSN+2*t,2)}, {vr(a+2*p,2)} op_sel_hi:[1,0,1] neg_lo:[1,0,0] neg_hi:[1,0,0]")
            for p in range(2):
                E(f"  v_pk_mul_f32 {vr(a+2*p,2)}, {vr(a+2*p,2)}, {vr(RN+4*mt+2*p,2)}")
        a = acc(mt, 3)
        for p in range(2):
            E(f"  v_pk_fma_f32 {vr(a+2*p,2)}, {vr(CSV3+2*p,2)}, {vr(MS+2*mt,2)}, {vr(a+2*p,2)} op_sel_hi:[1,0,1] neg_lo:[0,1,0] neg_hi:[0,1,0]")
        for p in range(2):
            E(f"  v_pk_mul_f32 {vr(a+2*p,2)}, {vr(a+2*p,2)}, {vr(MS+2*mt,2)} op_sel:[0,1] op_sel_hi:[1,1]")
        phi4(acc(mt, 0)); phi4(acc(mt, 3))
        a = acc(mt, 2)
        for r in range(4): E(f"  v_mov_b32 v{TM+4+r}, v{a+r}")
        phi4(a)
        for r in range(4): E(f"  v_cndmask_b32 v{a+r}, v{a+r}, v{TM+4+r}, s[48:49]")
        for t in range(4):
            a = acc(mt, t)
            E(f"  v_cvt_pk_bf16_f32 v{pk[t]+2*mt}, v{a}, v{a+1}")
            E(f"  v_cvt_pk_bf16_f32 v{pk[t]+2*mt+1}, v{a+2}, v{a+3}")
    E("  s_lshl_b32 s40, s24, 1")
    E("  s_add_u32 s40, s40, s27")
    E("  s_lshl_b32 s40, s40, 2")
    E("  s_lshr_b32 s41, s25, 2")
    E("  s_add_u32 s40, s40, s41")
    E("  s_mul_i32 s40, s40, 21504")
    E("  s_and_b32 s41, s25, 3")
    E("  s_mul_i32 s41, s41, 80")
    E("  s_add_u32 s41, s41, s40")
    E("  s_movk_i32 s42, 336")
    E(f"  v_mul_u32_u24 v{t2}, s42, v{t0}")
    E(f"  v_lshl_add_u32 v{t2}, v{t1}, 3, v{t2}")
    E("  s_lshl_b32 s43, s28, 5")
    E("  s_add_u32 s43, s43, s41")
    for mt in range(4):
        E(f"  s_add_u32 s47, s43, {mt*16*336+PQT_OFF}")
        E(f"  buffer_store_dwordx2 {vr(pk[3]+2*mt,2)}, v{t2}, s[16:19], s47 offen")
    M = V_ACC
    ON = TM
    for i in range(4):
        E(f"  v_mov_b32 v{ON+i}, 0x3f803f80")
    E("  s_nop 1")
    for p in range(2):
        P0, V1, X2 = pk[0] + 4 * p, pk[1] + 4 * p, pk[2] + 4 * p
        for i, (a, b) in enumerate(((P0, V1), (P0, X2), (X2, V1), (X2, X2), (P0, ON), (X2, ON))):
            c = "0" if p == 0 else vr(M + 4 * i, 4)
            E(f"  v_mfma_f32_16x16x32_bf16 {vr(M+4*i,4)}, {vr(a,4)}, {vr(b,4)}, {c}")
    E("  s_cmp_eq_u32 s28, 1")
    E("  s_cbranch_scc1 L1_noq2")
    E(f"  v_lshlrev_b32 v{t3}, 2, v{t1}")
    E(f"  v_mul_u32_u24 v{t3}, s42, v{t3}")
    E(f"  v_lshl_add_u32 v{t3}, v{t0}, 1, v{t3}")
    E(f"  v_cmp_lt_u32 vcc, 7, v{t0}")
    E("  s_and_saveexec_b64 s[50:51], vcc")
    for mt in range(4):
        E(f"  s_add_u32 s47, s41, {mt*16*336+PQT_OFF+64-16}")
        E(f"  buffer_store_short v{pk[2]+2*mt}, v{t3}, s[16:19], s47 offen")
        E(f"  buffer_store_short_d16_hi v{pk[2]+2*mt}, v{t3}, s[16:19], s47 offen offset:336")
        E(f"  buffer_store_short v{pk[2]+2*mt+1}, v{t3}, s[16:19], s47 offen offset:672")
        E(f"  buffer_store_short_d16_hi v{pk[2]+2*mt+1}, v{t3}, s[16:19], s47 offen offset:1008")
    E("  s_mov_b64 exec, s[50:51]")
    E("L1_noq2:")
    E("  s_lshl_b32 s40, s25, 2")
    E(f"  v_mov_b32 v{t3}, s40")
    E("  s_mul_i32 s40, s28, 1680")
    E(f"  s_add_u32 s40, s40, {A_KV}")
    E(f"  v_mul_u32_u24 v{t2}, 80, v{t0}")
    E(f"  v_lshl_add_u32 v{t2}, v{t1}, 4, v{t2}")
    E(f"  v_add_u32 v{t2}, s40, v{t2}")
    E("  s_lshl_b32 s41, s27, 12")
    E(f"  v_add_u32 v{t2}, s41, v{t2}")
    E("  s_nop 4")
    E(f"  ds_write_b128 v{t2}, {vr(M,4)}")
    E("  s_mov_b64 exec, s[48:49]")
    E(f"  ds_write_b128 v{t2}, {vr(M+4,4)} offset:960")
    E("  s_mov_b64 exec, 0xffff")
    E(f"  ds_write_b128 v{t2}, {vr(M+8,4)} offset:64")
    E("  s_mov_b64 exec, 0xf0")
    E(f"  ds_write_b128 v{t2}, {vr(M+12,4)} offset:{960+64}")
    E("  s_mov_b32 s50, 0x00010001")
    E("  s_mov_b32 s51, 0x00010001")
    E("  s_mov_b64 exec, s[50:51]")
    E(f"  ds_write_b128 v{t2}, {vr(M+16,4)} offset:1600")
    E("  s_mov_b64 exec, 1")
    E(f"  ds_write_b128 v{t2}, {vr(M+20,4)} offset:{1600+64}")
    stamp(1)
    E("  s_cmp_lg_u32 s26, 0")
    E("  s_cbranch_scc1 L1_nopoll")
    E("L1_poll:")
    E(f"  buffer_load_dword v{t4}, v{t3}, s[20:23], 0 offen sc0 sc1")
    E("  s_waitcnt vmcnt(0)")
    E(f"  v_readfirstlane_b32 s41, v{t4}")
    E("  s_nop 3")
    E("  s_cmp_lt_u32 s41, 4")
    E("  s_cbranch_scc1 L1_poll")
    E("L1_nopoll:")
    E("  s_mov_b64 exec, -1")
    E("  s_waitcnt lgkmcnt(0)")
    E("  s_barrier")
    stamp(1)
    E(f"  v_lshl_or_b32 v{t3}, s26, 6, v0")
    E(f"  v_lshlrev_b32 v{t3}, 2, v{t3}")
    E(f"  v_add_u32 v{t4}, {A_KV}, v{t3}")
    for j in range(4):
        E(f"  ds_read_b32 v{TM+j}, v{t4} offset:{1024*j}")
        E(f"  ds_read_b32 v{TM+4+j}, v{t4} offset:{4096+1024*j}")
    E("  s_mul_i32 s40, s25, 3360")
    E(f"  s_add_u32 s40, s40, {KV_OFF}")
    E("  s_waitcnt lgkmcnt(0)")
    for j in range(4):
        E(f"  v_add_f32 v{TM+j}, v{TM+j}, v{TM+4+j}")
    for j in range(3):
        E(f"  buffer_atomic_add_f32 v{TM+j}, v{t3}, s[16:19], s40 offen offset:{1024*j}")
    E(f"  v_cmp_gt_u32 vcc, {3360-3072}, v{t3}")
    E("  s_and_saveexec_b64 s[50:51], vcc")
    E("  s_cbranch_execz L1_fin")
    E(f"  buffer_atomic_add_f32 v{TM+3}, v{t3}, s[16:19], s40 offen offset:3072")
    E("L1_fin:")

def k3_epilogue():
    t0, t1, t2, t3, t4 = V_T, V_T + 1, V_T + 2, V_T + 3, V_T + 4
    MS, RS, CSV, PK, TM = 16, 24, 32, 48, 144
    E(f"  v_and_b32 v{t0}, 15, v0")
    E(f"  v_lshrrev_b32 v{t1}, 4, v0")
    E("  s_lshl_b32 s40, s27, 8")
    E(f"  s_add_u32 s40, s40, {A_MEAN}")
    E(f"  v_lshl_add_u32 v{t2}, v{t0}, 2, s40")
    for mt in range(4):
        E(f"  ds_read_b32 v{MS+2*mt}, v{t2} offset:{64*mt}")
        E(f"  ds_read_b32 v{RS+2*mt}, v{t2} offset:{512+64*mt}")
    E("  s_lshl_b32 s41, s28, 8")
    E(f"  s_add_u32 s41, s41, {A_CS}")
    E(f"  v_lshl_add_u32 v{t3}, v{t1}, 4, s41")
    for t in range(4):
        E(f"  ds_read_b128 {vr(CSV+4*t,4)}, v{t3} offset:{64*t}")
    E(f"  v_lshrrev_b32 v{t2}, 2, v{t0}")
    E(f"  v_sub_u32 v{t2}, 0, v{t2}")
    E(f"  v_lshrrev_b32 v{t4}, 1, v{t1}")
    E(f"  v_xor_b32 v{t2}, v{t2}, v{t4}")
    E(f"  v_and_b32 v{t2}, 3, v{t2}")
    E(f"  v_lshlrev_b32 v{t2}, 4, v{t2}")
    E(f"  v_lshl_add_u32 v{t2}, v{t0}, 6, v{t2}")
    E(f"  v_and_b32 v{t4}, 1, v{t1}")
    E("  s_lshl_b32 s40, s24, 1")
    E("  s_add_u32 s40, s40, s27")
    E("  s_mul_i32 s40, s40, 221184")
    E(f"  s_add_u32 s40, s40, {H1_OFF}")
    E("  s_mul_i32 s41, s25, 224")
    E("  s_lshl_b32 s43, s28, 7")
    E("  s_add_u32 s43, s43, s41")
    E("  s_mov_b32 s50, s45")
    E("  s_mov_b32 s51, s45")
    E("  s_waitcnt lgkmcnt(0)")
    for tp in range(2):
        for mt in range(4):
            for u in range(2):
                t = 2 * tp + u
                a = acc(mt, t)
                tm = TM + 4 * u
                for p in range(2):
                    E(f"  v_pk_fma_f32 {vr(a+2*p,2)}, {vr(CSV+4*t+2*p,2)}, {vr(MS+2*mt,2)}, {vr(a+2*p,2)} op_sel_hi:[1,0,1] neg_lo:[0,1,0] neg_hi:[0,1,0]")
                for p in range(2):
                    E(f"  v_pk_mul_f32 {vr(a+2*p,2)}, {vr(a+2*p,2)}, {vr(RS+2*mt,2)} op_sel_hi:[1,0]")
                for p in range(2):
                    E(f"  v_pk_mul_f32 {vr(tm+2*p,2)}, {vr(a+2*p,2)}, s[50:51]")
                for r in range(4): E(f"  v_exp_f32 v{tm+r}, -v{tm+r}")
                for p in range(2):
                    E(f"  v_pk_add_f32 {vr(tm+2*p,2)}, {vr(tm+2*p,2)}, 1.0 op_sel_hi:[1,0]")
                for r in range(4): E(f"  v_rcp_f32 v{tm+r}, v{tm+r}")
                E("  s_nop 0")
                for p in range(2): E(f"  v_pk_mul_f32 {vr(a+2*p,2)}, {vr(a+2*p,2)}, {vr(tm+2*p,2)}")
                d = PK + (tp * 4 + mt) * 4 + 2 * u
                E(f"  v_cvt_pk_bf16_f32 v{d}, v{a}, v{a+1}")
                E(f"  v_cvt_pk_bf16_f32 v{d+1}, v{a+2}, v{a+3}")
            d = PK + (tp * 4 + mt) * 4
            E("  s_nop 1")
            E(f"  v_permlane16_swap_b32 v{d}, v{d+2}")
            E(f"  v_permlane16_swap_b32 v{d+1}, v{d+3}")
        E(f"  s_add_u32 s46, s43, {64*tp}")
        E(f"  v_lshl_add_u32 v{t3}, v{t4}, 5, s46")
        E(f"  v_lshrrev_b32 v{TM+8}, 6, v{t3}")
        E(f"  v_lshlrev_b32 v{TM+8}, 12, v{TM+8}")
        E(f"  v_and_b32 v{TM+9}, 32, v{t3}")
        E(f"  v_xor_b32 v{TM+9}, v{TM+9}, v{t2}")
        E(f"  v_add_u32 v{TM+8}, v{TM+8}, v{TM+9}")
        E(f"  v_cmp_gt_u32 vcc, 3456, v{t3}")
        E(f"  v_subrev_u32 v{TM+9}, s41, v{t3}")
        E(f"  v_cmp_gt_u32 s[46:47], s42, v{TM+9}" if False else "  s_mov_b64 s[48:49], vcc")
        E(f"  v_cmp_gt_u32 vcc, 224, v{TM+9}")
        E("  s_and_b64 vcc, vcc, s[48:49]")
        E(f"  v_mov_b32 v{TM+9}, 0x7fffffff")
        E(f"  v_cndmask_b32 v{TM+8}, v{TM+9}, v{TM+8}, vcc")
        for mt in range(4):
            d = PK + (tp * 4 + mt) * 4
            E(f"  buffer_store_dwordx4 {vr(d,4)}, v{TM+8}, s[16:19], s40 offen offset:{mt*1024}")

def head_6480(which):
    E("  s_cmp_ge_u32 s2, 256")
    E(f"  s_cbranch_scc1 L{which}_done")
    E("  s_load_dwordx4 s[36:39], s[0:1], 56")
    E("  s_load_dwordx2 s[4:5], s[0:1], 48")
    E(f"  s_load_dwordx2 s[6:7], s[0:1], {16 if which == 2 else 40}")
    E("  s_load_dwordx2 s[42:43], s[0:1], 0")
    stamp(which)
    E("  s_and_b32 s40, s2, 7")
    E("  s_lshr_b32 s41, s2, 3")
    if os.environ.get("OLDMAP"):
        E("  s_lshl_b32 s24, s40, 2")
        E("  s_and_b32 s44, s41, 3")
        E("  s_add_u32 s24, s24, s44")
        E("  s_lshr_b32 s25, s41, 2")
    else:
        E("  s_lshr_b32 s24, s40, 1")
        E("  s_lshl_b32 s24, s24, 3")
        E("  s_and_b32 s44, s41, 7")
        E("  s_add_u32 s24, s24, s44")
        E("  s_and_b32 s25, s40, 1")
        E("  s_lshl_b32 s25, s25, 2")
        E("  s_lshr_b32 s44, s41, 3")
        E("  s_add_u32 s25, s25, s44")
    E("  v_lshrrev_b32 v1, 6, v0")
    E("  v_mov_b32 v2, v0")
    E("  v_and_b32 v0, 63, v0")
    E("  v_readfirstlane_b32 s26, v1")
    E("  s_nop 3")

def res_addr():
    E("  v_lshrrev_b32 v3, 2, v2")
    E("  s_lshl_b32 s40, s24, 6")
    E("  v_add_u32 v3, s40, v3")
    E("  s_movk_i32 s41, 1280")
    E("  v_mul_lo_u32 v7, v3, s41")
    E("  v_and_b32 v4, 3, v2")
    E("  v_mad_u32_u24 v7, v4, 40, v7")
    E("  s_mul_i32 s40, s25, 160")
    E("  v_add_u32 v7, s40, v7")

def chunk_addr(vc, vrow, vcol, tmp):
    E("  s_movk_i32 s41, 6554")
    E(f"  v_mul_u32_u24 v{vrow}, s41, v{vc}")
    E(f"  v_lshrrev_b32 v{vrow}, 16, v{vrow}")
    E(f"  v_mul_u32_u24 v{tmp}, 10, v{vrow}")
    E(f"  v_sub_u32 v{vcol}, v{vc}, v{tmp}")

def res_load(rounds, res_srd, RES, GA):
    for r, add in enumerate(rounds):
        E(f"  v_add_u32 v3, {add}, v2")
        chunk_addr(3, 4, 5, 6)
        E("  s_lshl_b32 s40, s24, 6")
        E("  v_add_u32 v4, s40, v4")
        E("  s_movk_i32 s41, 1280")
        E(f"  v_mul_lo_u32 v{GA+r}, v4, s41")
        E(f"  v_lshl_add_u32 v{GA+r}, v5, 4, v{GA+r}")
        E("  s_mul_i32 s40, s25, 160")
        E(f"  v_add_u32 v{GA+r}, s40, v{GA+r}")
        E("  v_cmp_gt_u32 vcc, 640, v3")
        E(f"  v_cndmask_b32 v{GA+r}, -1, v{GA+r}, vcc")
        E(f"  buffer_load_dwordx4 {vr(RES+4*r,4)}, v{GA+r}, {sr(res_srd,4)}, 0 offen")

def final_sum(which, rounds, RES, GA, dst_srd, wstride, B):
    for r, add in enumerate(rounds):
        E(f"  v_add_u32 v3, {add}, v2")
        E("  v_min_u32 v3, 639, v3")
        chunk_addr(3, 4, 5, 6)
        E("  v_mul_u32_u24 v6, 336, v4")
        E("  v_lshl_add_u32 v6, v5, 5, v6")
        E(f"  v_add_u32 v3, {2*wstride}, v6")
        for w in range(4):
            for j in range(2):
                E(f"  ds_read_b128 {vr(B+w*8+j*4,4)}, {'v6' if w < 2 else 'v3'} offset:{(w&1)*wstride+j*16}")
        E("  s_waitcnt lgkmcnt(0)")
        for i in range(4):
            E(f"  v_pk_add_f32 {vr(B+2*i,2)}, {vr(B+2*i,2)}, {vr(B+8+2*i,2)}")
            E(f"  v_pk_add_f32 {vr(B+16+2*i,2)}, {vr(B+16+2*i,2)}, {vr(B+24+2*i,2)}")
        for i in range(4):
            E(f"  v_pk_add_f32 {vr(B+2*i,2)}, {vr(B+2*i,2)}, {vr(B+16+2*i,2)}")
        E("  s_waitcnt vmcnt(0)")
        T = B + 8
        for i in range(4):
            E(f"  v_lshlrev_b32 v{T}, 16, v{RES+4*r+i}")
            E(f"  v_and_b32 v{T+1}, 0xffff0000, v{RES+4*r+i}")
            if which == 2:
                E(f"  v_cvt_pk_bf16_f32 v{T+2}, v{B+2*i}, v{B+2*i+1}")
                E(f"  v_lshlrev_b32 v{B+2*i}, 16, v{T+2}")
                E(f"  v_and_b32 v{B+2*i+1}, 0xffff0000, v{T+2}")
            E(f"  v_pk_add_f32 {vr(B+2*i,2)}, {vr(B+2*i,2)}, {vr(T,2)}")
            E(f"  v_cvt_pk_bf16_f32 v{T+4+i}, v{B+2*i}, v{B+2*i+1}")
        E(f"  buffer_store_dwordx4 {vr(T+4,4)}, v{GA+r}, {sr(dst_srd,4)}, 0 offen")
        if which == 2:
            S = T + 8
            for i in range(4):
                E(f"  v_lshlrev_b32 v{T}, 16, v{T+4+i}")
                E(f"  v_and_b32 v{T+1}, 0xffff0000, v{T+4+i}")
                if i == 0:
                    E(f"  v_mov_b32 v{S}, v{T}")
                    E(f"  v_mov_b32 v{S+1}, v{T+1}")
                    E(f"  v_pk_mul_f32 {vr(S+2,2)}, {vr(T,2)}, {vr(T,2)}")
                else:
                    E(f"  v_pk_add_f32 {vr(S,2)}, {vr(S,2)}, {vr(T,2)}")
                    E(f"  v_pk_fma_f32 {vr(S+2,2)}, {vr(T,2)}, {vr(T,2)}, {vr(S+2,2)}")
            E(f"  v_add_f32 v{S}, v{S}, v{S+1}")
            E(f"  v_add_f32 v{S+1}, v{S+2}, v{S+3}")
            E("  v_mul_u32_u24 v6, 10, v4")
            E("  v_add_u32 v6, v6, v5")
            E("  v_lshlrev_b32 v6, 3, v6")
            E(f"  v_add_u32 v6, {K2_STAT}, v6")
            E(f"  v_add_u32 v3, {add}, v2")
            E("  v_cmp_gt_u32 vcc, 640, v3")
            E("  s_and_saveexec_b64 s[50:51], vcc")
            E(f"  ds_write_b64 v6, {vr(S,2)}")
            E("  s_mov_b64 exec, s[50:51]")

K2_STAT = 4 * 40960 - 5120 - 16

def k4(name):
    kernel_head(name)
    head_6480(4)
    E("  s_mul_i32 s40, s24, 221184")
    E(f"  s_add_u32 s40, s40, {H1_OFF}")
    E("  s_mul_i32 s41, s25, 276480")
    E(f"  s_add_u32 s41, s41, {W2T_OFF}")
    E("  s_waitcnt lgkmcnt(0)")
    E("  s_add_u32 s8, s38, s40")
    E("  s_addc_u32 s9, s39, 0")
    E("  s_mov_b32 s10, 221184")
    E("  s_mov_b32 s11, 0x00020000")
    E("  s_add_u32 s12, s38, s41")
    E("  s_addc_u32 s13, s39, 0")
    E("  s_mov_b32 s14, 276480")
    E("  s_mov_b32 s15, 0x00020000")
    srd(16, 38, 2048 * 1280, H_OFF)
    srd(20, 4, 2048 * 1280)
    E("  s_cmp_ge_u32 s26, 4")
    E("  s_cbranch_scc1 L4_loader")
    if os.environ.get("PF4"):
        E("  s_and_b32 s40, s25, 3")
        E("  s_mul_i32 s40, s40, 432")
        E("  s_and_b32 s41, s24, 7")
        E("  s_mul_i32 s41, s41, 270")
        E("  v_mov_b32 v6, 0x7fffffff")
        for r in range(2):
            E(f"  v_add_u32 v3, {256*r}, v2")
            E("  v_add_u32 v4, s40, v3")
            E("  v_lshlrev_b32 v4, 7, v4")
            E("  v_cmp_gt_u32 vcc, 432, v3")
            E("  v_cndmask_b32 v4, v6, v4, vcc")
            E(f"  buffer_load_dword v{100+r}, v4, s[8:11], 0 offen")
            E("  v_add_u32 v5, s41, v3")
            E("  v_lshlrev_b32 v5, 7, v5")
            E("  v_cmp_gt_u32 vcc, 270, v3")
            E("  v_cndmask_b32 v5, v6, v5, vcc")
            E(f"  buffer_load_dword v{102+r}, v5, s[12:15], 0 offen")
    E("  s_mul_i32 s34, s26, 36864")
    E("  v_and_b32 v3, 15, v0")
    E("  v_lshrrev_b32 v4, 4, v0")
    E("  v_lshrrev_b32 v5, 2, v3")
    E("  v_sub_u32 v6, 0, v5")
    E("  v_xor_b32 v6, v6, v4")
    E("  v_and_b32 v6, 3, v6")
    E("  v_lshlrev_b32 v6, 4, v6")
    E("  v_lshl_add_u32 v6, v3, 6, v6")
    E("  v_add_u32 v8, s34, v6")
    E("  v_lshrrev_b32 v6, 1, v4")
    E("  v_lshl_add_u32 v6, v6, 4, v5")
    E("  v_and_b32 v4, 1, v4")
    E("  v_lshl_add_u32 v6, v4, 2, v6")
    E("  v_mul_u32_u24 v6, 160, v6")
    E("  v_and_b32 v3, 3, v3")
    E("  v_lshl_add_u32 v6, v3, 3, v6")
    E("  v_add_u32 v6, 4096, v6")
    E("  v_add_u32 v9, s34, v6")
    ACC = 16
    def accf(mt, nt): return ACC + (mt * 5 + nt) * 4
    for i in range(80):
        E(f"  v_mov_b32 v{ACC+i}, 0")
    RES = 96
    X, Y = 96 + 12, 96 + 12 + 36
    X, Y = 96, 132
    RES = 168 - 0
    def reads(step, base):
        sl = step % 4
        r = []
        for mt in range(4):
            r.append(f"  ds_read_b128 {vr(base+4*mt,4)}, v8 offset:{sl*9216+mt*1024}")
        for nt in range(5):
            for h in range(2):
                r.append(f"  ds_read_b64_tr_b16 {vr(base+16+4*nt+2*h,2)}, v9 offset:{sl*9216+h*1280+nt*32}")
        return r
    NSTEP = 14
    E("  s_barrier")
    stamp(4)
    for r in reads(0, X): E(r)
    for i in range(NSTEP):
        cur, nxt = (X, Y) if i % 2 == 0 else (Y, X)
        E("  s_waitcnt lgkmcnt(0)")
        if i + 1 < NSTEP:
            E("  s_barrier")
        mfs = [f"  v_mfma_f32_16x16x32_bf16 {vr(accf(mt,nt),4)}, {vr(cur+16+4*nt,4)}, {vr(cur+4*mt,4)}, {vr(accf(mt,nt),4)}" for mt in range(4) for nt in range(5)]
        interleave(mfs, reads(i + 1, nxt) if i + 1 < NSTEP else [])
        if i == NSTEP - 2:
            pass
    stamp(4)
    pads_on()
    E("  v_and_b32 v3, 15, v0")
    E("  v_lshrrev_b32 v4, 4, v0")
    E("  v_mul_u32_u24 v5, 336, v3")
    E("  v_lshl_add_u32 v5, v4, 4, v5")
    E("  v_add_u32 v5, s34, v5")
    E("  s_nop 7")
    for mt in range(4):
        for nt in range(5):
            E(f"  ds_write_b128 v5, {vr(accf(mt,nt),4)} offset:{mt*16*336+nt*64}")
    E("  s_waitcnt lgkmcnt(0)")
    pads_off()
    E("  s_branch L4_fin")
    E("L4_loader:")
    E("  s_sub_u32 s27, s26, 4")
    E("  s_lshr_b32 s28, s27, 1")
    E("  s_and_b32 s27, s27, 1")
    E("  s_mul_i32 s34, s28, 36864")
    E(f"  s_mul_i32 s32, s28, {14*4096}")
    E(f"  s_mul_i32 s33, s28, {14*5120}")
    E("  v_lshlrev_b32 v8, 4, v0")
    for half in range(2):
        if half == 0:
            E("  s_cmp_eq_u32 s27, 1")
            E("  s_cbranch_scc1 L4_ld1")
        else:
            E("L4_ld1:")
        n = 5 if half == 0 else 4
        def dma(step):
            sl = step % 4
            if half == 0:
                E(f"  s_add_u32 s35, s34, {sl*9216}")
                E("  s_mov_b32 m0, s35")
                E("  s_add_u32 s35, s35, 8192")
                for j in range(4):
                    E(f"  buffer_load_dwordx4 v8, s[8:11], s32 offen offset:{j*1024} lds")
                E("  s_mov_b32 m0, s35")
                E("  s_add_u32 s32, s32, 4096")
                E("  s_add_u32 s35, s33, 4096")
                E("  buffer_load_dwordx4 v8, s[12:15], s35 offen lds")
            else:
                E(f"  s_add_u32 s35, s34, {sl*9216+4096}")
                E("  s_mov_b32 m0, s35")
                E("  s_nop 0")
                for j in range(4):
                    E(f"  buffer_load_dwordx4 v8, s[12:15], s33 offen offset:{j*1024} lds")
            E(f"  s_add_u32 s33, s33, 5120")
        for s in range(4): dma(s)
        last = 3
        if half == 0: pf_enter("L4", 4, "s28")
        PF = int(os.environ.get("K4PF", "0"))
        npf = 0
        if PF:
            E("  s_mov_b32 s48, s32")
            E("  s_mov_b32 s49, s33")
            for st in range(4, 4 + PF):
                if half == 0:
                    for j in range(4):
                        E(f"  buffer_load_dwordx4 v[20:23], v{8+j}, s[8:11], s48 offen offset:{j*1024}")
                    E("  buffer_load_dwordx4 v[20:23], v16, s[12:15], s49 offen")
                    E("  s_add_u32 s48, s48, 64")
                else:
                    for j in range(4):
                        E(f"  buffer_load_dwordx4 v[20:23], v{12+j}, s[12:15], s49 offen offset:{j*1024}")
                E(f"  s_add_u32 s49, s49, {32*1280}")
                npf += n
        E(f"  s_waitcnt vmcnt({3*n+npf})")
        E("  s_barrier")
        for i in range(NSTEP - 1):
            E(f"  s_waitcnt vmcnt({min(63,(last-(i+1))*n + (npf if i+1 <= 3 else 0))})")
            E("  s_barrier")
            if i + 4 < NSTEP:
                dma(i + 4); last = i + 4
            if i == NSTEP - 5:
                pass
        E("  s_branch L4_fin")
    E("L4_fin:")
    pad["on"] = True
    res_load([0], 16, 16, 12)
    E("  s_barrier")
    final_sum(4, [0], 16, 12, 20, 36864, 24)
    pads_off()
    stamp(4)
    stamp_flush(4, 36)
    rt_end(4)
    E("L4_done:")
    E("  s_endpgm")

def k2(name):
    kernel_head(name)
    head_6480(2)
    E("  s_and_b32 s27, s26, 3")
    E("  s_lshr_b32 s33, s26, 2")
    E("  s_mul_i32 s34, s27, 40960")
    E("  v_lshlrev_b32 v8, 4, v0")
    E("  s_lshl_b32 s40, s24, 2")
    E("  s_add_u32 s40, s40, s27")
    E("  s_mul_i32 s44, s40, 21504")
    E("  s_mul_i32 s45, s33, 11264")
    E("  s_add_u32 s44, s44, s45")
    E("  s_add_u32 s35, s34, s45")
    E("  s_mov_b32 m0, s35")
    E("  s_waitcnt lgkmcnt(0)")
    srd(8, 38, 128 * 21504, PQT_OFF)
    srd(28, 38, 53760, KV_OFF)
    srd(12, 38, 8 * 102400, WOT_OFF)
    E("  s_mul_i32 s46, s27, 13440")
    E("  s_mul_i32 s45, s33, 7168")
    E("  s_add_u32 s46, s46, s45")
    E("  s_add_u32 s35, s34, 21504")
    E("  s_add_u32 s45, s45, s35")
    E("  s_mov_b32 s47, m0")
    E("  s_mov_b32 m0, s45")
    E("  s_nop 0")
    for j in range(7):
        E("  buffer_load_dwordx4 v8, s[28:31], s46 offen lds")
        E("  s_add_u32 m0, m0, 1024")
        E("  s_add_u32 s46, s46, 1024")
    E("  s_mov_b32 m0, s47")
    E("  s_nop 0")
    for j in range(11):
        if j == 10:
            E("  s_cmp_eq_u32 s33, 1")
            E("  s_cbranch_scc1 L2_pq10")
        E("  buffer_load_dwordx4 v8, s[8:11], s44 offen lds")
        E("  s_add_u32 m0, m0, 1024")
        E("  s_add_u32 s44, s44, 1024")
    E("L2_pq10:")
    WR = 196
    E("  s_mul_i32 s32, s27, 25600")
    E("  s_mul_i32 s45, s25, 102400")
    E("  s_add_u32 s32, s32, s45")
    E("  s_mul_i32 s45, s33, 13312")
    E("  s_add_u32 s32, s32, s45")
    E("  v_mov_b32 v7, v8")
    srd(16, 42, 2048 * 1280)
    srd(20, 38, 2048 * 1280, H_OFF)
    srd(28, 38, WS_BYTES)
    RES, GA = 248, 194
    res_load([0, 512], 16, RES, GA)
    E("  v_and_b32 v3, 15, v0")
    E("  v_lshrrev_b32 v4, 4, v0")
    E("  v_cmp_eq_u32 s[46:47], 0, v4")
    E("  v_lshrrev_b32 v5, 2, v3")
    for q in range(4):
        E(f"  v_cmp_eq_u32 s[{48+2*q}:{49+2*q}], {q}, v5")
        E(f"  v_cmp_eq_u32 s[{56+2*q}:{57+2*q}], {q}, v4")
    E("  v_mul_u32_u24 v8, 80, v3")
    E("  v_add_u32 v8, s35, v8")
    E("  v_lshl_add_u32 v9, v4, 4, v8")
    E("  v_and_b32 v10, 3, v3")
    E("  v_mul_u32_u24 v10, 80, v10")
    E("  v_add_u32 v10, s35, v10")
    E("  v_add_u32 v10, 1280, v10")
    E("  v_lshl_add_u32 v11, v4, 4, v10")
    E("  v_mov_b32 v12, s35")
    E("  v_add_u32 v12, 1600, v12")
    E("  v_lshl_add_u32 v13, v4, 4, v12")
    E("  s_mul_i32 s40, s33, 10752")
    E("  s_add_u32 s40, s40, s34")
    E("  v_mul_u32_u24 v14, 336, v3")
    E("  v_add_u32 v14, s40, v14")
    E("  v_add_u32 v15, 32, v14")
    E("  v_lshl_add_u32 v14, v4, 3, v14")
    pf_enter("L2", 8, "s26")
    E("  s_waitcnt vmcnt(12)")
    stamp(2)
    E("  s_barrier")
    stamp(2)
    KF, T = 32, 128
    def kvreads(hh):
        o = hh * 1680
        tt0 = T + 24 * (hh % 2)
        E(f"  ds_read_b128 {vr(tt0,4)}, v9 offset:{o}")
        E(f"  ds_read_b128 {vr(tt0+4,4)}, v8 offset:{o+64}")
        E(f"  ds_read_b128 {vr(tt0+8,4)}, v11 offset:{o}")
        E(f"  ds_read_b128 {vr(tt0+12,4)}, v10 offset:{o+64}")
        E(f"  ds_read_b128 {vr(tt0+16,4)}, v13 offset:{o}")
        E(f"  ds_read_b128 {vr(tt0+20,4)}, v12 offset:{o+64}")
    kvreads(0)
    for hh in range(8):
        if hh + 1 < 8:
            kvreads(hh + 1)
            E("  s_waitcnt lgkmcnt(6)")
        else:
            E("  s_waitcnt lgkmcnt(0)")
        f = KF + 12 * hh
        tt0 = T + 24 * (hh % 2)
        for tt in range(3):
            for p in range(4):
                E(f"  v_cvt_pk_bf16_f32 v{f+4*tt+p}, v{tt0+8*tt+2*p}, v{tt0+8*tt+2*p+1}")
        m = f"s[{48+2*(hh%4)}:{49+2*(hh%4)}]"
        for tt in range(3):
            E(f"  v_cndmask_b32 v{f+4*tt+2}, 0, v{f+4*tt+2}, s[46:47]")
            E(f"  v_cndmask_b32 v{f+4*tt+3}, 0, v{f+4*tt+3}, s[46:47]")
        for p in range(4):
            E(f"  v_cndmask_b32 v{f+4+p}, 0, v{f+4+p}, {m}")
    E("  s_waitcnt vmcnt(2)")
    for j in range(13):
        E(f"  buffer_load_dwordx4 {vr(WR+4*j,4)}, v7, s[12:15], s32 offen")
        E("  s_add_u32 s32, s32, 1024")
    E("  s_barrier")
    stamp(2)
    OF = 128
    def of(u, ks): return OF + u * 20 + ks * 4
    PQa, PQb, N0, D, N1, RS = 168, 16, 176, 24, 184, 192
    E("  s_mov_b32 s45, 0x358637bd")
    def pqreads(hh):
        P = PQa if hh % 2 == 0 else PQb
        for u in range(2):
            E(f"  ds_read_b64 {vr(P+4*u,2)}, v14 offset:{u*16*336+40*hh}")
            E(f"  ds_read_b64 {vr(P+4*u+2,2)}, v15 offset:{u*16*336+40*hh}")
    pqreads(0)
    for hh in range(8):
        P = PQa if hh % 2 == 0 else PQb
        f = KF + 12 * hh
        if hh + 1 < 8:
            pqreads(hh + 1)
            E("  s_waitcnt lgkmcnt(4)")
        else:
            E("  s_waitcnt lgkmcnt(0)")
        for u in range(2):
            E(f"  v_mfma_f32_16x16x32_bf16 {vr(D+4*u,4)}, {vr(f+8,4)}, {vr(P+4*u,4)}, 0")
        for u in range(2):
            E(f"  v_mfma_f32_16x16x32_bf16 {vr(N0+4*u,4)}, {vr(f,4)}, {vr(P+4*u,4)}, 0")
        for u in range(2):
            c = "0" if hh % 4 == 0 else vr(N1 + 4 * u, 4)
            E(f"  v_mfma_f32_16x16x32_bf16 {vr(N1+4*u,4)}, {vr(f+4,4)}, {vr(P+4*u,4)}, {c}")
        E("  s_nop 4")
        for u in range(2):
            E(f"  v_add_f32 v{D+4*u}, s45, v{D+4*u}")
            E(f"  v_rcp_f32 v{D+4*u}, v{D+4*u}")
        E("  s_nop 1")
        for u in range(2):
            for r in range(4):
                E(f"  v_mul_f32 v{N0+4*u+r}, v{N0+4*u+r}, v{D+4*u}")
            dst = of(u, hh // 2) + 2 * (hh % 2)
            E(f"  v_cvt_pk_bf16_f32 v{dst}, v{N0+4*u}, v{N0+4*u+1}")
            E(f"  v_cvt_pk_bf16_f32 v{dst+1}, v{N0+4*u+2}, v{N0+4*u+3}")
            gm = f"s[{56+2*(hh%4)}:{57+2*(hh%4)}]"
            E(f"  v_cndmask_b32 v{RS+u}, v{RS+u}, v{D+4*u}, {gm}")
        if hh % 4 == 3:
            E("  s_nop 4")
            for u in range(2):
                for r in range(4):
                    E(f"  v_mul_f32 v{D+4*u+r}, v{N1+4*u+r}, v{RS+u}")
                dst = of(u, 4) + 2 * (hh // 4)
                E(f"  v_cvt_pk_bf16_f32 v{dst}, v{D+4*u}, v{D+4*u+1}")
                E(f"  v_cvt_pk_bf16_f32 v{dst+1}, v{D+4*u+2}, v{D+4*u+3}")
    stamp(2)
    E("  v_lshlrev_b32 v16, 4, v0")
    E("  s_mul_i32 s40, s33, 13312")
    E("  s_add_u32 s40, s40, s34")
    E("  v_add_u32 v16, s40, v16")
    E("  v_lshl_add_u32 v8, v4, 2, v5")
    E("  v_mul_u32_u24 v8, 160, v8")
    E("  v_and_b32 v6, 3, v3")
    E("  v_lshl_add_u32 v8, v6, 3, v8")
    E("  v_add_u32 v8, s34, v8")
    E("  v_mul_u32_u24 v9, 20, v4")
    E("  v_add_u32 v9, v9, v5")
    E("  v_add_u32 v9, 16, v9")
    E("  v_mul_u32_u24 v9, 160, v9")
    E("  v_lshl_add_u32 v9, v6, 3, v9")
    E("  v_add_u32 v9, s34, v9")
    E("  s_waitcnt vmcnt(0)")
    E("  s_barrier")
    for j in range(13):
        if j == 12:
            E("  s_cmp_eq_u32 s33, 1")
            E("  s_cbranch_scc1 L2_w12")
        E(f"  ds_write_b128 v16, {vr(WR+4*j,4)} offset:{1024*j}")
    E("L2_w12:")
    E("  s_waitcnt lgkmcnt(0)")
    E("  s_barrier")
    stamp(2)
    ACC = 32
    def accf(u, nt): return ACC + (u * 5 + nt) * 4
    WFS = [72, 92]
    def wreads(ks):
        W = WFS[ks % 2]
        r = []
        for nt in range(5):
            for h in range(2):
                if ks < 4:
                    r.append(f"  ds_read_b64_tr_b16 {vr(W+4*nt+2*h,2)}, v8 offset:{ks*6400+h*3200+nt*32}")
                else:
                    r.append(f"  ds_read_b64_tr_b16 {vr(W+4*nt+2*h,2)}, v9 offset:{h*12800+nt*32}")
        return r
    for r in wreads(0): E(r)
    for ks in range(5):
        W = WFS[ks % 2]
        E("  s_waitcnt lgkmcnt(0)")
        mfs = []
        for nt in range(5):
            for u in range(2):
                c = "0" if ks == 0 else vr(accf(u, nt), 4)
                mfs.append(f"  v_mfma_f32_16x16x32_bf16 {vr(accf(u,nt),4)}, {vr(W+4*nt,4)}, {vr(of(u,ks),4)}, {c}")
        interleave(mfs, wreads(ks + 1) if ks < 4 else [], per=1)
    stamp(2)
    E("  s_barrier")
    E("  s_mul_i32 s40, s33, 10752")
    E("  s_add_u32 s40, s40, s34")
    E("  v_mul_u32_u24 v5, 336, v3")
    E("  v_lshl_add_u32 v5, v4, 4, v5")
    E("  v_add_u32 v5, s40, v5")
    for u in range(2):
        for nt in range(5):
            E(f"  ds_write_b128 v5, {vr(accf(u,nt),4)} offset:{u*16*336+nt*64}")
    E("  s_waitcnt lgkmcnt(0)")
    E("  s_barrier")
    final_sum(2, [0, 512], RES, GA, 20, 40960, 32)
    E("  s_waitcnt lgkmcnt(0)")
    E("  s_barrier")
    E("  s_cmp_lg_u32 s26, 0")
    E("  s_cbranch_scc1 L2_nost")
    E("  v_mul_u32_u24 v6, 80, v0")
    E(f"  v_add_u32 v6, {K2_STAT}, v6")
    for j in range(5):
        E(f"  ds_read_b128 {vr(32+4*j,4)}, v6 offset:{16*j}")
    E("  s_waitcnt lgkmcnt(0)")
    for j in range(1, 10):
        E(f"  v_pk_add_f32 v[32:33], v[32:33], {vr(32+2*j,2)}")
    E("  s_lshl_b32 s40, s24, 12")
    E("  s_lshl_b32 s41, s25, 3")
    E("  s_add_u32 s40, s40, s41")
    E(f"  s_add_u32 s40, s40, {RS_OFF}")
    E("  v_lshlrev_b32 v3, 6, v0")
    E("  buffer_store_dwordx2 v[32:33], v3, s[28:31], s40 offen")
    E("L2_nost:")
    pads_off()
    stamp(2)
    stamp_flush(2, 36)
    rt_end(2)
    E("L2_done:")
    E("  s_endpgm")

def main():
    N = ["k1_qkv_kernel", "k2_attn_kernel", "k3_ffn1_kernel", "k4_ffn2_kernel"]
    hdr = open('cdna_kernels/' + NAME + '.s.ref').read().split("; Override")[0]
    E(hdr.rstrip())
    lds = [163840, 163840, 163840, 4 * 36864]
    blk = [768, 512, 768, 768]
    for i, n in enumerate(N):
        E(f"; @launch kernel={n} grid=(256,1,1) block=({blk[i]},1,1) lds={lds[i]}")
    E('.amdgcn_target "amdgcn-amd-amdhsa--gfx950"')
    E(".text")
    st = len(out); ln_gemm(N[0], 1); resolve_pads("L1", st)
    st = len(out); k2(N[1]); resolve_pads("L2", st)
    st = len(out); ln_gemm(N[2], 3); resolve_pads("L3", st)
    st = len(out); k4(N[3]); resolve_pads("L4", st)
    E('.section .rodata,"a"')
    E(kernel_desc(N[0]))
    E(kernel_desc(N[1], vgpr=256))
    E(kernel_desc(N[2]))
    E(kernel_desc(N[3]))
    open(sys.argv[1], 'w').write("\n".join(out) + "\n")
main()
```

```python
import sys, os
NAME = "sequential_preLN__linear_attn_block__dense_activation_silu__prompt"
PQ_OFF = 0
KV_OFF = 0x280000
H_OFF = 0x290000
H1_OFF = 0x510000
RS_OFF = H1_OFF + 2048 * 1728 * 2
W1T_OFF = RS_OFF + 2048 * 64
W2T_OFF = W1T_OFF + 16 * 163840
WOT_OFF = W2T_OFF + 8 * 276480
PQT_OFF = WOT_OFF + 8 * 102400
CSP_OFF = PQT_OFF + 128 * 21504
WS_BYTES = CSP_OFF + 16 * 16 * 512
out = []
PADN = int(os.environ.get("PADN", "0"))
pad = {"on": False, "cnt": 0, "masked": False, "n": 0}
def E(s=""):
    out.append(s)
    t = s.strip()
    if not pad["on"] or not t or t.endswith(":") or t.startswith("."): return
    if t.startswith("s_mov_b64 exec") or "saveexec" in t:
        pad["masked"] = not t.endswith("exec, -1")
    pad["cnt"] += 1
    if PADN and pad["cnt"] >= PADN and not pad["masked"] and t.startswith(("v_", "ds_")) and not t.startswith(("v_cmp", "v_readfirst")):
        out.append(f"@PAD {pad['n']}")
        pad["n"] += 1
        pad["cnt"] = 0
def pads_on(): pad["on"] = True; pad["cnt"] = 0; pad["masked"] = False
def pads_off(): pad["on"] = False
def pf_enter(L, nw, wave_sreg, wbase=0):
    out.append(f"@PFENTER {L} {nw} {wave_sreg} {wbase}")
    E(f"{L}_PFRET:")
    E("  s_mov_b64 exec, -1")
def resolve_pads(L, start):
    n = pad["n"]
    ent = [i for i in range(start, len(out)) if out[i].startswith("@PFENTER")]
    nw = int(out[ent[0]].split()[2]) if ent else 1
    starts = [k * n // nw for k in range(nw)]
    sset = set(starts[1:])
    for i in range(start, len(out)):
        if out[i].startswith("@PAD"):
            k = int(out[i].split()[1])
            nxt = f"{L}_PFRET" if (k + 1 == n or (k + 1) in sset) else f"{L}_P{k+1}"
            out[i] = f"{L}_P{k}:\n  s_cbranch_execz {nxt}"
        elif out[i].startswith("@PFENTER"):
            _, L_, nw_, sreg, wb = out[i].split()
            txt = []
            if n:
                txt.append("  s_mov_b64 exec, 0")
                for k in range(nw):
                    txt.append(f"  s_cmp_eq_u32 {sreg}, {int(wb)+k}")
                    txt.append(f"  s_cbranch_scc1 {L}_P{starts[k]}")
            out[i] = "\n".join(txt)
    pad["n"] = 0; pad["on"] = False
def vr(b, n=1):
    return f"v{b}" if n == 1 else f"v[{b}:{b+n-1}]"
def sr(b, n=1):
    return f"s{b}" if n == 1 else f"s[{b}:{b+n-1}]"
def srd(dst, lo, nbytes, add=0):
    if add:
        E(f"  s_add_u32 s{dst}, s{lo}, {add}")
        E(f"  s_addc_u32 s{dst+1}, s{lo+1}, 0")
    else:
        E(f"  s_mov_b32 s{dst}, s{lo}")
        E(f"  s_mov_b32 s{dst+1}, s{lo+1}")
    E(f"  s_mov_b32 s{dst+2}, {nbytes}")
    E(f"  s_mov_b32 s{dst+3}, 0x00020000")
STAMP = os.environ.get("STAMP", "")
stamp_n = [0]
SB0 = 64 if STAMP == "2" else 60
def stamp(which):
    if STAMP != str(which): return
    i = stamp_n[0]; stamp_n[0] += 1
    E(f"  s_memtime s[{SB0+2*i}:{SB0+1+2*i}]")
def stamp_flush(which, dbg_lo, wave=0):
    if STAMP != str(which): return
    n = stamp_n[0]
    E("  s_waitcnt lgkmcnt(0) vmcnt(0)")
    E("  s_mov_b64 exec, -1")
    E(f"  s_cmp_lg_u32 s2, {os.environ.get('STAMPWG','0')}")
    E(f"  s_cbranch_scc1 LS{which}_skip")
    E("  s_cmp_lg_u32 s26, 0")
    E(f"  s_cbranch_scc1 LS{which}_skip")
    E(f"  s_mov_b32 s92, s{dbg_lo}")
    E(f"  s_mov_b32 s93, s{dbg_lo+1}")
    E("  s_mov_b32 s94, 256")
    E("  s_mov_b32 s95, 0x00020000")
    E("  s_mov_b64 exec, 1")
    E("  v_mov_b32 v1, 0")
    for i in range(n):
        E(f"  s_sub_u32 s58, s{SB0+2*i}, s{SB0}")
        E("  v_mov_b32 v2, s58")
        E(f"  buffer_store_dword v2, v1, s[92:95], 0 offen offset:{128+4*i}")
    E(f"LS{which}_skip:")
    stamp_n[0] = 0
RT = os.environ.get("RT")
def kernel_head(name):
    E(f".globl {name}")
    E(".p2align 8")
    E(f".type {name},@function")
    E(f"{name}:")
    if RT: E("  s_memrealtime s[98:99]")
def rt_end(which):
    if not RT: return
    E("  s_mov_b64 exec, -1")
    E("  s_waitcnt vmcnt(0) lgkmcnt(0)")
    E("  s_memrealtime s[100:101]")
    E("  s_cmp_lg_u32 s26, 0")
    E(f"  s_cbranch_scc1 LRT{which}")
    E(f"  s_add_u32 s92, s38, {(48<<20) + which*4096}")
    E("  s_addc_u32 s93, s39, 0")
    E("  s_mov_b32 s94, 4096")
    E("  s_mov_b32 s95, 0x00020000")
    E("  s_waitcnt lgkmcnt(0)")
    E("  s_mov_b64 exec, 1")
    E("  v_mov_b32 v2, s98")
    E("  v_mov_b32 v3, s100")
    E("  s_lshl_b32 s58, s2, 3")
    E("  v_mov_b32 v1, s58")
    E("  buffer_store_dwordx2 v[2:3], v1, s[92:95], 0 offen")
    E(f"LRT{which}:")
def kernel_desc(name, vgpr=168, sgpr=(102 if os.environ.get("RT") else 96), accoff=None):
    return f""".p2align 6
.amdhsa_kernel {name}
  .amdhsa_next_free_vgpr {vgpr}
  .amdhsa_next_free_sgpr {sgpr}
  .amdhsa_accum_offset {accoff or (vgpr+3)//4*4}
  .amdhsa_group_segment_fixed_size 0
  .amdhsa_kernarg_size 72
  .amdhsa_user_sgpr_count 2
  .amdhsa_user_sgpr_kernarg_segment_ptr 1
  .amdhsa_system_sgpr_workgroup_id_x 1
.end_amdhsa_kernel"""

def interleave(mf, other, per=int(os.environ.get("PER","1"))):
    other = list(other)
    for m in mf:
        E(m)
        for _ in range(per):
            if other: E(other.pop(0))
    for o in other: E(o)

NS = 4
SLOT = 32768
NST = 10
AUX = NS * SLOT
A_SUM, A_SQ, A_CS = AUX, AUX + 512, AUX + 1024
A_MEAN, A_RSTD = AUX + 2048, AUX + 2560
A_KV = AUX + 4096
A_CP = AUX + 12288
U2 = 62

V_RA, V_RB = 2, 4
V_T = 8
V_X, V_Y, V_ACC, V_E = 16, 48, 80, 144
def acc(mt, t): return V_ACC + (mt * 4 + t) * 4

def ln_gemm(name, which):
    k1 = which == 1
    L = f"L{which}"
    ldb = 3840 if k1 else 3456
    swapped = [False, False, False, True] if k1 else [True] * 4
    t0, t1, t2, t3, t4 = V_T, V_T + 1, V_T + 2, V_T + 3, V_T + 4
    kernel_head(name)
    E("  s_cmp_ge_u32 s2, 256")
    E(f"  s_cbranch_scc1 {L}_done")
    E("  s_load_dwordx2 s[4:5], s[0:1], 0" if k1 else "  s_load_dwordx2 s[4:5], s[0:1], 64")
    E(f"  s_load_dwordx2 s[6:7], s[0:1], {8 if k1 else 32}")
    E("  s_load_dwordx4 s[36:39], s[0:1], 56")
    stamp(which)
    E("  s_and_b32 s40, s2, 7")
    E("  s_lshr_b32 s41, s2, 3")
    E("  s_lshr_b32 s24, s40, 1")
    E("  s_lshl_b32 s24, s24, 2")
    E("  s_and_b32 s42, s41, 3")
    E("  s_add_u32 s24, s24, s42")
    E("  s_and_b32 s25, s40, 1")
    E("  s_lshl_b32 s25, s25, 3")
    E("  s_lshr_b32 s42, s41, 2")
    E("  s_add_u32 s25, s25, s42")
    E("  v_lshrrev_b32 v1, 6, v0")
    E("  v_and_b32 v0, 63, v0")
    E("  v_readfirstlane_b32 s26, v1")
    E("  s_waitcnt lgkmcnt(0)")
    if k1: srd(8, 4, 2048 * 1280)
    else: srd(8, 4, 2048 * 1280, H_OFF)
    if k1: srd(12, 6, 640 * ldb)
    else: srd(12, 4, 16 * 163840, W1T_OFF)
    srd(16, 38, WS_BYTES)
    srd(20, 36, 256)
    E("  s_cmp_ge_u32 s26, 4")
    E(f"  s_cbranch_scc1 {L}_loader")
    if os.environ.get("PRIO"): E("  s_setprio 2")
    E("  s_lshr_b32 s27, s26, 1")
    E("  s_and_b32 s28, s26, 1")
    E(f"  v_and_b32 v{t0}, 15, v0")
    E(f"  v_lshrrev_b32 v{t1}, 4, v0")
    E(f"  v_and_b32 v{t2}, 7, v{t0}")
    E(f"  v_xor_b32 v{t2}, v{t2}, v{t1}")
    E(f"  v_lshlrev_b32 v{t2}, 4, v{t2}")
    E(f"  v_lshl_add_u32 v{t2}, v{t0}, 7, v{t2}")
    E("  s_lshl_b32 s40, s27, 13")
    E(f"  v_add_u32 v{V_RA}, s40, v{t2}")
    E(f"  v_xor_b32 v{V_RA+1}, 64, v{V_RA}")
    E(f"  v_lshrrev_b32 v{t2}, 2, v{t0}")
    E(f"  v_and_b32 v{t3}, 1, v{t1}")
    E(f"  v_lshl_add_u32 v{t3}, v{t3}, 2, v{t2}")
    E(f"  v_lshl_add_u32 v{t2}, v{t1}, 3, v{t2}")
    E(f"  v_lshlrev_b32 v{t2}, 8, v{t2}")
    E(f"  v_add_u32 v{t2}, 16384, v{t2}")
    E(f"  v_and_b32 v{t4}, 3, v{t0}")
    for t in range(4):
        u = V_E
        if k1:
            E("  s_mul_i32 s40, s28, 5")
            if t == 0:
                E(f"  v_add_u32 v{u}, s40, v{t4}")
            elif t == 1:
                E("  s_add_u32 s40, s40, 10")
                E(f"  v_add_u32 v{u}, s40, v{t4}")
            elif t == 3:
                E("  s_lshl_b32 s40, s28, 2")
                E("  s_add_u32 s40, s40, 20")
                E(f"  v_add_u32 v{u}, s40, v{t4}")
            else:
                E(f"  v_mul_u32_u24 v{u}, 10, v{t4}")
                E("  s_add_u32 s40, s40, 4")
                E(f"  v_add_u32 v{u}, s40, v{u}")
                E(f"  v_add_u32 v{u+1}, 26, v{t4}")
                E(f"  v_cmp_gt_u32 vcc, 2, v{t4}")
                E("  s_nop 1")
                E(f"  v_cndmask_b32 v{u}, v{u+1}, v{u}, vcc")
        else:
            E("  s_lshl_b32 s40, s28, 4")
            E(f"  s_add_u32 s40, s40, {4*t}")
            E(f"  v_add_u32 v{u}, s40, v{t4}")
        E(f"  v_lshrrev_b32 v{u+1}, 2, v{u}")
        E(f"  v_xor_b32 v{u+1}, v{u+1}, v{t3}")
        E(f"  v_lshl_add_u32 v{u+1}, v{u+1}, 5, v{t2}")
        E(f"  v_and_b32 v{u}, 3, v{u}")
        E(f"  v_lshl_add_u32 v{V_RB+t}, v{u}, 3, v{u+1}")
    for i in range(64):
        E(f"  v_mov_b32 v{V_ACC+i}, 0")
    E(f"  s_mov_b32 s52, {SLOT}")
    E(f"  v_lshl_or_b32 v{t3}, s26, 6, v0")
    if k1 and os.environ.get("CODEPF"):
        E("  s_lshr_b32 s40, s2, 3")
        E("  s_cmp_lg_u32 s40, 3")
        E("  s_cbranch_scc1 L1_nocpf")
        E("  s_getpc_b64 s[60:61]")
        E("L1_pc:")
        E("  s_add_u32 s60, s60, k2_attn_kernel-L1_pc")
        E("  s_addc_u32 s61, s61, 0")
        E(f"  v_lshlrev_b32 v{t4}, 7, v{t3}")
        E(f"  v_cmp_gt_u32 vcc, (Lcode_end-k2_attn_kernel), v{t4}")
        E("  s_and_saveexec_b64 s[62:63], vcc")
        E("  s_cbranch_execz L1_nocpf2")
        E(f"  global_load_dword v14, v{t4}, s[60:61]")
        E("L1_nocpf2:")
        E("  s_mov_b64 exec, -1")
        E("L1_nocpf:")
    if k1 and not os.environ.get("NOPF"):
        a, b, c = V_X, V_X + 1, V_X + 2
        PFR = [165, 166, 167, 15]
        E("  s_movk_i32 s41, 6554")
        E(f"  v_mul_u32_u24 v{a}, s41, v{t3}")
        E(f"  v_lshrrev_b32 v{a}, 16, v{a}")
        E(f"  v_mul_u32_u24 v{b}, 10, v{a}")
        E(f"  v_sub_u32 v{b}, v{t3}, v{b}")
        E("  s_movk_i32 s41, 10923")
        E("  s_and_b32 s40, s25, 7")
        E("  s_lshl_b32 s40, s40, 4")
        E("  s_lshl_b32 s42, s24, 7")
        E("  s_add_u32 s40, s40, s42")
        E(f"  v_add_u32 v{a}, s40, v{a}")
        E(f"  v_mul_u32_u24 v{a}, 1280, v{a}")
        E(f"  v_lshl_add_u32 v{a}, v{b}, 7, v{a}")
        E(f"  v_cmp_gt_u32 vcc, 160, v{t3}")
        E(f"  v_cndmask_b32 v164, -1, v{a}, vcc")
        E("  s_and_b32 s40, s24, 3")
        E("  s_mul_i32 s40, s40, 160")
        E("  s_mul_i32 s42, s25, 80")
        for r in range(4):
            E(f"  v_add_u32 v{c}, {256*r}, v{t3}")
            E(f"  v_mul_u32_u24 v{a}, s41, v{c}")
            E(f"  v_lshrrev_b32 v{a}, 16, v{a}")
            E(f"  v_mul_u32_u24 v{b}, 6, v{a}")
            E(f"  v_sub_u32 v{b}, v{c}, v{b}")
            E(f"  v_add_u32 v{a}, s40, v{a}")
            E(f"  v_mul_u32_u24 v{a}, 3840, v{a}")
            E(f"  v_add_u32 v{a}, s42, v{a}")
            E(f"  v_lshrrev_b32 v{V_X+3}, 1, v{b}")
            E(f"  v_add_u32 v{V_X+3}, 1, v{V_X+3}")
            E(f"  v_cmp_eq_u32 vcc, 3, v{V_X+3}")
            E(f"  v_cndmask_b32 v{V_X+3}, v{V_X+3}, 0, vcc")
            E(f"  v_mul_u32_u24 v{V_X+3}, 1280, v{V_X+3}")
            E(f"  v_add_u32 v{a}, v{a}, v{V_X+3}")
            E(f"  v_and_b32 v{b}, 1, v{b}")
            E(f"  v_mul_u32_u24 v{b}, 76, v{b}")
            E(f"  v_add_u32 v{a}, v{a}, v{b}")
            E(f"  v_cmp_gt_u32 vcc, 960, v{c}")
            E(f"  v_cndmask_b32 v{PFR[r]}, -1, v{a}, vcc")
    if k1:
        for i in range(4):
            E(f"  v_mov_b32 v{V_E+i}, 0")
        E(f"  v_lshlrev_b32 v{t4}, 4, v{t3}")
        E(f"  v_add_u32 v{t2}, {A_KV}, v{t4}")
        E(f"  ds_write_b128 v{t2}, {vr(V_E,4)}")
        E("  s_cmp_ge_u32 s2, 16")
        E(f"  s_cbranch_scc1 {L}_nozero")
        E("  s_mul_i32 s40, s2, 3360")
        E(f"  s_add_u32 s40, s40, {KV_OFF}")
        E(f"  v_cmp_gt_u32 vcc, 210, v{t3}")
        E("  s_and_saveexec_b64 s[46:47], vcc")
        E(f"  buffer_store_dwordx4 {vr(V_E,4)}, v{t4}, s[16:19], s40 offen sc0 sc1")
        E("  s_mov_b64 exec, s[46:47]")
        E("  s_waitcnt vmcnt(0)")
        E("  s_lshl_b32 s40, s2, 2")
        E(f"  v_mov_b32 v{t2}, s40")
        E(f"  v_mov_b32 v{t4}, 1")
        E("  s_mov_b64 exec, 1")
        E(f"  buffer_atomic_add v{t4}, v{t2}, s[20:23], 0 offen sc1")
        E("  s_mov_b64 exec, -1")
        E(f"{L}_nozero:")
    else:
        E("  s_cmp_ge_u32 s26, 2")
        E(f"  s_cbranch_scc1 {L}_nors")
        E("  s_lshl_b32 s40, s24, 13")
        E(f"  s_add_u32 s40, s40, {RS_OFF}")
        E(f"  v_lshlrev_b32 v{t4}, 6, v{t3}")
        for i in range(4):
            E(f"  buffer_load_dwordx4 {vr(V_X+4*i,4)}, v{t4}, s[16:19], s40 offen offset:{16*i}")
        E("  s_waitcnt vmcnt(0)")
        for i in range(1, 8):
            E(f"  v_add_f32 v{V_X}, v{V_X}, v{V_X+2*i}")
            E(f"  v_add_f32 v{V_X+1}, v{V_X+1}, v{V_X+2*i+1}")
        fin_stats(V_X, V_X + 1, t3, t4)
        E(f"  s_branch {L}_nors2")
        E(f"{L}_nors:")
        E("  s_lshl_b32 s40, s25, 13")
        E(f"  s_add_u32 s40, s40, {CSP_OFF-512}")
        E(f"  v_lshlrev_b32 v{t4}, 2, v{t3}")
        for i in range(16):
            E(f"  buffer_load_dword v{V_X+i}, v{t4}, s[16:19], s40 offen offset:{512*i if 512*i < 4096 else 0}" if i < 8 else f"  buffer_load_dword v{V_X+i}, v{t4}, s[16:19], s41 offen offset:{512*(i-8)}")
            if i == 0: E("  s_add_u32 s41, s40, 4096")
        E("  s_waitcnt vmcnt(0)")
        for i in range(1, 16):
            E(f"  v_add_f32 v{V_X}, v{V_X}, v{V_X+i}")
        E(f"  v_add_u32 v{t4}, {A_CS-512}, v{t4}")
        E(f"  ds_write_b32 v{t4}, v{V_X}")
        E(f"{L}_nors2:")
    E("  s_waitcnt lgkmcnt(0)")
    stamp(which)
    PFE = "none" if os.environ.get("NOPF") else os.environ.get("PFE", "early")
    def pf_issue():
        E("  buffer_load_dword v164, v164, s[8:11], 0 offen")
        for r in (165, 166, 167, 15):
            E(f"  buffer_load_dword v{r}, v{r}, s[12:15], 0 offen")
    if k1 and PFE == "early": pf_issue()
    E("  s_barrier")
    if k1 and PFE == "late": pf_issue()
    stamp(which)
    def rd(base, kk):
        r = []
        for mt in range(4):
            r.append(f"  ds_read_b128 {vr(base+mt*4,4)}, v{V_RA+kk} offset:{mt*2048}")
        for t in range(4):
            for h in range(2):
                r.append(f"  ds_read_b64_tr_b16 {vr(base+16+t*4+h*2,2)}, v{V_RB+t} offset:{kk*8192+h*1024}")
        return r
    def mf(base):
        seq = []
        for mt in range(4):
            for t in range(4):
                a, b = vr(base + mt * 4, 4), vr(base + 16 + t * 4, 4)
                if swapped[t]: a, b = b, a
                seq.append(f"  v_mfma_f32_16x16x32_bf16 {vr(acc(mt,t),4)}, {a}, {b}, {vr(acc(mt,t),4)}")
        return seq
    for r in rd(V_X, 0): E(r)
    E("  s_mov_b32 s29, 0")
    E("  s_mov_b32 s30, 0")
    ST = V_E
    if k1:
        for i in range(16): E(f"  v_mov_b32 v{ST+i}, 0")
        for i in range(4): E(f"  v_mov_b32 v{ST+16+i}, 0x3f803f80")
        E(f"  v_and_b32 v{t0}, 15, v0")
        E(f"  v_cmp_lt_u32 s[48:49], 7, v{t0}")
        E("  s_cmp_eq_u32 s26, 1")
        E(f"  s_cbranch_scc1 {L}_loop1")
        E("  s_cmp_eq_u32 s26, 2")
        E(f"  s_cbranch_scc1 {L}_loop2")
        E("  s_cmp_eq_u32 s26, 3")
        E(f"  s_cbranch_scc1 {L}_loop3")
    def mfs(base, WM, WN):
        seq = mf(base)
        if not k1: return seq
        pre = []
        if WN == 1:
            pre = [f"  v_cndmask_b32 v{base+16+8+r}, v{base+16+8+r}, v{ST+16}, s[48:49]" for r in range(4)]
        ex = []
        for q in range(2):
            mt = 2 * WN + q
            ex.append(f"  v_mfma_f32_16x16x32_bf16 {vr(ST+4*q,4)}, {vr(base+4*mt,4)}, {vr(base+4*mt,4)}, {vr(ST+4*q,4)}")
            t = 2 * WM + q
            ex.append(None if False else (t, q))
        out_ = pre + seq[:8]
        for q in range(2):
            mt = 2 * WN + q
            out_.append(f"  v_mfma_f32_16x16x32_bf16 {vr(ST+4*q,4)}, {vr(base+4*mt,4)}, {vr(base+4*mt,4)}, {vr(ST+4*q,4)}")
        out_ += seq[8:]
        for q in range(2):
            t = 2 * WM + q
            out_.append(f"  v_mfma_f32_16x16x32_bf16 {vr(ST+8+4*q,4)}, {vr(ST+16,4)}, {vr(base+16+4*t,4)}, {vr(ST+8+4*q,4)}")
        return out_
    for w in range(4 if k1 else 1):
        WM, WN = w >> 1, w & 1
        E(f"{L}_loop{w}:")
        E(f"  s_add_u32 s30, s30, {SLOT}")
        E(f"  s_cmp_eq_u32 s30, {NS*SLOT}")
        E(f"  s_cselect_b32 s40, {-(NS-1)*SLOT}, s52")
        E("  s_cselect_b32 s30, 0, s30")
        E("  s_waitcnt lgkmcnt(0)")
        adds = [f"  v_add_u32 v{r}, s40, v{r}" for r in (V_RA, V_RA + 1, V_RB, V_RB + 1, V_RB + 2, V_RB + 3)]
        interleave(mfs(V_X, WM, WN), rd(V_Y, 1) + adds)
        E(f"  s_cmp_eq_u32 s29, {NST-1}")
        E(f"  s_cbranch_scc1 {L}_last{w}")
        E("  s_add_u32 s29, s29, 1")
        E("  s_waitcnt lgkmcnt(0)")
        E("  s_barrier")
        interleave(mfs(V_Y, WM, WN), rd(V_X, 0))
        E(f"  s_branch {L}_loop{w}")
        E(f"{L}_last{w}:")
        E("  s_waitcnt lgkmcnt(0)")
        for m in mfs(V_Y, WM, WN): E(m)
        if k1:
            E(f"  v_lshrrev_b32 v{t1}, 4, v0")
            E(f"  v_lshrrev_b32 v{t2}, 2, v{t0}")
            E(f"  v_cmp_eq_u32 s[50:51], v{t1}, v{t2}")
            E(f"  v_and_b32 v{t2}, 3, v{t0}")
            E("  s_nop 7")
            for q in range(2):
                E(f"  v_mov_b32 v{t3}, v{ST+4*q}")
                for r in range(1, 4):
                    E(f"  v_cmp_eq_u32 vcc, {r}, v{t2}")
                    E("  s_nop 1")
                    E(f"  v_cndmask_b32 v{t3}, v{t3}, v{ST+4*q+r}, vcc")
                E(f"  v_lshlrev_b32 v{t4}, 2, v{t0}")
                E(f"  v_add_u32 v{t4}, {A_SQ + (64*WM + 16*(2*WN+q))*4}, v{t4}")
                E("  s_mov_b64 exec, s[50:51]")
                E(f"  ds_write_b32 v{t4}, v{t3}")
                E("  s_mov_b64 exec, -1")
            for q in range(2):
                t = 2 * WM + q
                if t == 0: E(f"  v_lshlrev_b32 v{t4}, 2, v{t0}"); off = (20*WN)*4
                elif t == 1: E(f"  v_lshlrev_b32 v{t4}, 2, v{t0}"); off = (40+20*WN)*4
                elif t == 3: E(f"  v_lshlrev_b32 v{t4}, 2, v{t0}"); off = (80+16*WN)*4
                else:
                    E(f"  v_lshlrev_b32 v{t4}, 2, v{t0}")
                    E(f"  v_add_u32 v{t3}, {(20*WN+16)*4}, v{t4}")
                    E(f"  v_add_u32 v{t1}, {(52+20*WN)*4}, v{t4}")
                    E(f"  v_cmp_gt_u32 vcc, 4, v{t0}")
                    E("  s_nop 1")
                    E(f"  v_cndmask_b32 v{t3}, v{t1}, v{t3}, vcc")
                    E(f"  v_add_u32 v{t1}, {104*4}, v{t4}")
                    E(f"  v_cmp_gt_u32 vcc, 8, v{t0}")
                    E("  s_nop 1")
                    E(f"  v_cndmask_b32 v{t4}, v{t1}, v{t3}, vcc")
                    off = 0
                E(f"  v_add_u32 v{t4}, {A_CS+off}, v{t4}")
                if t == 2 and WN == 1:
                    E("  s_mov_b64 exec, 0xff")
                else:
                    E("  s_mov_b64 exec, 0xffff")
                E(f"  ds_write_b32 v{t4}, v{ST+8+4*q}")
                E("  s_mov_b64 exec, -1")
            if WN == 1:
                E(f"  v_lshrrev_b32 v{t1}, 4, v0")
                E(f"  v_lshlrev_b32 v{t4}, 4, v{t1}")
                E(f"  v_add_u32 v{t4}, {A_SUM + 64*WM*4}, v{t4}")
                E("  s_mov_b32 s50, 0x01000100")
                E("  s_mov_b32 s51, 0x01000100")
                E("  s_mov_b64 exec, s[50:51]")
                for mt in range(4):
                    E(f"  ds_write_b128 v{t4}, {vr(acc(mt,2),4)} offset:{64*mt}")
                E("  s_mov_b64 exec, -1")
            E(f"  s_branch {L}_fins")
    if not k1: stamp(which)
    if k1:
        E(f"{L}_fins:")
        stamp(which)
        E("  s_waitcnt lgkmcnt(0)")
        E("  s_barrier")
        E("  s_cmp_ge_u32 s26, 2")
        E(f"  s_cbranch_scc1 {L}_fb")
        E(f"  v_lshl_or_b32 v{t3}, s26, 6, v0")
        E(f"  v_lshlrev_b32 v{t4}, 2, v{t3}")
        E(f"  v_add_u32 v{t4}, {A_SUM}, v{t4}")
        E(f"  ds_read_b32 v{V_X}, v{t4}")
        E(f"  ds_read_b32 v{V_X+1}, v{t4} offset:512")
        E("  s_waitcnt lgkmcnt(0)")
        fin_stats(V_X, V_X + 1, t3, t4)
        E("  s_waitcnt lgkmcnt(0)")
        E(f"{L}_fb:")
        E("  s_barrier")
    stamp(which)
    E("  s_mov_b32 s45, 0x3fb8aa3b")
    pads_on()
    if k1: k1_epilogue()
    else: k3_epilogue()
    pads_off()
    stamp(which)
    stamp_flush(which, 36)
    rt_end(which)
    E(f"  s_branch {L}_done")
    E(f"{L}_loader:")
    E("  s_sub_u32 s27, s26, 4")
    LA, LB = 2, 4
    E(f"  v_lshrrev_b32 v{t0}, 3, v0")
    E(f"  v_and_b32 v{t1}, 7, v0")
    E(f"  v_xor_b32 v{t1}, v{t1}, v{t0}")
    E(f"  v_lshlrev_b32 v{t1}, 4, v{t1}")
    E("  s_lshl_b32 s40, s24, 7")
    E("  s_lshl_b32 s41, s27, 4")
    E("  s_add_u32 s40, s40, s41")
    E(f"  v_add_u32 v{t0}, s40, v{t0}")
    E("  s_movk_i32 s41, 1280")
    E(f"  v_mad_u32_u24 v{LA}, v{t0}, s41, v{t1}")
    E(f"  v_add_u32 v{LA+1}, {8*1280-1024}, v{LA}")
    E(f"  v_lshrrev_b32 v{t0}, 4, v0")
    E(f"  v_and_b32 v{t1}, 15, v0")
    E("  s_lshl_b32 s40, s27, 3")
    E(f"  v_add_u32 v{t4}, s40, v{t0}")
    E("  s_and_b32 s40, s27, 1")
    E("  s_lshl_b32 s40, s40, 2")
    E(f"  v_add_u32 v{t0}, s40, v{t0}")
    E(f"  v_lshrrev_b32 v{t2}, 1, v{t1}")
    E(f"  v_xor_b32 v{t2}, v{t2}, v{t0}")
    E(f"  v_lshlrev_b32 v{t2}, 1, v{t2}")
    E(f"  v_and_b32 v{t3}, 1, v{t1}")
    E(f"  v_or_b32 v{t2}, v{t2}, v{t3}")
    if k1:
        E(f"  v_min_u32 v{t2}, 14, v{t2}")
        E(f"  v_lshlrev_b32 v{t3}, 4, v{t2}")
        E(f"  v_add_u32 v20, 1280, v{t3}")
        E(f"  v_add_u32 v21, {2560-80}, v{t3}")
        E(f"  v_subrev_u32 v22, 160, v{t3}")
        E(f"  v_cmp_gt_u32 vcc, 5, v{t2}")
        E("  s_nop 1")
        E("  v_cndmask_b32 v21, v21, v20, vcc")
        E(f"  v_cmp_gt_u32 vcc, 10, v{t2}")
        E("  s_nop 1")
        E(f"  v_cndmask_b32 v{t3}, v22, v21, vcc")
        E("  s_mul_i32 s42, s25, 80")
    else:
        E(f"  v_lshlrev_b32 v{t3}, 4, v{t2}")
        E("  s_mul_i32 s42, s25, 224")
    if k1:
        E(f"  v_add_u32 v{t3}, s42, v{t3}")
        E(f"  s_movk_i32 s41, {ldb}")
        E(f"  v_mad_u32_u24 v{LB}, v{t4}, s41, v{t3}")
        E(f"  v_add_u32 v{LB+1}, {4*ldb-1024}, v{LB}")
    else:
        E("  s_mul_i32 s42, s25, 163840")
        E("  s_lshl_b32 s41, s27, 11")
        E("  s_add_u32 s42, s42, s41")
        E(f"  v_lshlrev_b32 v{LB}, 4, v0")
        E(f"  v_add_u32 v{LB}, s42, v{LB}")
        E(f"  v_mov_b32 v{LB+1}, v{LB}")
    E("  s_lshl_b32 s34, s27, 11")
    E("  s_mov_b32 s31, 0")
    E("  s_mov_b32 s32, 0")
    E("  s_mov_b32 s33, 0")
    ROT = k1 and not os.environ.get("NOROT")
    if ROT:
        E("  s_mul_i32 s40, s24, 3")
        E("  s_add_u32 s40, s40, s25")
        E("  s_mul_i32 s41, s40, 205")
        E("  s_lshr_b32 s41, s41, 11")
        E("  s_mul_i32 s41, s41, 10")
        E("  s_sub_u32 s40, s40, s41")
        E("  s_lshl_b32 s32, s40, 7")
        E(f"  s_mul_i32 s33, s40, {64*ldb}")
    def dma_stage():
        E("  s_add_u32 s35, s31, s34")
        E("  s_mov_b32 m0, s35")
        E("  s_add_u32 s35, s35, 16384")
        for j in range(2):
            E(f"  buffer_load_dwordx4 v{LA+j}, s[8:11], s32 offen offset:{j*1024} lds")
        E("  s_mov_b32 m0, s35")
        E("  s_add_u32 s32, s32, 128")
        for j in range(2):
            E(f"  buffer_load_dwordx4 v{LB+j}, s[12:15], s33 offen offset:{j*1024} lds")
        E(f"  s_add_u32 s33, s33, {64*ldb if k1 else 16384}")
        if ROT:
            E("  s_cmp_eq_u32 s32, 1280")
            E("  s_cselect_b32 s32, 0, s32")
            E("  s_cselect_b32 s33, 0, s33")
        E(f"  s_add_u32 s31, s31, {SLOT}")
        E(f"  s_cmp_eq_u32 s31, {NS*SLOT}")
        E("  s_cselect_b32 s31, 0, s31")
    for s in range(NS):
        dma_stage()
    pf_enter(L, 8, "s27")
    E(f"  s_waitcnt vmcnt({4*(NS-1)})")
    E("  s_barrier")
    NX = 0
    for sv in range(NST - 1):
        issued = min(NST - 1, sv + NS - 1)
        extra = NX if sv > NST - NS else 0
        E(f"  s_waitcnt vmcnt({4*(issued-(sv+1)) + NX})")
        E("  s_barrier")
        if sv + NS < NST:
            dma_stage()
        if k1 and sv + NS == NST - 1:
            NX = relayout_loads()
    if k1:
        relayout_finish()
    E(f"{L}_done:")
    E("  s_endpgm")

RL_SA, RL_DA, RL_DT = 16, 24, 32
def relayout_loads():
    E("  s_load_dwordx2 s[64:65], s[0:1], 32")
    E("  s_load_dwordx2 s[66:67], s[0:1], 40")
    E("  s_load_dwordx2 s[68:69], s[0:1], 16")
    SA_, DA_, DT = RL_SA, RL_DA, RL_DT
    a, b, c, d, tid = 60, 61, 62, 63, 59
    E(f"  v_lshl_or_b32 v{tid}, s27, 6, v0")
    for i in range(20): E(f"  v_mov_b32 v{DT+i}, 0")
    E("  s_lshr_b32 s40, s2, 4")
    E("  s_and_b32 s41, s2, 15")
    E("  s_mul_i32 s41, s41, 40")
    E("  s_mul_i32 s42, s40, 224")
    E("  s_movk_i32 s43, 3456")
    for r in range(2):
        E(f"  v_add_u32 v{a}, {512*r}, v{tid}")
        E(f"  v_lshrrev_b32 v{b}, 4, v{a}")
        E(f"  v_add_u32 v{b}, s41, v{b}")
        E(f"  v_and_b32 v{c}, 15, v{a}")
        E(f"  v_bfe_u32 v{d}, v{b}, 3, 1")
        E(f"  v_lshlrev_b32 v{d}, 2, v{d}")
        E(f"  v_and_or_b32 v{d}, v{b}, 3, v{d}")
        E(f"  v_lshrrev_b32 v{DA_+r}, 1, v{c}")
        E(f"  v_xor_b32 v{d}, v{d}, v{DA_+r}")
        E(f"  v_and_b32 v{DA_+r}, 1, v{c}")
        E(f"  v_lshl_or_b32 v{d}, v{d}, 1, v{DA_+r}")
        E(f"  v_lshlrev_b32 v{DA_+r}, 8, v{b}")
        E(f"  v_lshl_add_u32 v{DA_+r}, v{d}, 4, v{DA_+r}")
        E(f"  v_lshl_add_u32 v{d}, v{c}, 4, s42")
        E(f"  v_mad_u32_u24 v{SA_+r}, v{b}, s43, v{d}")
        E(f"  v_cmp_gt_u32 s[{80+2*r}:{81+2*r}], 14, v{c}")
        E(f"  v_cmp_gt_u32 vcc, s43, v{d}")
        E(f"  s_and_b64 s[{80+2*r}:{81+2*r}], s[{80+2*r}:{81+2*r}], vcc")
        E(f"  v_cmp_gt_u32 vcc, 640, v{a}")
        E(f"  s_mov_b64 s[{70+2*r}:{71+2*r}], vcc")
        E(f"  s_and_b64 s[{80+2*r}:{81+2*r}], s[{80+2*r}:{81+2*r}], vcc")
    E("  s_lshr_b32 s40, s2, 5")
    E("  s_and_b32 s41, s2, 31")
    E("  s_movk_i32 s43, 6554")
    E("  s_mul_i32 s42, s40, 160")
    for r in range(3):
        wo = r == 2
        q = 2 + r
        E(f"  v_add_u32 v{a}, {0 if wo else 512*r}, v{tid}")
        E(f"  v_mul_u32_u24 v{b}, s43, v{a}")
        E(f"  v_lshrrev_b32 v{b}, 16, v{b}")
        E(f"  v_mul_u32_u24 v{c}, 10, v{b}")
        E(f"  v_sub_u32 v{c}, v{a}, v{c}")
        E(f"  s_mul_i32 s47, s41, {20 if wo else 54}")
        E(f"  v_add_u32 v{b}, s47, v{b}")
        E(f"  v_lshlrev_b32 v{c}, 4, v{c}")
        E(f"  v_mul_u32_u24 v{SA_+q}, 1280, v{b}")
        E(f"  v_add_u32 v{SA_+q}, v{SA_+q}, v{c}")
        E(f"  v_add_u32 v{SA_+q}, s42, v{SA_+q}")
        if wo:
            E(f"  v_mul_u32_u24 v{DA_+q}, 160, v{b}")
        else:
            E(f"  v_and_b32 v{d}, 0x13, v{b}")
            E(f"  v_bfe_u32 v{DA_+q}, v{b}, 2, 1")
            E(f"  v_lshl_or_b32 v{d}, v{DA_+q}, 3, v{d}")
            E(f"  v_bfe_u32 v{DA_+q}, v{b}, 3, 1")
            E(f"  v_lshl_or_b32 v{d}, v{DA_+q}, 2, v{d}")
            E(f"  v_mul_u32_u24 v{d}, 160, v{d}")
            E(f"  v_lshrrev_b32 v{DA_+q}, 5, v{b}")
            E(f"  v_mul_u32_u24 v{DA_+q}, 5120, v{DA_+q}")
            E(f"  v_add_u32 v{DA_+q}, v{DA_+q}, v{d}")
        E(f"  v_add_u32 v{DA_+q}, v{DA_+q}, v{c}")
        E(f"  v_cmp_gt_u32 vcc, {200 if wo else 540}, v{a}")
        E(f"  s_mov_b64 s[{70+2*q}:{71+2*q}], vcc")
    E("  s_waitcnt lgkmcnt(0)")
    for (dd, lo, nb) in [(84, 64, 640 * 3456), (88, 66, 1728 * 1280), (92, 68, 640 * 1280)]:
        srd(dd, lo, nb)
    for r in range(5):
        q = 84 if r < 2 else (88 if r < 4 else 92)
        mk = 80 + 2 * r if r < 2 else 70 + 2 * r
        E(f"  v_cndmask_b32 v{SA_+r}, 0, v{SA_+r}, s[{mk}:{mk+1}]")
        E(f"  buffer_load_dwordx4 {vr(DT+4*r,4)}, v{SA_+r}, s[{q}:{q+3}], 0 offen")
    return 5

def relayout_finish():
    SA_, DA_, DT = RL_SA, RL_DA, RL_DT
    srd(16, 38, WS_BYTES)
    E("  s_lshr_b32 s40, s2, 5")
    E("  s_lshr_b32 s41, s2, 4")
    E("  s_mul_i32 s41, s41, 163840")
    E(f"  s_add_u32 s41, s41, {W1T_OFF}")
    E("  s_mul_i32 s42, s40, 276480")
    E(f"  s_add_u32 s42, s42, {W2T_OFF}")
    E("  s_mul_i32 s43, s40, 102400")
    E(f"  s_add_u32 s43, s43, {WOT_OFF}")
    E("  s_waitcnt vmcnt(0)")
    for r in range(5):
        so = "s41" if r < 2 else ("s42" if r < 4 else "s43")
        E(f"  s_mov_b64 exec, s[{70+2*r}:{71+2*r}]")
        E(f"  s_cbranch_execz LRS{r}")
        E(f"  buffer_store_dwordx4 {vr(DT+4*r,4)}, v{DA_+r}, s[16:19], {so} offen sc0 sc1")
        E(f"LRS{r}:")
    E("  s_mov_b64 exec, -1")
    for i in range(4):
        E(f"  v_cndmask_b32 v{DT+4+i}, 0, v{DT+4+i}, s[72:73]")
    C = 64
    for i in range(4):
        for r in range(2):
            x = DT + 4 * r + i
            E(f"  v_lshlrev_b32 v60, 16, v{x}")
            E(f"  v_and_b32 v61, 0xffff0000, v{x}")
            if r == 0:
                E(f"  v_mov_b32 v{C+2*i}, v60")
                E(f"  v_mov_b32 v{C+2*i+1}, v61")
            else:
                E(f"  v_pk_add_f32 {vr(C+2*i,2)}, {vr(C+2*i,2)}, v[60:61]")
    for c in range(8):
        r = C + c
        E(f"  v_mov_b32 v62, v{r}")
        E("  s_nop 1")
        E(f"  v_permlane32_swap_b32 v{r}, v62")
        E("  s_nop 1")
        E(f"  v_add_f32 v{r}, v{r}, v62")
        E(f"  v_mov_b32 v62, v{r}")
        E("  s_nop 1")
        E(f"  v_permlane16_swap_b32 v{r}, v62")
        E("  s_nop 1")
        E(f"  v_add_f32 v{r}, v{r}, v62")
    E("  v_and_b32 v60, 15, v0")
    E("  v_lshlrev_b32 v60, 5, v60")
    E("  s_lshl_b32 s40, s27, 9")
    E(f"  s_add_u32 s40, s40, {A_CP}")
    E("  v_add_u32 v60, s40, v60")
    E(f"  ds_write_b128 v60, {vr(C,4)}")
    E(f"  ds_write_b128 v60, {vr(C+4,4)} offset:16")
    E("  s_waitcnt lgkmcnt(0)")
    E("  s_barrier")
    E("  s_cmp_ge_u32 s27, 2")
    E("  s_cbranch_scc1 L1_rf2")
    E("  v_lshl_or_b32 v60, s27, 6, v0")
    E("  v_lshlrev_b32 v60, 2, v60")
    E(f"  v_add_u32 v61, {A_CP}, v60")
    for q in range(8):
        E(f"  ds_read_b32 v{40+q}, v61 offset:{512*q}")
    E("  s_waitcnt lgkmcnt(0)")
    for q in range(1, 8):
        E(f"  v_add_f32 v40, v40, v{40+q}")
    E("  s_lshl_b32 s40, s2, 9")
    E(f"  s_add_u32 s40, s40, {CSP_OFF}")
    E("  buffer_store_dword v40, v60, s[16:19], s40 offen")
    E("L1_rf2:")
    E("  s_barrier")

def fin_stats(vs, vq, vrow, tmp):
    E("  s_mov_b32 s40, 0x3acccccd")
    E(f"  v_mul_f32 v{vs}, s40, v{vs}")
    E(f"  v_mul_f32 v{vq}, s40, v{vq}")
    E(f"  v_fma_f32 v{vq}, -v{vs}, v{vs}, v{vq}")
    E(f"  v_max_f32 v{vq}, 0, v{vq}")
    E(f"  v_add_f32 v{vq}, 0x3727c5ac, v{vq}")
    E(f"  v_rsq_f32 v{vq}, v{vq}")
    E(f"  v_lshlrev_b32 v{tmp}, 2, v{vrow}")
    E(f"  v_add_u32 v{tmp}, {A_MEAN}, v{tmp}")
    E(f"  ds_write_b32 v{tmp}, v{vs}")
    E(f"  ds_write_b32 v{tmp}, v{vq} offset:512")

def k1_epilogue():
    t0, t1, t2, t3, t4 = V_T, V_T + 1, V_T + 2, V_T + 3, V_T + 4
    CSN, CSV3, MN, RN, MS, RS = 2, 16, 20, 36, 52, 53
    pk = [64, 72, 144, 152]
    TM = 160
    E("  s_waitcnt vmcnt(0)")
    E(f"  v_and_b32 v{t0}, 15, v0")
    E(f"  v_lshrrev_b32 v{t1}, 4, v0")
    E("  s_lshl_b32 s40, s27, 8")
    E(f"  s_add_u32 s40, s40, {A_MEAN}")
    E(f"  v_lshl_add_u32 v{t2}, v{t0}, 2, s40")
    E(f"  v_lshl_add_u32 v{t3}, v{t1}, 4, s40")
    for mt in range(4):
        E(f"  ds_read_b128 {vr(MN+4*mt,4)}, v{t3} offset:{64*mt}")
        E(f"  ds_read_b128 {vr(RN+4*mt,4)}, v{t3} offset:{512+64*mt}")
        E(f"  ds_read_b32 v{MS+2*mt}, v{t2} offset:{64*mt}")
        E(f"  ds_read_b32 v{RS+2*mt}, v{t2} offset:{512+64*mt}")
    E("  s_mul_i32 s41, s28, 80")
    E(f"  s_add_u32 s41, s41, {A_CS}")
    E(f"  v_lshl_add_u32 v{t2}, v{t0}, 2, s41")
    E(f"  ds_read_b32 v{CSN}, v{t2}")
    E(f"  ds_read_b32 v{CSN+2}, v{t2} offset:160")
    E(f"  v_add_u32 v{t3}, 64, v{t2}")
    E(f"  v_add_u32 v{t4}, {52*4}, v{t2}")
    E(f"  v_cmp_gt_u32 vcc, 4, v{t0}")
    E("  s_nop 1")
    E(f"  v_cndmask_b32 v{t3}, v{t4}, v{t3}, vcc")
    E(f"  v_lshlrev_b32 v{t4}, 2, v{t0}")
    E(f"  v_add_u32 v{t4}, {A_CS+104*4}, v{t4}")
    E(f"  v_cmp_gt_u32 vcc, 8, v{t0}")
    E("  s_nop 1")
    E(f"  v_cndmask_b32 v{t3}, v{t4}, v{t3}, vcc")
    E(f"  ds_read_b32 v{CSN+4}, v{t3}")
    E("  s_lshl_b32 s41, s28, 6")
    E(f"  s_add_u32 s41, s41, {A_CS+320}")
    E(f"  v_lshl_add_u32 v{t3}, v{t1}, 4, s41")
    E(f"  ds_read_b128 {vr(CSV3,4)}, v{t3}")
    E("  s_mov_b32 s46, 0x358637bd")
    E(f"  v_and_b32 v{t2}, 12, v{t0}")
    E(f"  v_cmp_eq_u32 s[48:49], 4, v{t2}")
    E("  s_waitcnt lgkmcnt(0)")
    E("  s_mov_b32 s54, s45")
    E("  s_mov_b32 s55, s45")
    E("  s_mov_b32 s56, s46")
    E("  s_mov_b32 s57, s46")
    def phi4(a):
        for r in range(4): E(f"  v_min_f32 v{TM+r}, 0, v{a+r}")
        for p in range(2): E(f"  v_pk_mul_f32 {vr(TM+2*p,2)}, {vr(TM+2*p,2)}, s[54:55]")
        for r in range(4): E(f"  v_exp_f32 v{TM+r}, v{TM+r}")
        for r in range(4): E(f"  v_max_f32 v{a+r}, 0, v{a+r}")
        for p in range(2): E(f"  v_pk_add_f32 {vr(TM+2*p,2)}, {vr(TM+2*p,2)}, s[56:57]")
        for p in range(2): E(f"  v_pk_add_f32 {vr(a+2*p,2)}, {vr(a+2*p,2)}, {vr(TM+2*p,2)}")
    for mt in range(4):
        for t in range(3):
            a = acc(mt, t)
            for p in range(2):
                E(f"  v_pk_fma_f32 {vr(a+2*p,2)}, {vr(MN+4*mt+2*p,2)}, {vr(CSN+2*t,2)}, {vr(a+2*p,2)} op_sel_hi:[1,0,1] neg_lo:[1,0,0] neg_hi:[1,0,0]")
            for p in range(2):
                E(f"  v_pk_mul_f32 {vr(a+2*p,2)}, {vr(a+2*p,2)}, {vr(RN+4*mt+2*p,2)}")
        a = acc(mt, 3)
        for p in range(2):
            E(f"  v_pk_fma_f32 {vr(a+2*p,2)}, {vr(CSV3+2*p,2)}, {vr(MS+2*mt,2)}, {vr(a+2*p,2)} op_sel_hi:[1,0,1] neg_lo:[0,1,0] neg_hi:[0,1,0]")
        for p in range(2):
            E(f"  v_pk_mul_f32 {vr(a+2*p,2)}, {vr(a+2*p,2)}, {vr(MS+2*mt,2)} op_sel:[0,1] op_sel_hi:[1,1]")
        phi4(acc(mt, 0)); phi4(acc(mt, 3))
        a = acc(mt, 2)
        for r in range(4): E(f"  v_mov_b32 v{TM+4+r}, v{a+r}")
        phi4(a)
        for r in range(4): E(f"  v_cndmask_b32 v{a+r}, v{a+r}, v{TM+4+r}, s[48:49]")
        for t in range(4):
            a = acc(mt, t)
            E(f"  v_cvt_pk_bf16_f32 v{pk[t]+2*mt}, v{a}, v{a+1}")
            E(f"  v_cvt_pk_bf16_f32 v{pk[t]+2*mt+1}, v{a+2}, v{a+3}")
    E("  s_lshl_b32 s40, s24, 1")
    E("  s_add_u32 s40, s40, s27")
    E("  s_lshl_b32 s40, s40, 2")
    E("  s_lshr_b32 s41, s25, 2")
    E("  s_add_u32 s40, s40, s41")
    E("  s_mul_i32 s40, s40, 21504")
    E("  s_and_b32 s41, s25, 3")
    E("  s_mul_i32 s41, s41, 80")
    E("  s_add_u32 s41, s41, s40")
    E("  s_movk_i32 s42, 336")
    E(f"  v_mul_u32_u24 v{t2}, s42, v{t0}")
    E(f"  v_lshl_add_u32 v{t2}, v{t1}, 3, v{t2}")
    E("  s_lshl_b32 s43, s28, 5")
    E("  s_add_u32 s43, s43, s41")
    for mt in range(4):
        E(f"  s_add_u32 s47, s43, {mt*16*336+PQT_OFF}")
        E(f"  buffer_store_dwordx2 {vr(pk[3]+2*mt,2)}, v{t2}, s[16:19], s47 offen")
    M = V_ACC
    ON = TM
    for i in range(4):
        E(f"  v_mov_b32 v{ON+i}, 0x3f803f80")
    E("  s_nop 1")
    for p in range(2):
        P0, V1, X2 = pk[0] + 4 * p, pk[1] + 4 * p, pk[2] + 4 * p
        for i, (a, b) in enumerate(((P0, V1), (P0, X2), (X2, V1), (X2, X2), (P0, ON), (X2, ON))):
            c = "0" if p == 0 else vr(M + 4 * i, 4)
            E(f"  v_mfma_f32_16x16x32_bf16 {vr(M+4*i,4)}, {vr(a,4)}, {vr(b,4)}, {c}")
    E("  s_cmp_eq_u32 s28, 1")
    E("  s_cbranch_scc1 L1_noq2")
    E(f"  v_lshlrev_b32 v{t3}, 2, v{t1}")
    E(f"  v_mul_u32_u24 v{t3}, s42, v{t3}")
    E(f"  v_lshl_add_u32 v{t3}, v{t0}, 1, v{t3}")
    E(f"  v_cmp_lt_u32 vcc, 7, v{t0}")
    E("  s_and_saveexec_b64 s[50:51], vcc")
    for mt in range(4):
        E(f"  s_add_u32 s47, s41, {mt*16*336+PQT_OFF+64-16}")
        E(f"  buffer_store_short v{pk[2]+2*mt}, v{t3}, s[16:19], s47 offen")
        E(f"  buffer_store_short_d16_hi v{pk[2]+2*mt}, v{t3}, s[16:19], s47 offen offset:336")
        E(f"  buffer_store_short v{pk[2]+2*mt+1}, v{t3}, s[16:19], s47 offen offset:672")
        E(f"  buffer_store_short_d16_hi v{pk[2]+2*mt+1}, v{t3}, s[16:19], s47 offen offset:1008")
    E("  s_mov_b64 exec, s[50:51]")
    E("L1_noq2:")
    E("  s_lshl_b32 s40, s25, 2")
    E(f"  v_mov_b32 v{t3}, s40")
    E("  s_mul_i32 s40, s28, 1680")
    E(f"  s_add_u32 s40, s40, {A_KV}")
    E(f"  v_mul_u32_u24 v{t2}, 80, v{t0}")
    E(f"  v_lshl_add_u32 v{t2}, v{t1}, 4, v{t2}")
    E(f"  v_add_u32 v{t2}, s40, v{t2}")
    E("  s_lshl_b32 s41, s27, 12")
    E(f"  v_add_u32 v{t2}, s41, v{t2}")
    E("  s_nop 4")
    E(f"  ds_write_b128 v{t2}, {vr(M,4)}")
    E("  s_mov_b64 exec, s[48:49]")
    E(f"  ds_write_b128 v{t2}, {vr(M+4,4)} offset:960")
    E("  s_mov_b64 exec, 0xffff")
    E(f"  ds_write_b128 v{t2}, {vr(M+8,4)} offset:64")
    E("  s_mov_b64 exec, 0xf0")
    E(f"  ds_write_b128 v{t2}, {vr(M+12,4)} offset:{960+64}")
    E("  s_mov_b32 s50, 0x00010001")
    E("  s_mov_b32 s51, 0x00010001")
    E("  s_mov_b64 exec, s[50:51]")
    E(f"  ds_write_b128 v{t2}, {vr(M+16,4)} offset:1600")
    E("  s_mov_b64 exec, 1")
    E(f"  ds_write_b128 v{t2}, {vr(M+20,4)} offset:{1600+64}")
    stamp(1)
    E("  s_cmp_lg_u32 s26, 0")
    E("  s_cbranch_scc1 L1_nopoll")
    E("L1_poll:")
    E(f"  buffer_load_dword v{t4}, v{t3}, s[20:23], 0 offen sc0 sc1")
    E("  s_waitcnt vmcnt(0)")
    E(f"  v_readfirstlane_b32 s41, v{t4}")
    E("  s_nop 3")
    E("  s_cmp_lt_u32 s41, 4")
    E("  s_cbranch_scc1 L1_poll")
    E("L1_nopoll:")
    E("  s_mov_b64 exec, -1")
    E("  s_waitcnt lgkmcnt(0)")
    E("  s_barrier")
    stamp(1)
    E(f"  v_lshl_or_b32 v{t3}, s26, 6, v0")
    E(f"  v_lshlrev_b32 v{t3}, 2, v{t3}")
    E(f"  v_add_u32 v{t4}, {A_KV}, v{t3}")
    for j in range(4):
        E(f"  ds_read_b32 v{TM+j}, v{t4} offset:{1024*j}")
        E(f"  ds_read_b32 v{TM+4+j}, v{t4} offset:{4096+1024*j}")
    E("  s_mul_i32 s40, s25, 3360")
    E(f"  s_add_u32 s40, s40, {KV_OFF}")
    E("  s_waitcnt lgkmcnt(0)")
    for j in range(4):
        E(f"  v_add_f32 v{TM+j}, v{TM+j}, v{TM+4+j}")
    for j in range(3):
        E(f"  buffer_atomic_add_f32 v{TM+j}, v{t3}, s[16:19], s40 offen offset:{1024*j}")
    E(f"  v_cmp_gt_u32 vcc, {3360-3072}, v{t3}")
    E("  s_and_saveexec_b64 s[50:51], vcc")
    E("  s_cbranch_execz L1_fin")
    E(f"  buffer_atomic_add_f32 v{TM+3}, v{t3}, s[16:19], s40 offen offset:3072")
    E("L1_fin:")

def k3_epilogue():
    t0, t1, t2, t3, t4 = V_T, V_T + 1, V_T + 2, V_T + 3, V_T + 4
    MS, RS, CSV, PK, TM = 16, 24, 32, 48, 144
    E(f"  v_and_b32 v{t0}, 15, v0")
    E(f"  v_lshrrev_b32 v{t1}, 4, v0")
    E("  s_lshl_b32 s40, s27, 8")
    E(f"  s_add_u32 s40, s40, {A_MEAN}")
    E(f"  v_lshl_add_u32 v{t2}, v{t0}, 2, s40")
    for mt in range(4):
        E(f"  ds_read_b32 v{MS+2*mt}, v{t2} offset:{64*mt}")
        E(f"  ds_read_b32 v{RS+2*mt}, v{t2} offset:{512+64*mt}")
    E("  s_lshl_b32 s41, s28, 8")
    E(f"  s_add_u32 s41, s41, {A_CS}")
    E(f"  v_lshl_add_u32 v{t3}, v{t1}, 4, s41")
    for t in range(4):
        E(f"  ds_read_b128 {vr(CSV+4*t,4)}, v{t3} offset:{64*t}")
    E(f"  v_lshrrev_b32 v{t2}, 2, v{t0}")
    E(f"  v_sub_u32 v{t2}, 0, v{t2}")
    E(f"  v_lshrrev_b32 v{t4}, 1, v{t1}")
    E(f"  v_xor_b32 v{t2}, v{t2}, v{t4}")
    E(f"  v_and_b32 v{t2}, 3, v{t2}")
    E(f"  v_lshlrev_b32 v{t2}, 4, v{t2}")
    E(f"  v_lshl_add_u32 v{t2}, v{t0}, 6, v{t2}")
    E(f"  v_and_b32 v{t4}, 1, v{t1}")
    E("  s_lshl_b32 s40, s24, 1")
    E("  s_add_u32 s40, s40, s27")
    E("  s_mul_i32 s40, s40, 221184")
    E(f"  s_add_u32 s40, s40, {H1_OFF}")
    E("  s_mul_i32 s41, s25, 224")
    E("  s_lshl_b32 s43, s28, 7")
    E("  s_add_u32 s43, s43, s41")
    E("  s_mov_b32 s50, s45")
    E("  s_mov_b32 s51, s45")
    E("  s_waitcnt lgkmcnt(0)")
    for tp in range(2):
        for mt in range(4):
            for u in range(2):
                t = 2 * tp + u
                a = acc(mt, t)
                tm = TM + 4 * u
                for p in range(2):
                    E(f"  v_pk_fma_f32 {vr(a+2*p,2)}, {vr(CSV+4*t+2*p,2)}, {vr(MS+2*mt,2)}, {vr(a+2*p,2)} op_sel_hi:[1,0,1] neg_lo:[0,1,0] neg_hi:[0,1,0]")
                for p in range(2):
                    E(f"  v_pk_mul_f32 {vr(a+2*p,2)}, {vr(a+2*p,2)}, {vr(RS+2*mt,2)} op_sel_hi:[1,0]")
                for p in range(2):
                    E(f"  v_pk_mul_f32 {vr(tm+2*p,2)}, {vr(a+2*p,2)}, s[50:51]")
                for r in range(4): E(f"  v_exp_f32 v{tm+r}, -v{tm+r}")
                for p in range(2):
                    E(f"  v_pk_add_f32 {vr(tm+2*p,2)}, {vr(tm+2*p,2)}, 1.0 op_sel_hi:[1,0]")
                for r in range(4): E(f"  v_rcp_f32 v{tm+r}, v{tm+r}")
                E("  s_nop 0")
                for p in range(2): E(f"  v_pk_mul_f32 {vr(a+2*p,2)}, {vr(a+2*p,2)}, {vr(tm+2*p,2)}")
                d = PK + (tp * 4 + mt) * 4 + 2 * u
                E(f"  v_cvt_pk_bf16_f32 v{d}, v{a}, v{a+1}")
                E(f"  v_cvt_pk_bf16_f32 v{d+1}, v{a+2}, v{a+3}")
            d = PK + (tp * 4 + mt) * 4
            E("  s_nop 1")
            E(f"  v_permlane16_swap_b32 v{d}, v{d+2}")
            E(f"  v_permlane16_swap_b32 v{d+1}, v{d+3}")
        E(f"  s_add_u32 s46, s43, {64*tp}")
        E(f"  v_lshl_add_u32 v{t3}, v{t4}, 5, s46")
        E(f"  v_lshrrev_b32 v{TM+8}, 6, v{t3}")
        E(f"  v_lshlrev_b32 v{TM+8}, 12, v{TM+8}")
        E(f"  v_and_b32 v{TM+9}, 32, v{t3}")
        E(f"  v_xor_b32 v{TM+9}, v{TM+9}, v{t2}")
        E(f"  v_add_u32 v{TM+8}, v{TM+8}, v{TM+9}")
        E(f"  v_cmp_gt_u32 vcc, 3456, v{t3}")
        E(f"  v_subrev_u32 v{TM+9}, s41, v{t3}")
        E(f"  v_cmp_gt_u32 s[46:47], s42, v{TM+9}" if False else "  s_mov_b64 s[48:49], vcc")
        E(f"  v_cmp_gt_u32 vcc, 224, v{TM+9}")
        E("  s_and_b64 vcc, vcc, s[48:49]")
        E(f"  v_mov_b32 v{TM+9}, 0x7fffffff")
        E(f"  v_cndmask_b32 v{TM+8}, v{TM+9}, v{TM+8}, vcc")
        for mt in range(4):
            d = PK + (tp * 4 + mt) * 4
            E(f"  buffer_store_dwordx4 {vr(d,4)}, v{TM+8}, s[16:19], s40 offen offset:{mt*1024}")

def head_6480(which):
    E("  s_cmp_ge_u32 s2, 256")
    E(f"  s_cbranch_scc1 L{which}_done")
    E("  s_load_dwordx4 s[36:39], s[0:1], 56")
    E("  s_load_dwordx2 s[4:5], s[0:1], 48")
    E(f"  s_load_dwordx2 s[6:7], s[0:1], {16 if which == 2 else 40}")
    E("  s_load_dwordx2 s[42:43], s[0:1], 0")
    stamp(which)
    E("  s_and_b32 s40, s2, 7")
    E("  s_lshr_b32 s41, s2, 3")
    if os.environ.get("OLDMAP"):
        E("  s_lshl_b32 s24, s40, 2")
        E("  s_and_b32 s44, s41, 3")
        E("  s_add_u32 s24, s24, s44")
        E("  s_lshr_b32 s25, s41, 2")
    else:
        E("  s_lshr_b32 s24, s40, 1")
        E("  s_lshl_b32 s24, s24, 3")
        E("  s_and_b32 s44, s41, 7")
        E("  s_add_u32 s24, s24, s44")
        E("  s_and_b32 s25, s40, 1")
        E("  s_lshl_b32 s25, s25, 2")
        E("  s_lshr_b32 s44, s41, 3")
        E("  s_add_u32 s25, s25, s44")
    E("  v_lshrrev_b32 v1, 6, v0")
    E("  v_mov_b32 v2, v0")
    E("  v_and_b32 v0, 63, v0")
    E("  v_readfirstlane_b32 s26, v1")
    E("  s_nop 3")

def res_addr():
    E("  v_lshrrev_b32 v3, 2, v2")
    E("  s_lshl_b32 s40, s24, 6")
    E("  v_add_u32 v3, s40, v3")
    E("  s_movk_i32 s41, 1280")
    E("  v_mul_lo_u32 v7, v3, s41")
    E("  v_and_b32 v4, 3, v2")
    E("  v_mad_u32_u24 v7, v4, 40, v7")
    E("  s_mul_i32 s40, s25, 160")
    E("  v_add_u32 v7, s40, v7")

def chunk_addr(vc, vrow, vcol, tmp):
    E("  s_movk_i32 s41, 6554")
    E(f"  v_mul_u32_u24 v{vrow}, s41, v{vc}")
    E(f"  v_lshrrev_b32 v{vrow}, 16, v{vrow}")
    E(f"  v_mul_u32_u24 v{tmp}, 10, v{vrow}")
    E(f"  v_sub_u32 v{vcol}, v{vc}, v{tmp}")

def res_load(rounds, res_srd, RES, GA):
    for r, add in enumerate(rounds):
        E(f"  v_add_u32 v3, {add}, v2")
        chunk_addr(3, 4, 5, 6)
        E("  s_lshl_b32 s40, s24, 6")
        E("  v_add_u32 v4, s40, v4")
        E("  s_movk_i32 s41, 1280")
        E(f"  v_mul_lo_u32 v{GA+r}, v4, s41")
        E(f"  v_lshl_add_u32 v{GA+r}, v5, 4, v{GA+r}")
        E("  s_mul_i32 s40, s25, 160")
        E(f"  v_add_u32 v{GA+r}, s40, v{GA+r}")
        E("  v_cmp_gt_u32 vcc, 640, v3")
        E(f"  v_cndmask_b32 v{GA+r}, -1, v{GA+r}, vcc")
        E(f"  buffer_load_dwordx4 {vr(RES+4*r,4)}, v{GA+r}, {sr(res_srd,4)}, 0 offen")

def final_sum(which, rounds, RES, GA, dst_srd, wstride, B):
    for r, add in enumerate(rounds):
        E(f"  v_add_u32 v3, {add}, v2")
        E("  v_min_u32 v3, 639, v3")
        chunk_addr(3, 4, 5, 6)
        E("  v_mul_u32_u24 v6, 336, v4")
        E("  v_lshl_add_u32 v6, v5, 5, v6")
        E(f"  v_add_u32 v3, {2*wstride}, v6")
        for w in range(4):
            for j in range(2):
                E(f"  ds_read_b128 {vr(B+w*8+j*4,4)}, {'v6' if w < 2 else 'v3'} offset:{(w&1)*wstride+j*16}")
        E("  s_waitcnt lgkmcnt(0)")
        for i in range(4):
            E(f"  v_pk_add_f32 {vr(B+2*i,2)}, {vr(B+2*i,2)}, {vr(B+8+2*i,2)}")
            E(f"  v_pk_add_f32 {vr(B+16+2*i,2)}, {vr(B+16+2*i,2)}, {vr(B+24+2*i,2)}")
        for i in range(4):
            E(f"  v_pk_add_f32 {vr(B+2*i,2)}, {vr(B+2*i,2)}, {vr(B+16+2*i,2)}")
        E("  s_waitcnt vmcnt(0)")
        T = B + 8
        for i in range(4):
            E(f"  v_lshlrev_b32 v{T}, 16, v{RES+4*r+i}")
            E(f"  v_and_b32 v{T+1}, 0xffff0000, v{RES+4*r+i}")
            if which == 2:
                E(f"  v_cvt_pk_bf16_f32 v{T+2}, v{B+2*i}, v{B+2*i+1}")
                E(f"  v_lshlrev_b32 v{B+2*i}, 16, v{T+2}")
                E(f"  v_and_b32 v{B+2*i+1}, 0xffff0000, v{T+2}")
            E(f"  v_pk_add_f32 {vr(B+2*i,2)}, {vr(B+2*i,2)}, {vr(T,2)}")
            E(f"  v_cvt_pk_bf16_f32 v{T+4+i}, v{B+2*i}, v{B+2*i+1}")
        E(f"  buffer_store_dwordx4 {vr(T+4,4)}, v{GA+r}, {sr(dst_srd,4)}, 0 offen")
        if which == 2:
            S = T + 8
            for i in range(4):
                E(f"  v_lshlrev_b32 v{T}, 16, v{T+4+i}")
                E(f"  v_and_b32 v{T+1}, 0xffff0000, v{T+4+i}")
                if i == 0:
                    E(f"  v_mov_b32 v{S}, v{T}")
                    E(f"  v_mov_b32 v{S+1}, v{T+1}")
                    E(f"  v_pk_mul_f32 {vr(S+2,2)}, {vr(T,2)}, {vr(T,2)}")
                else:
                    E(f"  v_pk_add_f32 {vr(S,2)}, {vr(S,2)}, {vr(T,2)}")
                    E(f"  v_pk_fma_f32 {vr(S+2,2)}, {vr(T,2)}, {vr(T,2)}, {vr(S+2,2)}")
            E(f"  v_add_f32 v{S}, v{S}, v{S+1}")
            E(f"  v_add_f32 v{S+1}, v{S+2}, v{S+3}")
            E("  v_mul_u32_u24 v6, 10, v4")
            E("  v_add_u32 v6, v6, v5")
            E("  v_lshlrev_b32 v6, 3, v6")
            E(f"  v_add_u32 v6, {K2_STAT}, v6")
            E(f"  v_add_u32 v3, {add}, v2")
            E("  v_cmp_gt_u32 vcc, 640, v3")
            E("  s_and_saveexec_b64 s[50:51], vcc")
            E(f"  ds_write_b64 v6, {vr(S,2)}")
            E("  s_mov_b64 exec, s[50:51]")

K2_STAT = 4 * 40960 - 5120 - 16

def k4(name):
    kernel_head(name)
    head_6480(4)
    E("  s_mul_i32 s40, s24, 221184")
    E(f"  s_add_u32 s40, s40, {H1_OFF}")
    E("  s_mul_i32 s41, s25, 276480")
    E(f"  s_add_u32 s41, s41, {W2T_OFF}")
    E("  s_waitcnt lgkmcnt(0)")
    E("  s_add_u32 s8, s38, s40")
    E("  s_addc_u32 s9, s39, 0")
    E("  s_mov_b32 s10, 221184")
    E("  s_mov_b32 s11, 0x00020000")
    E("  s_add_u32 s12, s38, s41")
    E("  s_addc_u32 s13, s39, 0")
    E("  s_mov_b32 s14, 276480")
    E("  s_mov_b32 s15, 0x00020000")
    srd(16, 38, 2048 * 1280, H_OFF)
    srd(20, 4, 2048 * 1280)
    E("  s_cmp_ge_u32 s26, 4")
    E("  s_cbranch_scc1 L4_loader")
    if os.environ.get("PRIO"): E("  s_setprio 2")
    if os.environ.get("PF4"):
        E("  s_and_b32 s40, s25, 3")
        E("  s_mul_i32 s40, s40, 432")
        E("  s_and_b32 s41, s24, 7")
        E("  s_mul_i32 s41, s41, 270")
        E("  v_mov_b32 v6, 0x7fffffff")
        for r in range(2):
            E(f"  v_add_u32 v3, {256*r}, v2")
            E("  v_add_u32 v4, s40, v3")
            E("  v_lshlrev_b32 v4, 7, v4")
            E("  v_cmp_gt_u32 vcc, 432, v3")
            E("  v_cndmask_b32 v4, v6, v4, vcc")
            E(f"  buffer_load_dword v{100+r}, v4, s[8:11], 0 offen")
            E("  v_add_u32 v5, s41, v3")
            E("  v_lshlrev_b32 v5, 7, v5")
            E("  v_cmp_gt_u32 vcc, 270, v3")
            E("  v_cndmask_b32 v5, v6, v5, vcc")
            E(f"  buffer_load_dword v{102+r}, v5, s[12:15], 0 offen")
    E("  s_mul_i32 s34, s26, 36864")
    E("  v_and_b32 v3, 15, v0")
    E("  v_lshrrev_b32 v4, 4, v0")
    E("  v_lshrrev_b32 v5, 2, v3")
    E("  v_sub_u32 v6, 0, v5")
    E("  v_xor_b32 v6, v6, v4")
    E("  v_and_b32 v6, 3, v6")
    E("  v_lshlrev_b32 v6, 4, v6")
    E("  v_lshl_add_u32 v6, v3, 6, v6")
    E("  v_add_u32 v8, s34, v6")
    E("  v_lshrrev_b32 v6, 1, v4")
    E("  v_lshl_add_u32 v6, v6, 4, v5")
    E("  v_and_b32 v4, 1, v4")
    E("  v_lshl_add_u32 v6, v4, 2, v6")
    E("  v_mul_u32_u24 v6, 160, v6")
    E("  v_and_b32 v3, 3, v3")
    E("  v_lshl_add_u32 v6, v3, 3, v6")
    E("  v_add_u32 v6, 4096, v6")
    E("  v_add_u32 v9, s34, v6")
    ACC = 16
    def accf(mt, nt): return ACC + (mt * 5 + nt) * 4
    for i in range(80):
        E(f"  v_mov_b32 v{ACC+i}, 0")
    RES = 96
    X, Y = 96 + 12, 96 + 12 + 36
    X, Y = 96, 132
    RES = 168 - 0
    def reads(step, base):
        sl = step % 4
        r = []
        for mt in range(4):
            r.append(f"  ds_read_b128 {vr(base+4*mt,4)}, v8 offset:{sl*9216+mt*1024}")
        for nt in range(5):
            for h in range(2):
                r.append(f"  ds_read_b64_tr_b16 {vr(base+16+4*nt+2*h,2)}, v9 offset:{sl*9216+h*1280+nt*32}")
        return r
    NSTEP = 14
    E("  s_barrier")
    stamp(4)
    for r in reads(0, X): E(r)
    for i in range(NSTEP):
        cur, nxt = (X, Y) if i % 2 == 0 else (Y, X)
        E("  s_waitcnt lgkmcnt(0)")
        if i + 1 < NSTEP:
            E("  s_barrier")
        mfs = [f"  v_mfma_f32_16x16x32_bf16 {vr(accf(mt,nt),4)}, {vr(cur+16+4*nt,4)}, {vr(cur+4*mt,4)}, {vr(accf(mt,nt),4)}" for mt in range(4) for nt in range(5)]
        interleave(mfs, reads(i + 1, nxt) if i + 1 < NSTEP else [])
        if i == NSTEP - 2:
            pass
    stamp(4)
    pads_on()
    E("  v_and_b32 v3, 15, v0")
    E("  v_lshrrev_b32 v4, 4, v0")
    E("  v_mul_u32_u24 v5, 336, v3")
    E("  v_lshl_add_u32 v5, v4, 4, v5")
    E("  v_add_u32 v5, s34, v5")
    E("  s_nop 7")
    for mt in range(4):
        for nt in range(5):
            E(f"  ds_write_b128 v5, {vr(accf(mt,nt),4)} offset:{mt*16*336+nt*64}")
    E("  s_waitcnt lgkmcnt(0)")
    pads_off()
    E("  s_branch L4_fin")
    E("L4_loader:")
    E("  s_sub_u32 s27, s26, 4")
    E("  s_lshr_b32 s28, s27, 1")
    E("  s_and_b32 s27, s27, 1")
    E("  s_mul_i32 s34, s28, 36864")
    E(f"  s_mul_i32 s32, s28, {14*4096}")
    E(f"  s_mul_i32 s33, s28, {14*5120}")
    E("  v_lshlrev_b32 v8, 4, v0")
    for half in range(2):
        if half == 0:
            E("  s_cmp_eq_u32 s27, 1")
            E("  s_cbranch_scc1 L4_ld1")
        else:
            E("L4_ld1:")
        n = 5 if half == 0 else 4
        def dma(step):
            sl = step % 4
            if half == 0:
                E(f"  s_add_u32 s35, s34, {sl*9216}")
                E("  s_mov_b32 m0, s35")
                E("  s_add_u32 s35, s35, 8192")
                for j in range(4):
                    E(f"  buffer_load_dwordx4 v8, s[8:11], s32 offen offset:{j*1024} lds")
                E("  s_mov_b32 m0, s35")
                E("  s_add_u32 s32, s32, 4096")
                E("  s_add_u32 s35, s33, 4096")
                E("  buffer_load_dwordx4 v8, s[12:15], s35 offen lds")
            else:
                E(f"  s_add_u32 s35, s34, {sl*9216+4096}")
                E("  s_mov_b32 m0, s35")
                E("  s_nop 0")
                for j in range(4):
                    E(f"  buffer_load_dwordx4 v8, s[12:15], s33 offen offset:{j*1024} lds")
            E(f"  s_add_u32 s33, s33, 5120")
        for s in range(4): dma(s)
        last = 3
        if half == 0: pf_enter("L4", 4, "s28")
        PF = int(os.environ.get("K4PF", "0"))
        npf = 0
        if PF:
            E("  s_mov_b32 s48, s32")
            E("  s_mov_b32 s49, s33")
            for st in range(4, 4 + PF):
                if half == 0:
                    for j in range(4):
                        E(f"  buffer_load_dwordx4 v[20:23], v{8+j}, s[8:11], s48 offen offset:{j*1024}")
                    E("  buffer_load_dwordx4 v[20:23], v16, s[12:15], s49 offen")
                    E("  s_add_u32 s48, s48, 64")
                else:
                    for j in range(4):
                        E(f"  buffer_load_dwordx4 v[20:23], v{12+j}, s[12:15], s49 offen offset:{j*1024}")
                E(f"  s_add_u32 s49, s49, {32*1280}")
                npf += n
        E(f"  s_waitcnt vmcnt({3*n+npf})")
        E("  s_barrier")
        for i in range(NSTEP - 1):
            E(f"  s_waitcnt vmcnt({min(63,(last-(i+1))*n + (npf if i+1 <= 3 else 0))})")
            E("  s_barrier")
            if i + 4 < NSTEP:
                dma(i + 4); last = i + 4
            if i == NSTEP - 5:
                pass
        E("  s_branch L4_fin")
    E("L4_fin:")
    pad["on"] = True
    res_load([0], 16, 16, 12)
    E("  s_barrier")
    final_sum(4, [0], 16, 12, 20, 36864, 24)
    pads_off()
    stamp(4)
    stamp_flush(4, 36)
    rt_end(4)
    E("L4_done:")
    E("  s_endpgm")

def k2(name):
    kernel_head(name)
    head_6480(2)
    E("  s_and_b32 s27, s26, 3")
    E("  s_lshr_b32 s33, s26, 2")
    E("  s_mul_i32 s34, s27, 40960")
    E("  v_lshlrev_b32 v8, 4, v0")
    E("  s_lshl_b32 s40, s24, 2")
    E("  s_add_u32 s40, s40, s27")
    E("  s_mul_i32 s44, s40, 21504")
    E("  s_mul_i32 s45, s33, 11264")
    E("  s_add_u32 s44, s44, s45")
    E("  s_add_u32 s35, s34, s45")
    E("  s_mov_b32 m0, s35")
    E("  s_waitcnt lgkmcnt(0)")
    srd(8, 38, 128 * 21504, PQT_OFF)
    srd(28, 38, 53760, KV_OFF)
    srd(12, 38, 8 * 102400, WOT_OFF)
    E("  s_mul_i32 s46, s27, 13440")
    E("  s_mul_i32 s45, s33, 7168")
    E("  s_add_u32 s46, s46, s45")
    E("  s_add_u32 s35, s34, 21504")
    E("  s_add_u32 s45, s45, s35")
    E("  s_mov_b32 s47, m0")
    E("  s_mov_b32 m0, s45")
    E("  s_nop 0")
    for j in range(7):
        E("  buffer_load_dwordx4 v8, s[28:31], s46 offen lds")
        E("  s_add_u32 m0, m0, 1024")
        E("  s_add_u32 s46, s46, 1024")
    E("  s_mov_b32 m0, s47")
    E("  s_nop 0")
    for j in range(11):
        if j == 10:
            E("  s_cmp_eq_u32 s33, 1")
            E("  s_cbranch_scc1 L2_pq10")
        E("  buffer_load_dwordx4 v8, s[8:11], s44 offen lds")
        E("  s_add_u32 m0, m0, 1024")
        E("  s_add_u32 s44, s44, 1024")
    E("L2_pq10:")
    WR = 196
    E("  s_mul_i32 s32, s27, 25600")
    E("  s_mul_i32 s45, s25, 102400")
    E("  s_add_u32 s32, s32, s45")
    E("  s_mul_i32 s45, s33, 13312")
    E("  s_add_u32 s32, s32, s45")
    E("  v_mov_b32 v7, v8")
    srd(16, 42, 2048 * 1280)
    srd(20, 38, 2048 * 1280, H_OFF)
    srd(28, 38, WS_BYTES)
    RES, GA = 248, 194
    res_load([0, 512], 16, RES, GA)
    E("  v_and_b32 v3, 15, v0")
    E("  v_lshrrev_b32 v4, 4, v0")
    E("  v_cmp_eq_u32 s[46:47], 0, v4")
    E("  v_lshrrev_b32 v5, 2, v3")
    for q in range(4):
        E(f"  v_cmp_eq_u32 s[{48+2*q}:{49+2*q}], {q}, v5")
        E(f"  v_cmp_eq_u32 s[{56+2*q}:{57+2*q}], {q}, v4")
    E("  v_mul_u32_u24 v8, 80, v3")
    E("  v_add_u32 v8, s35, v8")
    E("  v_lshl_add_u32 v9, v4, 4, v8")
    E("  v_and_b32 v10, 3, v3")
    E("  v_mul_u32_u24 v10, 80, v10")
    E("  v_add_u32 v10, s35, v10")
    E("  v_add_u32 v10, 1280, v10")
    E("  v_lshl_add_u32 v11, v4, 4, v10")
    E("  v_mov_b32 v12, s35")
    E("  v_add_u32 v12, 1600, v12")
    E("  v_lshl_add_u32 v13, v4, 4, v12")
    E("  s_mul_i32 s40, s33, 10752")
    E("  s_add_u32 s40, s40, s34")
    E("  v_mul_u32_u24 v14, 336, v3")
    E("  v_add_u32 v14, s40, v14")
    E("  v_add_u32 v15, 32, v14")
    E("  v_lshl_add_u32 v14, v4, 3, v14")
    pf_enter("L2", 8, "s26")
    E("  s_waitcnt vmcnt(12)")
    stamp(2)
    E("  s_barrier")
    stamp(2)
    KF, T = 32, 128
    def kvreads(hh):
        o = hh * 1680
        tt0 = T + 24 * (hh % 2)
        E(f"  ds_read_b128 {vr(tt0,4)}, v9 offset:{o}")
        E(f"  ds_read_b128 {vr(tt0+4,4)}, v8 offset:{o+64}")
        E(f"  ds_read_b128 {vr(tt0+8,4)}, v11 offset:{o}")
        E(f"  ds_read_b128 {vr(tt0+12,4)}, v10 offset:{o+64}")
        E(f"  ds_read_b128 {vr(tt0+16,4)}, v13 offset:{o}")
        E(f"  ds_read_b128 {vr(tt0+20,4)}, v12 offset:{o+64}")
    kvreads(0)
    for hh in range(8):
        if hh + 1 < 8:
            kvreads(hh + 1)
            E("  s_waitcnt lgkmcnt(6)")
        else:
            E("  s_waitcnt lgkmcnt(0)")
        f = KF + 12 * hh
        tt0 = T + 24 * (hh % 2)
        for tt in range(3):
            for p in range(4):
                E(f"  v_cvt_pk_bf16_f32 v{f+4*tt+p}, v{tt0+8*tt+2*p}, v{tt0+8*tt+2*p+1}")
        m = f"s[{48+2*(hh%4)}:{49+2*(hh%4)}]"
        for tt in range(3):
            E(f"  v_cndmask_b32 v{f+4*tt+2}, 0, v{f+4*tt+2}, s[46:47]")
            E(f"  v_cndmask_b32 v{f+4*tt+3}, 0, v{f+4*tt+3}, s[46:47]")
        for p in range(4):
            E(f"  v_cndmask_b32 v{f+4+p}, 0, v{f+4+p}, {m}")
    E("  s_waitcnt vmcnt(2)")
    for j in range(13):
        E(f"  buffer_load_dwordx4 {vr(WR+4*j,4)}, v7, s[12:15], s32 offen")
        E("  s_add_u32 s32, s32, 1024")
    E("  s_barrier")
    stamp(2)
    OF = 128
    def of(u, ks): return OF + u * 20 + ks * 4
    PQa, PQb, N0, D, N1, RS = 168, 16, 176, 24, 184, 192
    E("  s_mov_b32 s45, 0x358637bd")
    def pqreads(hh):
        P = PQa if hh % 2 == 0 else PQb
        for u in range(2):
            E(f"  ds_read_b64 {vr(P+4*u,2)}, v14 offset:{u*16*336+40*hh}")
            E(f"  ds_read_b64 {vr(P+4*u+2,2)}, v15 offset:{u*16*336+40*hh}")
    pqreads(0)
    for hh in range(8):
        P = PQa if hh % 2 == 0 else PQb
        f = KF + 12 * hh
        if hh + 1 < 8:
            pqreads(hh + 1)
            E("  s_waitcnt lgkmcnt(4)")
        else:
            E("  s_waitcnt lgkmcnt(0)")
        for u in range(2):
            E(f"  v_mfma_f32_16x16x32_bf16 {vr(D+4*u,4)}, {vr(f+8,4)}, {vr(P+4*u,4)}, 0")
        for u in range(2):
            E(f"  v_mfma_f32_16x16x32_bf16 {vr(N0+4*u,4)}, {vr(f,4)}, {vr(P+4*u,4)}, 0")
        for u in range(2):
            c = "0" if hh % 4 == 0 else vr(N1 + 4 * u, 4)
            E(f"  v_mfma_f32_16x16x32_bf16 {vr(N1+4*u,4)}, {vr(f+4,4)}, {vr(P+4*u,4)}, {c}")
        E("  s_nop 4")
        for u in range(2):
            E(f"  v_add_f32 v{D+4*u}, s45, v{D+4*u}")
            E(f"  v_rcp_f32 v{D+4*u}, v{D+4*u}")
        E("  s_nop 1")
        for u in range(2):
            for r in range(4):
                E(f"  v_mul_f32 v{N0+4*u+r}, v{N0+4*u+r}, v{D+4*u}")
            dst = of(u, hh // 2) + 2 * (hh % 2)
            E(f"  v_cvt_pk_bf16_f32 v{dst}, v{N0+4*u}, v{N0+4*u+1}")
            E(f"  v_cvt_pk_bf16_f32 v{dst+1}, v{N0+4*u+2}, v{N0+4*u+3}")
            gm = f"s[{56+2*(hh%4)}:{57+2*(hh%4)}]"
            E(f"  v_cndmask_b32 v{RS+u}, v{RS+u}, v{D+4*u}, {gm}")
        if hh % 4 == 3:
            E("  s_nop 4")
            for u in range(2):
                for r in range(4):
                    E(f"  v_mul_f32 v{D+4*u+r}, v{N1+4*u+r}, v{RS+u}")
                dst = of(u, 4) + 2 * (hh // 4)
                E(f"  v_cvt_pk_bf16_f32 v{dst}, v{D+4*u}, v{D+4*u+1}")
                E(f"  v_cvt_pk_bf16_f32 v{dst+1}, v{D+4*u+2}, v{D+4*u+3}")
    stamp(2)
    E("  v_lshlrev_b32 v16, 4, v0")
    E("  s_mul_i32 s40, s33, 13312")
    E("  s_add_u32 s40, s40, s34")
    E("  v_add_u32 v16, s40, v16")
    E("  v_lshl_add_u32 v8, v4, 2, v5")
    E("  v_mul_u32_u24 v8, 160, v8")
    E("  v_and_b32 v6, 3, v3")
    E("  v_lshl_add_u32 v8, v6, 3, v8")
    E("  v_add_u32 v8, s34, v8")
    E("  v_mul_u32_u24 v9, 20, v4")
    E("  v_add_u32 v9, v9, v5")
    E("  v_add_u32 v9, 16, v9")
    E("  v_mul_u32_u24 v9, 160, v9")
    E("  v_lshl_add_u32 v9, v6, 3, v9")
    E("  v_add_u32 v9, s34, v9")
    E("  s_waitcnt vmcnt(0)")
    E("  s_barrier")
    for j in range(13):
        if j == 12:
            E("  s_cmp_eq_u32 s33, 1")
            E("  s_cbranch_scc1 L2_w12")
        E(f"  ds_write_b128 v16, {vr(WR+4*j,4)} offset:{1024*j}")
    E("L2_w12:")
    E("  s_waitcnt lgkmcnt(0)")
    E("  s_barrier")
    stamp(2)
    ACC = 32
    def accf(u, nt): return ACC + (u * 5 + nt) * 4
    WFS = [72, 92]
    def wreads(ks):
        W = WFS[ks % 2]
        r = []
        for nt in range(5):
            for h in range(2):
                if ks < 4:
                    r.append(f"  ds_read_b64_tr_b16 {vr(W+4*nt+2*h,2)}, v8 offset:{ks*6400+h*3200+nt*32}")
                else:
                    r.append(f"  ds_read_b64_tr_b16 {vr(W+4*nt+2*h,2)}, v9 offset:{h*12800+nt*32}")
        return r
    for r in wreads(0): E(r)
    for ks in range(5):
        W = WFS[ks % 2]
        E("  s_waitcnt lgkmcnt(0)")
        mfs = []
        for nt in range(5):
            for u in range(2):
                c = "0" if ks == 0 else vr(accf(u, nt), 4)
                mfs.append(f"  v_mfma_f32_16x16x32_bf16 {vr(accf(u,nt),4)}, {vr(W+4*nt,4)}, {vr(of(u,ks),4)}, {c}")
        interleave(mfs, wreads(ks + 1) if ks < 4 else [], per=1)
    stamp(2)
    E("  s_barrier")
    E("  s_mul_i32 s40, s33, 10752")
    E("  s_add_u32 s40, s40, s34")
    E("  v_mul_u32_u24 v5, 336, v3")
    E("  v_lshl_add_u32 v5, v4, 4, v5")
    E("  v_add_u32 v5, s40, v5")
    for u in range(2):
        for nt in range(5):
            E(f"  ds_write_b128 v5, {vr(accf(u,nt),4)} offset:{u*16*336+nt*64}")
    E("  s_waitcnt lgkmcnt(0)")
    E("  s_barrier")
    final_sum(2, [0, 512], RES, GA, 20, 40960, 32)
    E("  s_waitcnt lgkmcnt(0)")
    E("  s_barrier")
    E("  s_cmp_lg_u32 s26, 0")
    E("  s_cbranch_scc1 L2_nost")
    E("  v_mul_u32_u24 v6, 80, v0")
    E(f"  v_add_u32 v6, {K2_STAT}, v6")
    for j in range(5):
        E(f"  ds_read_b128 {vr(32+4*j,4)}, v6 offset:{16*j}")
    E("  s_waitcnt lgkmcnt(0)")
    for j in range(1, 10):
        E(f"  v_pk_add_f32 v[32:33], v[32:33], {vr(32+2*j,2)}")
    E("  s_lshl_b32 s40, s24, 12")
    E("  s_lshl_b32 s41, s25, 3")
    E("  s_add_u32 s40, s40, s41")
    E(f"  s_add_u32 s40, s40, {RS_OFF}")
    E("  v_lshlrev_b32 v3, 6, v0")
    E("  buffer_store_dwordx2 v[32:33], v3, s[28:31], s40 offen")
    E("L2_nost:")
    pads_off()
    stamp(2)
    stamp_flush(2, 36)
    rt_end(2)
    E("L2_done:")
    E("  s_endpgm")

def main():
    N = ["k1_qkv_kernel", "k2_attn_kernel", "k3_ffn1_kernel", "k4_ffn2_kernel"]
    hdr = open('cdna_kernels/' + NAME + '.s.ref').read().split("; Override")[0]
    E(hdr.rstrip())
    lds = [163840, 163840, 163840, 4 * 36864]
    blk = [768, 512, 768, 768]
    for i, n in enumerate(N):
        E(f"; @launch kernel={n} grid=(256,1,1) block=({blk[i]},1,1) lds={lds[i]}")
    E('.amdgcn_target "amdgcn-amd-amdhsa--gfx950"')
    E(".text")
    st = len(out); ln_gemm(N[0], 1); resolve_pads("L1", st)
    st = len(out); k2(N[1]); resolve_pads("L2", st)
    st = len(out); ln_gemm(N[2], 3); resolve_pads("L3", st)
    st = len(out); k4(N[3]); resolve_pads("L4", st)
    E("Lcode_end:")
    E('.section .rodata,"a"')
    E(kernel_desc(N[0]))
    E(kernel_desc(N[1], vgpr=256))
    E(kernel_desc(N[2]))
    E(kernel_desc(N[3]))
    open(sys.argv[1], 'w').write("\n".join(out) + "\n")
main()
```

```python
import sys, os
NAME = "sequential_preLN__linear_attn_block__dense_activation_silu__prompt"
PQ_OFF = 0
KV_OFF = 0x280000
H_OFF = 0x290000
H1_OFF = 0x510000
RS_OFF = H1_OFF + 2048 * 1728 * 2
W1T_OFF = RS_OFF + 2048 * 64
W2T_OFF = W1T_OFF + 16 * 163840
WOT_OFF = W2T_OFF + 8 * 276480
PQT_OFF = WOT_OFF + 8 * 102400
CSP_OFF = PQT_OFF + 128 * 21504
WS_BYTES = CSP_OFF + 16 * 16 * 512
out = []
PADN = int(os.environ.get("PADN", "0"))
pad = {"on": False, "cnt": 0, "masked": False, "n": 0}
def E(s=""):
    out.append(s)
    t = s.strip()
    if not pad["on"] or not t or t.endswith(":") or t.startswith("."): return
    if t.startswith("s_mov_b64 exec") or "saveexec" in t:
        pad["masked"] = not t.endswith("exec, -1")
    pad["cnt"] += 1
    if PADN and pad["cnt"] >= PADN and not pad["masked"] and t.startswith(("v_", "ds_")) and not t.startswith(("v_cmp", "v_readfirst")):
        out.append(f"@PAD {pad['n']}")
        pad["n"] += 1
        pad["cnt"] = 0
def pads_on(): pad["on"] = True; pad["cnt"] = 0; pad["masked"] = False
def pads_off(): pad["on"] = False
def pf_enter(L, nw, wave_sreg, wbase=0):
    out.append(f"@PFENTER {L} {nw} {wave_sreg} {wbase}")
    E(f"{L}_PFRET:")
    E("  s_mov_b64 exec, -1")
def resolve_pads(L, start):
    n = pad["n"]
    ent = [i for i in range(start, len(out)) if out[i].startswith("@PFENTER")]
    nw = int(out[ent[0]].split()[2]) if ent else 1
    starts = [k * n // nw for k in range(nw)]
    sset = set(starts[1:])
    for i in range(start, len(out)):
        if out[i].startswith("@PAD"):
            k = int(out[i].split()[1])
            nxt = f"{L}_PFRET" if (k + 1 == n or (k + 1) in sset) else f"{L}_P{k+1}"
            out[i] = f"{L}_P{k}:\n  s_cbranch_execz {nxt}"
        elif out[i].startswith("@PFENTER"):
            _, L_, nw_, sreg, wb = out[i].split()
            txt = []
            if n:
                txt.append("  s_mov_b64 exec, 0")
                for k in range(nw):
                    txt.append(f"  s_cmp_eq_u32 {sreg}, {int(wb)+k}")
                    txt.append(f"  s_cbranch_scc1 {L}_P{starts[k]}")
            out[i] = "\n".join(txt)
    pad["n"] = 0; pad["on"] = False
def WT(level):
    return " sc1" if level in os.environ.get("WT", "") else ""
def vr(b, n=1):
    return f"v{b}" if n == 1 else f"v[{b}:{b+n-1}]"
def sr(b, n=1):
    return f"s{b}" if n == 1 else f"s[{b}:{b+n-1}]"
def srd(dst, lo, nbytes, add=0):
    if add:
        E(f"  s_add_u32 s{dst}, s{lo}, {add}")
        E(f"  s_addc_u32 s{dst+1}, s{lo+1}, 0")
    else:
        E(f"  s_mov_b32 s{dst}, s{lo}")
        E(f"  s_mov_b32 s{dst+1}, s{lo+1}")
    E(f"  s_mov_b32 s{dst+2}, {nbytes}")
    E(f"  s_mov_b32 s{dst+3}, 0x00020000")
STAMP = os.environ.get("STAMP", "")
stamp_n = [0]
SB0 = 64 if STAMP == "2" else 60
def stamp(which):
    if STAMP != str(which): return
    i = stamp_n[0]; stamp_n[0] += 1
    E(f"  s_memtime s[{SB0+2*i}:{SB0+1+2*i}]")
def stamp_flush(which, dbg_lo, wave=0):
    if STAMP != str(which): return
    n = stamp_n[0]
    E("  s_waitcnt lgkmcnt(0) vmcnt(0)")
    E("  s_mov_b64 exec, -1")
    E(f"  s_cmp_lg_u32 s2, {os.environ.get('STAMPWG','0')}")
    E(f"  s_cbranch_scc1 LS{which}_skip")
    E("  s_cmp_lg_u32 s26, 0")
    E(f"  s_cbranch_scc1 LS{which}_skip")
    E(f"  s_mov_b32 s92, s{dbg_lo}")
    E(f"  s_mov_b32 s93, s{dbg_lo+1}")
    E("  s_mov_b32 s94, 256")
    E("  s_mov_b32 s95, 0x00020000")
    E("  s_mov_b64 exec, 1")
    E("  v_mov_b32 v1, 0")
    for i in range(n):
        E(f"  s_sub_u32 s58, s{SB0+2*i}, s{SB0}")
        E("  v_mov_b32 v2, s58")
        E(f"  buffer_store_dword v2, v1, s[92:95], 0 offen offset:{128+4*i}")
    E(f"LS{which}_skip:")
    stamp_n[0] = 0
RT = os.environ.get("RT")
def kernel_head(name):
    E(f".globl {name}")
    E(".p2align 8")
    E(f".type {name},@function")
    E(f"{name}:")
    if RT: E("  s_memrealtime s[98:99]")
def rt_end(which):
    if not RT: return
    E("  s_mov_b64 exec, -1")
    E("  s_waitcnt vmcnt(0) lgkmcnt(0)")
    E("  s_memrealtime s[100:101]")
    E("  s_cmp_lg_u32 s26, 0")
    E(f"  s_cbranch_scc1 LRT{which}")
    E(f"  s_add_u32 s92, s38, {(48<<20) + which*4096}")
    E("  s_addc_u32 s93, s39, 0")
    E("  s_mov_b32 s94, 4096")
    E("  s_mov_b32 s95, 0x00020000")
    E("  s_waitcnt lgkmcnt(0)")
    E("  s_mov_b64 exec, 1")
    E("  v_mov_b32 v2, s98")
    E("  v_mov_b32 v3, s100")
    E("  s_lshl_b32 s58, s2, 3")
    E("  v_mov_b32 v1, s58")
    E("  buffer_store_dwordx2 v[2:3], v1, s[92:95], 0 offen")
    E(f"LRT{which}:")
def kernel_desc(name, vgpr=168, sgpr=(102 if os.environ.get("RT") else 96), accoff=None):
    return f""".p2align 6
.amdhsa_kernel {name}
  .amdhsa_next_free_vgpr {vgpr}
  .amdhsa_next_free_sgpr {sgpr}
  .amdhsa_accum_offset {accoff or (vgpr+3)//4*4}
  .amdhsa_group_segment_fixed_size 0
  .amdhsa_kernarg_size 72
  .amdhsa_user_sgpr_count 2
  .amdhsa_user_sgpr_kernarg_segment_ptr 1
  .amdhsa_system_sgpr_workgroup_id_x 1
.end_amdhsa_kernel"""

def interleave(mf, other, per=int(os.environ.get("PER","1"))):
    other = list(other)
    for m in mf:
        E(m)
        for _ in range(per):
            if other: E(other.pop(0))
    for o in other: E(o)

NS = 4
SLOT = 32768
NST = 10
AUX = NS * SLOT
A_SUM, A_SQ, A_CS = AUX, AUX + 512, AUX + 1024
A_MEAN, A_RSTD = AUX + 2048, AUX + 2560
A_KV = AUX + 4096
A_CP = AUX + 12288
U2 = 62

V_RA, V_RB = 2, 4
V_T = 8
V_X, V_Y, V_ACC, V_E = 16, 48, 80, 144
def acc(mt, t): return V_ACC + (mt * 4 + t) * 4

def ln_gemm(name, which):
    k1 = which == 1
    L = f"L{which}"
    ldb = 3840 if k1 else 3456
    swapped = [False, False, False, True] if k1 else [True] * 4
    t0, t1, t2, t3, t4 = V_T, V_T + 1, V_T + 2, V_T + 3, V_T + 4
    kernel_head(name)
    E("  s_cmp_ge_u32 s2, 256")
    E(f"  s_cbranch_scc1 {L}_done")
    E("  s_load_dwordx2 s[4:5], s[0:1], 0" if k1 else "  s_load_dwordx2 s[4:5], s[0:1], 64")
    E(f"  s_load_dwordx2 s[6:7], s[0:1], {8 if k1 else 32}")
    E("  s_load_dwordx4 s[36:39], s[0:1], 56")
    stamp(which)
    E("  s_and_b32 s40, s2, 7")
    E("  s_lshr_b32 s41, s2, 3")
    E("  s_lshr_b32 s24, s40, 1")
    E("  s_lshl_b32 s24, s24, 2")
    E("  s_and_b32 s42, s41, 3")
    E("  s_add_u32 s24, s24, s42")
    E("  s_and_b32 s25, s40, 1")
    E("  s_lshl_b32 s25, s25, 3")
    E("  s_lshr_b32 s42, s41, 2")
    E("  s_add_u32 s25, s25, s42")
    E("  v_lshrrev_b32 v1, 6, v0")
    E("  v_and_b32 v0, 63, v0")
    E("  v_readfirstlane_b32 s26, v1")
    E("  s_waitcnt lgkmcnt(0)")
    if k1: srd(8, 4, 2048 * 1280)
    else: srd(8, 4, 2048 * 1280, H_OFF)
    if k1: srd(12, 6, 640 * ldb)
    else: srd(12, 4, 16 * 163840, W1T_OFF)
    srd(16, 38, WS_BYTES)
    srd(20, 36, 256)
    E("  s_cmp_ge_u32 s26, 4")
    E(f"  s_cbranch_scc1 {L}_loader")
    if os.environ.get("PRIO"): E("  s_setprio 2")
    E("  s_lshr_b32 s27, s26, 1")
    E("  s_and_b32 s28, s26, 1")
    E(f"  v_and_b32 v{t0}, 15, v0")
    E(f"  v_lshrrev_b32 v{t1}, 4, v0")
    E(f"  v_and_b32 v{t2}, 7, v{t0}")
    E(f"  v_xor_b32 v{t2}, v{t2}, v{t1}")
    E(f"  v_lshlrev_b32 v{t2}, 4, v{t2}")
    E(f"  v_lshl_add_u32 v{t2}, v{t0}, 7, v{t2}")
    E("  s_lshl_b32 s40, s27, 13")
    E(f"  v_add_u32 v{V_RA}, s40, v{t2}")
    E(f"  v_xor_b32 v{V_RA+1}, 64, v{V_RA}")
    E(f"  v_lshrrev_b32 v{t2}, 2, v{t0}")
    E(f"  v_and_b32 v{t3}, 1, v{t1}")
    E(f"  v_lshl_add_u32 v{t3}, v{t3}, 2, v{t2}")
    E(f"  v_lshl_add_u32 v{t2}, v{t1}, 3, v{t2}")
    E(f"  v_lshlrev_b32 v{t2}, 8, v{t2}")
    E(f"  v_add_u32 v{t2}, 16384, v{t2}")
    E(f"  v_and_b32 v{t4}, 3, v{t0}")
    for t in range(4):
        u = V_E
        if k1:
            E("  s_mul_i32 s40, s28, 5")
            if t == 0:
                E(f"  v_add_u32 v{u}, s40, v{t4}")
            elif t == 1:
                E("  s_add_u32 s40, s40, 10")
                E(f"  v_add_u32 v{u}, s40, v{t4}")
            elif t == 3:
                E("  s_lshl_b32 s40, s28, 2")
                E("  s_add_u32 s40, s40, 20")
                E(f"  v_add_u32 v{u}, s40, v{t4}")
            else:
                E(f"  v_mul_u32_u24 v{u}, 10, v{t4}")
                E("  s_add_u32 s40, s40, 4")
                E(f"  v_add_u32 v{u}, s40, v{u}")
                E(f"  v_add_u32 v{u+1}, 26, v{t4}")
                E(f"  v_cmp_gt_u32 vcc, 2, v{t4}")
                E("  s_nop 1")
                E(f"  v_cndmask_b32 v{u}, v{u+1}, v{u}, vcc")
        else:
            E("  s_lshl_b32 s40, s28, 4")
            E(f"  s_add_u32 s40, s40, {4*t}")
            E(f"  v_add_u32 v{u}, s40, v{t4}")
        E(f"  v_lshrrev_b32 v{u+1}, 2, v{u}")
        E(f"  v_xor_b32 v{u+1}, v{u+1}, v{t3}")
        E(f"  v_lshl_add_u32 v{u+1}, v{u+1}, 5, v{t2}")
        E(f"  v_and_b32 v{u}, 3, v{u}")
        E(f"  v_lshl_add_u32 v{V_RB+t}, v{u}, 3, v{u+1}")
    for i in range(64):
        E(f"  v_mov_b32 v{V_ACC+i}, 0")
    E(f"  s_mov_b32 s52, {SLOT}")
    E(f"  v_lshl_or_b32 v{t3}, s26, 6, v0")
    if k1 and os.environ.get("CODEPF"):
        E("  s_lshr_b32 s40, s2, 3")
        E("  s_cmp_lg_u32 s40, 3")
        E("  s_cbranch_scc1 L1_nocpf")
        E("  s_getpc_b64 s[60:61]")
        E("L1_pc:")
        E("  s_add_u32 s60, s60, k2_attn_kernel-L1_pc")
        E("  s_addc_u32 s61, s61, 0")
        E(f"  v_lshlrev_b32 v{t4}, 7, v{t3}")
        E(f"  v_cmp_gt_u32 vcc, (Lcode_end-k2_attn_kernel), v{t4}")
        E("  s_and_saveexec_b64 s[62:63], vcc")
        E("  s_cbranch_execz L1_nocpf2")
        E(f"  global_load_dword v14, v{t4}, s[60:61]")
        E("L1_nocpf2:")
        E("  s_mov_b64 exec, -1")
        E("L1_nocpf:")
    if k1 and os.environ.get("PF1"):
        a, b, c = V_X, V_X + 1, V_X + 2
        PFR = [165, 166, 167, 15]
        E("  s_movk_i32 s41, 6554")
        E(f"  v_mul_u32_u24 v{a}, s41, v{t3}")
        E(f"  v_lshrrev_b32 v{a}, 16, v{a}")
        E(f"  v_mul_u32_u24 v{b}, 10, v{a}")
        E(f"  v_sub_u32 v{b}, v{t3}, v{b}")
        E("  s_movk_i32 s41, 10923")
        E("  s_and_b32 s40, s25, 7")
        E("  s_lshl_b32 s40, s40, 4")
        E("  s_lshl_b32 s42, s24, 7")
        E("  s_add_u32 s40, s40, s42")
        E(f"  v_add_u32 v{a}, s40, v{a}")
        E(f"  v_mul_u32_u24 v{a}, 1280, v{a}")
        E(f"  v_lshl_add_u32 v{a}, v{b}, 7, v{a}")
        E(f"  v_cmp_gt_u32 vcc, 160, v{t3}")
        E(f"  v_cndmask_b32 v164, -1, v{a}, vcc")
        E("  s_and_b32 s40, s24, 3")
        E("  s_mul_i32 s40, s40, 160")
        E("  s_mul_i32 s42, s25, 80")
        for r in range(4):
            E(f"  v_add_u32 v{c}, {256*r}, v{t3}")
            E(f"  v_mul_u32_u24 v{a}, s41, v{c}")
            E(f"  v_lshrrev_b32 v{a}, 16, v{a}")
            E(f"  v_mul_u32_u24 v{b}, 6, v{a}")
            E(f"  v_sub_u32 v{b}, v{c}, v{b}")
            E(f"  v_add_u32 v{a}, s40, v{a}")
            E(f"  v_mul_u32_u24 v{a}, 3840, v{a}")
            E(f"  v_add_u32 v{a}, s42, v{a}")
            E(f"  v_lshrrev_b32 v{V_X+3}, 1, v{b}")
            E(f"  v_add_u32 v{V_X+3}, 1, v{V_X+3}")
            E(f"  v_cmp_eq_u32 vcc, 3, v{V_X+3}")
            E(f"  v_cndmask_b32 v{V_X+3}, v{V_X+3}, 0, vcc")
            E(f"  v_mul_u32_u24 v{V_X+3}, 1280, v{V_X+3}")
            E(f"  v_add_u32 v{a}, v{a}, v{V_X+3}")
            E(f"  v_and_b32 v{b}, 1, v{b}")
            E(f"  v_mul_u32_u24 v{b}, 76, v{b}")
            E(f"  v_add_u32 v{a}, v{a}, v{b}")
            E(f"  v_cmp_gt_u32 vcc, 960, v{c}")
            E(f"  v_cndmask_b32 v{PFR[r]}, -1, v{a}, vcc")
    if k1:
        for i in range(4):
            E(f"  v_mov_b32 v{V_E+i}, 0")
        E(f"  v_lshlrev_b32 v{t4}, 4, v{t3}")
        E(f"  v_add_u32 v{t2}, {A_KV}, v{t4}")
        E(f"  ds_write_b128 v{t2}, {vr(V_E,4)}")
        E("  s_cmp_ge_u32 s2, 16")
        E(f"  s_cbranch_scc1 {L}_nozero")
        E("  s_mul_i32 s40, s2, 3360")
        E(f"  s_add_u32 s40, s40, {KV_OFF}")
        E(f"  v_cmp_gt_u32 vcc, 210, v{t3}")
        E("  s_and_saveexec_b64 s[46:47], vcc")
        E(f"  buffer_store_dwordx4 {vr(V_E,4)}, v{t4}, s[16:19], s40 offen sc0 sc1")
        E("  s_mov_b64 exec, s[46:47]")
        E("  s_waitcnt vmcnt(0)")
        E("  s_lshl_b32 s40, s2, 2")
        E(f"  v_mov_b32 v{t2}, s40")
        E(f"  v_mov_b32 v{t4}, 1")
        E("  s_mov_b64 exec, 1")
        E(f"  buffer_atomic_add v{t4}, v{t2}, s[20:23], 0 offen sc1")
        E("  s_mov_b64 exec, -1")
        E(f"{L}_nozero:")
    else:
        E("  s_cmp_ge_u32 s26, 2")
        E(f"  s_cbranch_scc1 {L}_nors")
        E("  s_lshl_b32 s40, s24, 13")
        E(f"  s_add_u32 s40, s40, {RS_OFF}")
        E(f"  v_lshlrev_b32 v{t4}, 6, v{t3}")
        for i in range(4):
            E(f"  buffer_load_dwordx4 {vr(V_X+4*i,4)}, v{t4}, s[16:19], s40 offen offset:{16*i}")
        E("  s_waitcnt vmcnt(0)")
        for i in range(1, 8):
            E(f"  v_add_f32 v{V_X}, v{V_X}, v{V_X+2*i}")
            E(f"  v_add_f32 v{V_X+1}, v{V_X+1}, v{V_X+2*i+1}")
        fin_stats(V_X, V_X + 1, t3, t4)
        E(f"  s_branch {L}_nors2")
        E(f"{L}_nors:")
        E("  s_lshl_b32 s40, s25, 13")
        E(f"  s_add_u32 s40, s40, {CSP_OFF-512}")
        E(f"  v_lshlrev_b32 v{t4}, 2, v{t3}")
        for i in range(16):
            E(f"  buffer_load_dword v{V_X+i}, v{t4}, s[16:19], s40 offen offset:{512*i if 512*i < 4096 else 0}" if i < 8 else f"  buffer_load_dword v{V_X+i}, v{t4}, s[16:19], s41 offen offset:{512*(i-8)}")
            if i == 0: E("  s_add_u32 s41, s40, 4096")
        E("  s_waitcnt vmcnt(0)")
        for i in range(1, 16):
            E(f"  v_add_f32 v{V_X}, v{V_X}, v{V_X+i}")
        E(f"  v_add_u32 v{t4}, {A_CS-512}, v{t4}")
        E(f"  ds_write_b32 v{t4}, v{V_X}")
        E(f"{L}_nors2:")
    E("  s_waitcnt lgkmcnt(0)")
    stamp(which)
    PFE = os.environ.get("PFE", "early") if os.environ.get("PF1") else "none"
    def pf_issue():
        E("  buffer_load_dword v164, v164, s[8:11], 0 offen")
        for r in (165, 166, 167, 15):
            E(f"  buffer_load_dword v{r}, v{r}, s[12:15], 0 offen")
    if k1 and PFE == "early": pf_issue()
    E("  s_barrier")
    if k1 and PFE == "late": pf_issue()
    stamp(which)
    def rd(base, kk):
        r = []
        for mt in range(4):
            r.append(f"  ds_read_b128 {vr(base+mt*4,4)}, v{V_RA+kk} offset:{mt*2048}")
        for t in range(4):
            for h in range(2):
                r.append(f"  ds_read_b64_tr_b16 {vr(base+16+t*4+h*2,2)}, v{V_RB+t} offset:{kk*8192+h*1024}")
        return r
    def mf(base):
        seq = []
        for mt in range(4):
            for t in range(4):
                a, b = vr(base + mt * 4, 4), vr(base + 16 + t * 4, 4)
                if swapped[t]: a, b = b, a
                seq.append(f"  v_mfma_f32_16x16x32_bf16 {vr(acc(mt,t),4)}, {a}, {b}, {vr(acc(mt,t),4)}")
        return seq
    for r in rd(V_X, 0): E(r)
    E("  s_mov_b32 s29, 0")
    E("  s_mov_b32 s30, 0")
    ST = V_E
    if k1:
        for i in range(16): E(f"  v_mov_b32 v{ST+i}, 0")
        for i in range(4): E(f"  v_mov_b32 v{ST+16+i}, 0x3f803f80")
        E(f"  v_and_b32 v{t0}, 15, v0")
        E(f"  v_cmp_lt_u32 s[48:49], 7, v{t0}")
        E("  s_cmp_eq_u32 s26, 1")
        E(f"  s_cbranch_scc1 {L}_loop1")
        E("  s_cmp_eq_u32 s26, 2")
        E(f"  s_cbranch_scc1 {L}_loop2")
        E("  s_cmp_eq_u32 s26, 3")
        E(f"  s_cbranch_scc1 {L}_loop3")
    def mfs(base, WM, WN):
        seq = mf(base)
        if not k1: return seq
        pre = []
        if WN == 1:
            pre = [f"  v_cndmask_b32 v{base+16+8+r}, v{base+16+8+r}, v{ST+16}, s[48:49]" for r in range(4)]
        ex = []
        for q in range(2):
            mt = 2 * WN + q
            ex.append(f"  v_mfma_f32_16x16x32_bf16 {vr(ST+4*q,4)}, {vr(base+4*mt,4)}, {vr(base+4*mt,4)}, {vr(ST+4*q,4)}")
            t = 2 * WM + q
            ex.append(None if False else (t, q))
        out_ = pre + seq[:8]
        for q in range(2):
            mt = 2 * WN + q
            out_.append(f"  v_mfma_f32_16x16x32_bf16 {vr(ST+4*q,4)}, {vr(base+4*mt,4)}, {vr(base+4*mt,4)}, {vr(ST+4*q,4)}")
        out_ += seq[8:]
        for q in range(2):
            t = 2 * WM + q
            out_.append(f"  v_mfma_f32_16x16x32_bf16 {vr(ST+8+4*q,4)}, {vr(ST+16,4)}, {vr(base+16+4*t,4)}, {vr(ST+8+4*q,4)}")
        return out_
    for w in range(4 if k1 else 1):
        WM, WN = w >> 1, w & 1
        E(f"{L}_loop{w}:")
        E(f"  s_add_u32 s30, s30, {SLOT}")
        E(f"  s_cmp_eq_u32 s30, {NS*SLOT}")
        E(f"  s_cselect_b32 s40, {-(NS-1)*SLOT}, s52")
        E("  s_cselect_b32 s30, 0, s30")
        E("  s_waitcnt lgkmcnt(0)")
        adds = [f"  v_add_u32 v{r}, s40, v{r}" for r in (V_RA, V_RA + 1, V_RB, V_RB + 1, V_RB + 2, V_RB + 3)]
        interleave(mfs(V_X, WM, WN), rd(V_Y, 1) + adds)
        E(f"  s_cmp_eq_u32 s29, {NST-1}")
        E(f"  s_cbranch_scc1 {L}_last{w}")
        E("  s_add_u32 s29, s29, 1")
        E("  s_waitcnt lgkmcnt(0)")
        E("  s_barrier")
        interleave(mfs(V_Y, WM, WN), rd(V_X, 0))
        E(f"  s_branch {L}_loop{w}")
        E(f"{L}_last{w}:")
        E("  s_waitcnt lgkmcnt(0)")
        for m in mfs(V_Y, WM, WN): E(m)
        if k1:
            E(f"  v_lshrrev_b32 v{t1}, 4, v0")
            E(f"  v_lshrrev_b32 v{t2}, 2, v{t0}")
            E(f"  v_cmp_eq_u32 s[50:51], v{t1}, v{t2}")
            E(f"  v_and_b32 v{t2}, 3, v{t0}")
            E("  s_nop 7")
            for q in range(2):
                E(f"  v_mov_b32 v{t3}, v{ST+4*q}")
                for r in range(1, 4):
                    E(f"  v_cmp_eq_u32 vcc, {r}, v{t2}")
                    E("  s_nop 1")
                    E(f"  v_cndmask_b32 v{t3}, v{t3}, v{ST+4*q+r}, vcc")
                E(f"  v_lshlrev_b32 v{t4}, 2, v{t0}")
                E(f"  v_add_u32 v{t4}, {A_SQ + (64*WM + 16*(2*WN+q))*4}, v{t4}")
                E("  s_mov_b64 exec, s[50:51]")
                E(f"  ds_write_b32 v{t4}, v{t3}")
                E("  s_mov_b64 exec, -1")
            for q in range(2):
                t = 2 * WM + q
                if t == 0: E(f"  v_lshlrev_b32 v{t4}, 2, v{t0}"); off = (20*WN)*4
                elif t == 1: E(f"  v_lshlrev_b32 v{t4}, 2, v{t0}"); off = (40+20*WN)*4
                elif t == 3: E(f"  v_lshlrev_b32 v{t4}, 2, v{t0}"); off = (80+16*WN)*4
                else:
                    E(f"  v_lshlrev_b32 v{t4}, 2, v{t0}")
                    E(f"  v_add_u32 v{t3}, {(20*WN+16)*4}, v{t4}")
                    E(f"  v_add_u32 v{t1}, {(52+20*WN)*4}, v{t4}")
                    E(f"  v_cmp_gt_u32 vcc, 4, v{t0}")
                    E("  s_nop 1")
                    E(f"  v_cndmask_b32 v{t3}, v{t1}, v{t3}, vcc")
                    E(f"  v_add_u32 v{t1}, {104*4}, v{t4}")
                    E(f"  v_cmp_gt_u32 vcc, 8, v{t0}")
                    E("  s_nop 1")
                    E(f"  v_cndmask_b32 v{t4}, v{t1}, v{t3}, vcc")
                    off = 0
                E(f"  v_add_u32 v{t4}, {A_CS+off}, v{t4}")
                if t == 2 and WN == 1:
                    E("  s_mov_b64 exec, 0xff")
                else:
                    E("  s_mov_b64 exec, 0xffff")
                E(f"  ds_write_b32 v{t4}, v{ST+8+4*q}")
                E("  s_mov_b64 exec, -1")
            if WN == 1:
                E(f"  v_lshrrev_b32 v{t1}, 4, v0")
                E(f"  v_lshlrev_b32 v{t4}, 4, v{t1}")
                E(f"  v_add_u32 v{t4}, {A_SUM + 64*WM*4}, v{t4}")
                E("  s_mov_b32 s50, 0x01000100")
                E("  s_mov_b32 s51, 0x01000100")
                E("  s_mov_b64 exec, s[50:51]")
                for mt in range(4):
                    E(f"  ds_write_b128 v{t4}, {vr(acc(mt,2),4)} offset:{64*mt}")
                E("  s_mov_b64 exec, -1")
            E(f"  s_branch {L}_fins")
    if not k1: stamp(which)
    if k1:
        E(f"{L}_fins:")
        stamp(which)
        E("  s_waitcnt lgkmcnt(0)")
        E("  s_barrier")
        E("  s_cmp_ge_u32 s26, 2")
        E(f"  s_cbranch_scc1 {L}_fb")
        E(f"  v_lshl_or_b32 v{t3}, s26, 6, v0")
        E(f"  v_lshlrev_b32 v{t4}, 2, v{t3}")
        E(f"  v_add_u32 v{t4}, {A_SUM}, v{t4}")
        E(f"  ds_read_b32 v{V_X}, v{t4}")
        E(f"  ds_read_b32 v{V_X+1}, v{t4} offset:512")
        E("  s_waitcnt lgkmcnt(0)")
        fin_stats(V_X, V_X + 1, t3, t4)
        E("  s_waitcnt lgkmcnt(0)")
        E(f"{L}_fb:")
        E("  s_barrier")
    stamp(which)
    E("  s_mov_b32 s45, 0x3fb8aa3b")
    pads_on()
    if k1: k1_epilogue()
    else: k3_epilogue()
    pads_off()
    stamp(which)
    stamp_flush(which, 36)
    rt_end(which)
    E(f"  s_branch {L}_done")
    E(f"{L}_loader:")
    E("  s_sub_u32 s27, s26, 4")
    LA, LB = 2, 4
    E(f"  v_lshrrev_b32 v{t0}, 3, v0")
    E(f"  v_and_b32 v{t1}, 7, v0")
    E(f"  v_xor_b32 v{t1}, v{t1}, v{t0}")
    E(f"  v_lshlrev_b32 v{t1}, 4, v{t1}")
    E("  s_lshl_b32 s40, s24, 7")
    E("  s_lshl_b32 s41, s27, 4")
    E("  s_add_u32 s40, s40, s41")
    E(f"  v_add_u32 v{t0}, s40, v{t0}")
    E("  s_movk_i32 s41, 1280")
    E(f"  v_mad_u32_u24 v{LA}, v{t0}, s41, v{t1}")
    E(f"  v_add_u32 v{LA+1}, {8*1280-1024}, v{LA}")
    E(f"  v_lshrrev_b32 v{t0}, 4, v0")
    E(f"  v_and_b32 v{t1}, 15, v0")
    E("  s_lshl_b32 s40, s27, 3")
    E(f"  v_add_u32 v{t4}, s40, v{t0}")
    E("  s_and_b32 s40, s27, 1")
    E("  s_lshl_b32 s40, s40, 2")
    E(f"  v_add_u32 v{t0}, s40, v{t0}")
    E(f"  v_lshrrev_b32 v{t2}, 1, v{t1}")
    E(f"  v_xor_b32 v{t2}, v{t2}, v{t0}")
    E(f"  v_lshlrev_b32 v{t2}, 1, v{t2}")
    E(f"  v_and_b32 v{t3}, 1, v{t1}")
    E(f"  v_or_b32 v{t2}, v{t2}, v{t3}")
    if k1:
        E(f"  v_min_u32 v{t2}, 14, v{t2}")
        E(f"  v_lshlrev_b32 v{t3}, 4, v{t2}")
        E(f"  v_add_u32 v20, 1280, v{t3}")
        E(f"  v_add_u32 v21, {2560-80}, v{t3}")
        E(f"  v_subrev_u32 v22, 160, v{t3}")
        E(f"  v_cmp_gt_u32 vcc, 5, v{t2}")
        E("  s_nop 1")
        E("  v_cndmask_b32 v21, v21, v20, vcc")
        E(f"  v_cmp_gt_u32 vcc, 10, v{t2}")
        E("  s_nop 1")
        E(f"  v_cndmask_b32 v{t3}, v22, v21, vcc")
        E("  s_mul_i32 s42, s25, 80")
    else:
        E(f"  v_lshlrev_b32 v{t3}, 4, v{t2}")
        E("  s_mul_i32 s42, s25, 224")
    if k1:
        E(f"  v_add_u32 v{t3}, s42, v{t3}")
        E(f"  s_movk_i32 s41, {ldb}")
        E(f"  v_mad_u32_u24 v{LB}, v{t4}, s41, v{t3}")
        E(f"  v_add_u32 v{LB+1}, {4*ldb-1024}, v{LB}")
    else:
        E("  s_mul_i32 s42, s25, 163840")
        E("  s_lshl_b32 s41, s27, 11")
        E("  s_add_u32 s42, s42, s41")
        E(f"  v_lshlrev_b32 v{LB}, 4, v0")
        E(f"  v_add_u32 v{LB}, s42, v{LB}")
        E(f"  v_mov_b32 v{LB+1}, v{LB}")
    E("  s_lshl_b32 s34, s27, 11")
    E("  s_mov_b32 s31, 0")
    E("  s_mov_b32 s32, 0")
    E("  s_mov_b32 s33, 0")
    ROT = k1 and not os.environ.get("NOROT")
    if ROT:
        E("  s_mul_i32 s40, s24, 3")
        E("  s_add_u32 s40, s40, s25")
        E("  s_mul_i32 s41, s40, 205")
        E("  s_lshr_b32 s41, s41, 11")
        E("  s_mul_i32 s41, s41, 10")
        E("  s_sub_u32 s40, s40, s41")
        E("  s_lshl_b32 s32, s40, 7")
        E(f"  s_mul_i32 s33, s40, {64*ldb}")
    def dma_stage():
        E("  s_add_u32 s35, s31, s34")
        E("  s_mov_b32 m0, s35")
        E("  s_add_u32 s35, s35, 16384")
        for j in range(2):
            E(f"  buffer_load_dwordx4 v{LA+j}, s[8:11], s32 offen offset:{j*1024} lds")
        E("  s_mov_b32 m0, s35")
        E("  s_add_u32 s32, s32, 128")
        for j in range(2):
            E(f"  buffer_load_dwordx4 v{LB+j}, s[12:15], s33 offen offset:{j*1024} lds")
        E(f"  s_add_u32 s33, s33, {64*ldb if k1 else 16384}")
        if ROT:
            E("  s_cmp_eq_u32 s32, 1280")
            E("  s_cselect_b32 s32, 0, s32")
            E("  s_cselect_b32 s33, 0, s33")
        E(f"  s_add_u32 s31, s31, {SLOT}")
        E(f"  s_cmp_eq_u32 s31, {NS*SLOT}")
        E("  s_cselect_b32 s31, 0, s31")
    for s in range(NS):
        dma_stage()
    pf_enter(L, 8, "s27")
    E(f"  s_waitcnt vmcnt({4*(NS-1)})")
    E("  s_barrier")
    NX = 0
    for sv in range(NST - 1):
        issued = min(NST - 1, sv + NS - 1)
        extra = NX if sv > NST - NS else 0
        E(f"  s_waitcnt vmcnt({4*(issued-(sv+1)) + NX})")
        E("  s_barrier")
        if sv + NS < NST:
            dma_stage()
        if k1 and sv + NS == NST - 1:
            NX = relayout_loads()
    if k1:
        relayout_finish()
    E(f"{L}_done:")
    E("  s_endpgm")

RL_SA, RL_DA, RL_DT = 16, 24, 32
def relayout_loads():
    E("  s_load_dwordx2 s[64:65], s[0:1], 32")
    E("  s_load_dwordx2 s[66:67], s[0:1], 40")
    E("  s_load_dwordx2 s[68:69], s[0:1], 16")
    SA_, DA_, DT = RL_SA, RL_DA, RL_DT
    a, b, c, d, tid = 60, 61, 62, 63, 59
    E(f"  v_lshl_or_b32 v{tid}, s27, 6, v0")
    for i in range(20): E(f"  v_mov_b32 v{DT+i}, 0")
    E("  s_lshr_b32 s40, s2, 4")
    E("  s_and_b32 s41, s2, 15")
    E("  s_mul_i32 s41, s41, 40")
    E("  s_mul_i32 s42, s40, 224")
    E("  s_movk_i32 s43, 3456")
    for r in range(2):
        E(f"  v_add_u32 v{a}, {512*r}, v{tid}")
        E(f"  v_lshrrev_b32 v{b}, 4, v{a}")
        E(f"  v_add_u32 v{b}, s41, v{b}")
        E(f"  v_and_b32 v{c}, 15, v{a}")
        E(f"  v_bfe_u32 v{d}, v{b}, 3, 1")
        E(f"  v_lshlrev_b32 v{d}, 2, v{d}")
        E(f"  v_and_or_b32 v{d}, v{b}, 3, v{d}")
        E(f"  v_lshrrev_b32 v{DA_+r}, 1, v{c}")
        E(f"  v_xor_b32 v{d}, v{d}, v{DA_+r}")
        E(f"  v_and_b32 v{DA_+r}, 1, v{c}")
        E(f"  v_lshl_or_b32 v{d}, v{d}, 1, v{DA_+r}")
        E(f"  v_lshlrev_b32 v{DA_+r}, 8, v{b}")
        E(f"  v_lshl_add_u32 v{DA_+r}, v{d}, 4, v{DA_+r}")
        E(f"  v_lshl_add_u32 v{d}, v{c}, 4, s42")
        E(f"  v_mad_u32_u24 v{SA_+r}, v{b}, s43, v{d}")
        E(f"  v_cmp_gt_u32 s[{80+2*r}:{81+2*r}], 14, v{c}")
        E(f"  v_cmp_gt_u32 vcc, s43, v{d}")
        E(f"  s_and_b64 s[{80+2*r}:{81+2*r}], s[{80+2*r}:{81+2*r}], vcc")
        E(f"  v_cmp_gt_u32 vcc, 640, v{a}")
        E(f"  s_mov_b64 s[{70+2*r}:{71+2*r}], vcc")
        E(f"  s_and_b64 s[{80+2*r}:{81+2*r}], s[{80+2*r}:{81+2*r}], vcc")
    E("  s_lshr_b32 s40, s2, 5")
    E("  s_and_b32 s41, s2, 31")
    E("  s_movk_i32 s43, 6554")
    E("  s_mul_i32 s42, s40, 160")
    for r in range(3):
        wo = r == 2
        q = 2 + r
        E(f"  v_add_u32 v{a}, {0 if wo else 512*r}, v{tid}")
        E(f"  v_mul_u32_u24 v{b}, s43, v{a}")
        E(f"  v_lshrrev_b32 v{b}, 16, v{b}")
        E(f"  v_mul_u32_u24 v{c}, 10, v{b}")
        E(f"  v_sub_u32 v{c}, v{a}, v{c}")
        E(f"  s_mul_i32 s47, s41, {20 if wo else 54}")
        E(f"  v_add_u32 v{b}, s47, v{b}")
        E(f"  v_lshlrev_b32 v{c}, 4, v{c}")
        E(f"  v_mul_u32_u24 v{SA_+q}, 1280, v{b}")
        E(f"  v_add_u32 v{SA_+q}, v{SA_+q}, v{c}")
        E(f"  v_add_u32 v{SA_+q}, s42, v{SA_+q}")
        if wo:
            E(f"  v_mul_u32_u24 v{DA_+q}, 160, v{b}")
        else:
            E(f"  v_and_b32 v{d}, 0x13, v{b}")
            E(f"  v_bfe_u32 v{DA_+q}, v{b}, 2, 1")
            E(f"  v_lshl_or_b32 v{d}, v{DA_+q}, 3, v{d}")
            E(f"  v_bfe_u32 v{DA_+q}, v{b}, 3, 1")
            E(f"  v_lshl_or_b32 v{d}, v{DA_+q}, 2, v{d}")
            E(f"  v_mul_u32_u24 v{d}, 160, v{d}")
            E(f"  v_lshrrev_b32 v{DA_+q}, 5, v{b}")
            E(f"  v_mul_u32_u24 v{DA_+q}, 5120, v{DA_+q}")
            E(f"  v_add_u32 v{DA_+q}, v{DA_+q}, v{d}")
        E(f"  v_add_u32 v{DA_+q}, v{DA_+q}, v{c}")
        E(f"  v_cmp_gt_u32 vcc, {200 if wo else 540}, v{a}")
        E(f"  s_mov_b64 s[{70+2*q}:{71+2*q}], vcc")
    E("  s_waitcnt lgkmcnt(0)")
    for (dd, lo, nb) in [(84, 64, 640 * 3456), (88, 66, 1728 * 1280), (92, 68, 640 * 1280)]:
        srd(dd, lo, nb)
    for r in range(5):
        q = 84 if r < 2 else (88 if r < 4 else 92)
        mk = 80 + 2 * r if r < 2 else 70 + 2 * r
        E(f"  v_cndmask_b32 v{SA_+r}, 0, v{SA_+r}, s[{mk}:{mk+1}]")
        E(f"  buffer_load_dwordx4 {vr(DT+4*r,4)}, v{SA_+r}, s[{q}:{q+3}], 0 offen")
    return 5

def relayout_finish():
    SA_, DA_, DT = RL_SA, RL_DA, RL_DT
    srd(16, 38, WS_BYTES)
    E("  s_lshr_b32 s40, s2, 5")
    E("  s_lshr_b32 s41, s2, 4")
    E("  s_mul_i32 s41, s41, 163840")
    E(f"  s_add_u32 s41, s41, {W1T_OFF}")
    E("  s_mul_i32 s42, s40, 276480")
    E(f"  s_add_u32 s42, s42, {W2T_OFF}")
    E("  s_mul_i32 s43, s40, 102400")
    E(f"  s_add_u32 s43, s43, {WOT_OFF}")
    E("  s_waitcnt vmcnt(0)")
    for r in range(5):
        so = "s41" if r < 2 else ("s42" if r < 4 else "s43")
        E(f"  s_mov_b64 exec, s[{70+2*r}:{71+2*r}]")
        E(f"  s_cbranch_execz LRS{r}")
        E(f"  buffer_store_dwordx4 {vr(DT+4*r,4)}, v{DA_+r}, s[16:19], {so} offen{os.environ.get('RLW', ' sc0 sc1')}")
        E(f"LRS{r}:")
    E("  s_mov_b64 exec, -1")
    for i in range(4):
        E(f"  v_cndmask_b32 v{DT+4+i}, 0, v{DT+4+i}, s[72:73]")
    C = 64
    for i in range(4):
        for r in range(2):
            x = DT + 4 * r + i
            E(f"  v_lshlrev_b32 v60, 16, v{x}")
            E(f"  v_and_b32 v61, 0xffff0000, v{x}")
            if r == 0:
                E(f"  v_mov_b32 v{C+2*i}, v60")
                E(f"  v_mov_b32 v{C+2*i+1}, v61")
            else:
                E(f"  v_pk_add_f32 {vr(C+2*i,2)}, {vr(C+2*i,2)}, v[60:61]")
    for c in range(8):
        r = C + c
        E(f"  v_mov_b32 v62, v{r}")
        E("  s_nop 1")
        E(f"  v_permlane32_swap_b32 v{r}, v62")
        E("  s_nop 1")
        E(f"  v_add_f32 v{r}, v{r}, v62")
        E(f"  v_mov_b32 v62, v{r}")
        E("  s_nop 1")
        E(f"  v_permlane16_swap_b32 v{r}, v62")
        E("  s_nop 1")
        E(f"  v_add_f32 v{r}, v{r}, v62")
    E("  v_and_b32 v60, 15, v0")
    E("  v_lshlrev_b32 v60, 5, v60")
    E("  s_lshl_b32 s40, s27, 9")
    E(f"  s_add_u32 s40, s40, {A_CP}")
    E("  v_add_u32 v60, s40, v60")
    E(f"  ds_write_b128 v60, {vr(C,4)}")
    E(f"  ds_write_b128 v60, {vr(C+4,4)} offset:16")
    E("  s_waitcnt lgkmcnt(0)")
    E("  s_barrier")
    E("  s_cmp_ge_u32 s27, 2")
    E("  s_cbranch_scc1 L1_rf2")
    E("  v_lshl_or_b32 v60, s27, 6, v0")
    E("  v_lshlrev_b32 v60, 2, v60")
    E(f"  v_add_u32 v61, {A_CP}, v60")
    for q in range(8):
        E(f"  ds_read_b32 v{40+q}, v61 offset:{512*q}")
    E("  s_waitcnt lgkmcnt(0)")
    for q in range(1, 8):
        E(f"  v_add_f32 v40, v40, v{40+q}")
    E("  s_lshl_b32 s40, s2, 9")
    E(f"  s_add_u32 s40, s40, {CSP_OFF}")
    E("  buffer_store_dword v40, v60, s[16:19], s40 offen")
    E("L1_rf2:")
    E("  s_barrier")

def fin_stats(vs, vq, vrow, tmp):
    E("  s_mov_b32 s40, 0x3acccccd")
    E(f"  v_mul_f32 v{vs}, s40, v{vs}")
    E(f"  v_mul_f32 v{vq}, s40, v{vq}")
    E(f"  v_fma_f32 v{vq}, -v{vs}, v{vs}, v{vq}")
    E(f"  v_max_f32 v{vq}, 0, v{vq}")
    E(f"  v_add_f32 v{vq}, 0x3727c5ac, v{vq}")
    E(f"  v_rsq_f32 v{vq}, v{vq}")
    E(f"  v_lshlrev_b32 v{tmp}, 2, v{vrow}")
    E(f"  v_add_u32 v{tmp}, {A_MEAN}, v{tmp}")
    E(f"  ds_write_b32 v{tmp}, v{vs}")
    E(f"  ds_write_b32 v{tmp}, v{vq} offset:512")

def k1_epilogue():
    t0, t1, t2, t3, t4 = V_T, V_T + 1, V_T + 2, V_T + 3, V_T + 4
    CSN, CSV3, MN, RN, MS, RS = 2, 16, 20, 36, 52, 53
    pk = [64, 72, 144, 152]
    TM = 160
    E("  s_waitcnt vmcnt(0)")
    E(f"  v_and_b32 v{t0}, 15, v0")
    E(f"  v_lshrrev_b32 v{t1}, 4, v0")
    E("  s_lshl_b32 s40, s27, 8")
    E(f"  s_add_u32 s40, s40, {A_MEAN}")
    E(f"  v_lshl_add_u32 v{t2}, v{t0}, 2, s40")
    E(f"  v_lshl_add_u32 v{t3}, v{t1}, 4, s40")
    for mt in range(4):
        E(f"  ds_read_b128 {vr(MN+4*mt,4)}, v{t3} offset:{64*mt}")
        E(f"  ds_read_b128 {vr(RN+4*mt,4)}, v{t3} offset:{512+64*mt}")
        E(f"  ds_read_b32 v{MS+2*mt}, v{t2} offset:{64*mt}")
        E(f"  ds_read_b32 v{RS+2*mt}, v{t2} offset:{512+64*mt}")
    E("  s_mul_i32 s41, s28, 80")
    E(f"  s_add_u32 s41, s41, {A_CS}")
    E(f"  v_lshl_add_u32 v{t2}, v{t0}, 2, s41")
    E(f"  ds_read_b32 v{CSN}, v{t2}")
    E(f"  ds_read_b32 v{CSN+2}, v{t2} offset:160")
    E(f"  v_add_u32 v{t3}, 64, v{t2}")
    E(f"  v_add_u32 v{t4}, {52*4}, v{t2}")
    E(f"  v_cmp_gt_u32 vcc, 4, v{t0}")
    E("  s_nop 1")
    E(f"  v_cndmask_b32 v{t3}, v{t4}, v{t3}, vcc")
    E(f"  v_lshlrev_b32 v{t4}, 2, v{t0}")
    E(f"  v_add_u32 v{t4}, {A_CS+104*4}, v{t4}")
    E(f"  v_cmp_gt_u32 vcc, 8, v{t0}")
    E("  s_nop 1")
    E(f"  v_cndmask_b32 v{t3}, v{t4}, v{t3}, vcc")
    E(f"  ds_read_b32 v{CSN+4}, v{t3}")
    E("  s_lshl_b32 s41, s28, 6")
    E(f"  s_add_u32 s41, s41, {A_CS+320}")
    E(f"  v_lshl_add_u32 v{t3}, v{t1}, 4, s41")
    E(f"  ds_read_b128 {vr(CSV3,4)}, v{t3}")
    E("  s_mov_b32 s46, 0x358637bd")
    E(f"  v_and_b32 v{t2}, 12, v{t0}")
    E(f"  v_cmp_eq_u32 s[48:49], 4, v{t2}")
    E("  s_waitcnt lgkmcnt(0)")
    E("  s_mov_b32 s54, s45")
    E("  s_mov_b32 s55, s45")
    E("  s_mov_b32 s56, s46")
    E("  s_mov_b32 s57, s46")
    def phi4(a):
        for r in range(4): E(f"  v_min_f32 v{TM+r}, 0, v{a+r}")
        for p in range(2): E(f"  v_pk_mul_f32 {vr(TM+2*p,2)}, {vr(TM+2*p,2)}, s[54:55]")
        for r in range(4): E(f"  v_exp_f32 v{TM+r}, v{TM+r}")
        for r in range(4): E(f"  v_max_f32 v{a+r}, 0, v{a+r}")
        for p in range(2): E(f"  v_pk_add_f32 {vr(TM+2*p,2)}, {vr(TM+2*p,2)}, s[56:57]")
        for p in range(2): E(f"  v_pk_add_f32 {vr(a+2*p,2)}, {vr(a+2*p,2)}, {vr(TM+2*p,2)}")
    for mt in range(4):
        for t in range(3):
            a = acc(mt, t)
            for p in range(2):
                E(f"  v_pk_fma_f32 {vr(a+2*p,2)}, {vr(MN+4*mt+2*p,2)}, {vr(CSN+2*t,2)}, {vr(a+2*p,2)} op_sel_hi:[1,0,1] neg_lo:[1,0,0] neg_hi:[1,0,0]")
            for p in range(2):
                E(f"  v_pk_mul_f32 {vr(a+2*p,2)}, {vr(a+2*p,2)}, {vr(RN+4*mt+2*p,2)}")
        a = acc(mt, 3)
        for p in range(2):
            E(f"  v_pk_fma_f32 {vr(a+2*p,2)}, {vr(CSV3+2*p,2)}, {vr(MS+2*mt,2)}, {vr(a+2*p,2)} op_sel_hi:[1,0,1] neg_lo:[0,1,0] neg_hi:[0,1,0]")
        for p in range(2):
            E(f"  v_pk_mul_f32 {vr(a+2*p,2)}, {vr(a+2*p,2)}, {vr(MS+2*mt,2)} op_sel:[0,1] op_sel_hi:[1,1]")
        phi4(acc(mt, 0)); phi4(acc(mt, 3))
        a = acc(mt, 2)
        for r in range(4): E(f"  v_mov_b32 v{TM+4+r}, v{a+r}")
        phi4(a)
        for r in range(4): E(f"  v_cndmask_b32 v{a+r}, v{a+r}, v{TM+4+r}, s[48:49]")
        for t in range(4):
            a = acc(mt, t)
            E(f"  v_cvt_pk_bf16_f32 v{pk[t]+2*mt}, v{a}, v{a+1}")
            E(f"  v_cvt_pk_bf16_f32 v{pk[t]+2*mt+1}, v{a+2}, v{a+3}")
    E("  s_lshl_b32 s40, s24, 1")
    E("  s_add_u32 s40, s40, s27")
    E("  s_lshl_b32 s40, s40, 2")
    E("  s_lshr_b32 s41, s25, 2")
    E("  s_add_u32 s40, s40, s41")
    E("  s_mul_i32 s40, s40, 21504")
    E("  s_and_b32 s41, s25, 3")
    E("  s_mul_i32 s41, s41, 80")
    E("  s_add_u32 s41, s41, s40")
    E("  s_movk_i32 s42, 336")
    E(f"  v_mul_u32_u24 v{t2}, s42, v{t0}")
    E(f"  v_lshl_add_u32 v{t2}, v{t1}, 3, v{t2}")
    E("  s_lshl_b32 s43, s28, 5")
    E("  s_add_u32 s43, s43, s41")
    for mt in range(4):
        E(f"  s_add_u32 s47, s43, {mt*16*336+PQT_OFF}")
        E(f"  buffer_store_dwordx2 {vr(pk[3]+2*mt,2)}, v{t2}, s[16:19], s47 offen{WT('3')}")
    M = V_ACC
    ON = TM
    for i in range(4):
        E(f"  v_mov_b32 v{ON+i}, 0x3f803f80")
    E("  s_nop 1")
    for p in range(2):
        P0, V1, X2 = pk[0] + 4 * p, pk[1] + 4 * p, pk[2] + 4 * p
        for i, (a, b) in enumerate(((P0, V1), (P0, X2), (X2, V1), (X2, X2), (P0, ON), (X2, ON))):
            c = "0" if p == 0 else vr(M + 4 * i, 4)
            E(f"  v_mfma_f32_16x16x32_bf16 {vr(M+4*i,4)}, {vr(a,4)}, {vr(b,4)}, {c}")
    E("  s_cmp_eq_u32 s28, 1")
    E("  s_cbranch_scc1 L1_noq2")
    E(f"  v_lshlrev_b32 v{t3}, 2, v{t1}")
    E(f"  v_mul_u32_u24 v{t3}, s42, v{t3}")
    E(f"  v_lshl_add_u32 v{t3}, v{t0}, 1, v{t3}")
    E(f"  v_cmp_lt_u32 vcc, 7, v{t0}")
    E("  s_and_saveexec_b64 s[50:51], vcc")
    for mt in range(4):
        E(f"  s_add_u32 s47, s41, {mt*16*336+PQT_OFF+64-16}")
        E(f"  buffer_store_short v{pk[2]+2*mt}, v{t3}, s[16:19], s47 offen")
        E(f"  buffer_store_short_d16_hi v{pk[2]+2*mt}, v{t3}, s[16:19], s47 offen offset:336")
        E(f"  buffer_store_short v{pk[2]+2*mt+1}, v{t3}, s[16:19], s47 offen offset:672")
        E(f"  buffer_store_short_d16_hi v{pk[2]+2*mt+1}, v{t3}, s[16:19], s47 offen offset:1008")
    E("  s_mov_b64 exec, s[50:51]")
    E("L1_noq2:")
    E("  s_lshl_b32 s40, s25, 2")
    E(f"  v_mov_b32 v{t3}, s40")
    E("  s_mul_i32 s40, s28, 1680")
    E(f"  s_add_u32 s40, s40, {A_KV}")
    E(f"  v_mul_u32_u24 v{t2}, 80, v{t0}")
    E(f"  v_lshl_add_u32 v{t2}, v{t1}, 4, v{t2}")
    E(f"  v_add_u32 v{t2}, s40, v{t2}")
    E("  s_lshl_b32 s41, s27, 12")
    E(f"  v_add_u32 v{t2}, s41, v{t2}")
    E("  s_nop 4")
    E(f"  ds_write_b128 v{t2}, {vr(M,4)}")
    E("  s_mov_b64 exec, s[48:49]")
    E(f"  ds_write_b128 v{t2}, {vr(M+4,4)} offset:960")
    E("  s_mov_b64 exec, 0xffff")
    E(f"  ds_write_b128 v{t2}, {vr(M+8,4)} offset:64")
    E("  s_mov_b64 exec, 0xf0")
    E(f"  ds_write_b128 v{t2}, {vr(M+12,4)} offset:{960+64}")
    E("  s_mov_b32 s50, 0x00010001")
    E("  s_mov_b32 s51, 0x00010001")
    E("  s_mov_b64 exec, s[50:51]")
    E(f"  ds_write_b128 v{t2}, {vr(M+16,4)} offset:1600")
    E("  s_mov_b64 exec, 1")
    E(f"  ds_write_b128 v{t2}, {vr(M+20,4)} offset:{1600+64}")
    stamp(1)
    E("  s_cmp_lg_u32 s26, 0")
    E("  s_cbranch_scc1 L1_nopoll")
    E("L1_poll:")
    E(f"  buffer_load_dword v{t4}, v{t3}, s[20:23], 0 offen sc0 sc1")
    E("  s_waitcnt vmcnt(0)")
    E(f"  v_readfirstlane_b32 s41, v{t4}")
    E("  s_nop 3")
    E("  s_cmp_lt_u32 s41, 4")
    E("  s_cbranch_scc1 L1_poll")
    E("L1_nopoll:")
    E("  s_mov_b64 exec, -1")
    E("  s_waitcnt lgkmcnt(0)")
    E("  s_barrier")
    stamp(1)
    E(f"  v_lshl_or_b32 v{t3}, s26, 6, v0")
    E(f"  v_lshlrev_b32 v{t3}, 2, v{t3}")
    E(f"  v_add_u32 v{t4}, {A_KV}, v{t3}")
    for j in range(4):
        E(f"  ds_read_b32 v{TM+j}, v{t4} offset:{1024*j}")
        E(f"  ds_read_b32 v{TM+4+j}, v{t4} offset:{4096+1024*j}")
    E("  s_mul_i32 s40, s25, 3360")
    E(f"  s_add_u32 s40, s40, {KV_OFF}")
    E("  s_waitcnt lgkmcnt(0)")
    for j in range(4):
        E(f"  v_add_f32 v{TM+j}, v{TM+j}, v{TM+4+j}")
    for j in range(3):
        E(f"  buffer_atomic_add_f32 v{TM+j}, v{t3}, s[16:19], s40 offen offset:{1024*j}")
    E(f"  v_cmp_gt_u32 vcc, {3360-3072}, v{t3}")
    E("  s_and_saveexec_b64 s[50:51], vcc")
    E("  s_cbranch_execz L1_fin")
    E(f"  buffer_atomic_add_f32 v{TM+3}, v{t3}, s[16:19], s40 offen offset:3072")
    E("L1_fin:")

def k3_epilogue():
    t0, t1, t2, t3, t4 = V_T, V_T + 1, V_T + 2, V_T + 3, V_T + 4
    MS, RS, CSV, PK, TM = 16, 24, 32, 48, 144
    E(f"  v_and_b32 v{t0}, 15, v0")
    E(f"  v_lshrrev_b32 v{t1}, 4, v0")
    E("  s_lshl_b32 s40, s27, 8")
    E(f"  s_add_u32 s40, s40, {A_MEAN}")
    E(f"  v_lshl_add_u32 v{t2}, v{t0}, 2, s40")
    for mt in range(4):
        E(f"  ds_read_b32 v{MS+2*mt}, v{t2} offset:{64*mt}")
        E(f"  ds_read_b32 v{RS+2*mt}, v{t2} offset:{512+64*mt}")
    E("  s_lshl_b32 s41, s28, 8")
    E(f"  s_add_u32 s41, s41, {A_CS}")
    E(f"  v_lshl_add_u32 v{t3}, v{t1}, 4, s41")
    for t in range(4):
        E(f"  ds_read_b128 {vr(CSV+4*t,4)}, v{t3} offset:{64*t}")
    E(f"  v_lshrrev_b32 v{t2}, 2, v{t0}")
    E(f"  v_sub_u32 v{t2}, 0, v{t2}")
    E(f"  v_lshrrev_b32 v{t4}, 1, v{t1}")
    E(f"  v_xor_b32 v{t2}, v{t2}, v{t4}")
    E(f"  v_and_b32 v{t2}, 3, v{t2}")
    E(f"  v_lshlrev_b32 v{t2}, 4, v{t2}")
    E(f"  v_lshl_add_u32 v{t2}, v{t0}, 6, v{t2}")
    E(f"  v_and_b32 v{t4}, 1, v{t1}")
    E("  s_lshl_b32 s40, s24, 1")
    E("  s_add_u32 s40, s40, s27")
    E("  s_mul_i32 s40, s40, 221184")
    E(f"  s_add_u32 s40, s40, {H1_OFF}")
    E("  s_mul_i32 s41, s25, 224")
    E("  s_lshl_b32 s43, s28, 7")
    E("  s_add_u32 s43, s43, s41")
    E("  s_mov_b32 s50, s45")
    E("  s_mov_b32 s51, s45")
    E("  s_waitcnt lgkmcnt(0)")
    for tp in range(2):
        for mt in range(4):
            for u in range(2):
                t = 2 * tp + u
                a = acc(mt, t)
                tm = TM + 4 * u
                for p in range(2):
                    E(f"  v_pk_fma_f32 {vr(a+2*p,2)}, {vr(CSV+4*t+2*p,2)}, {vr(MS+2*mt,2)}, {vr(a+2*p,2)} op_sel_hi:[1,0,1] neg_lo:[0,1,0] neg_hi:[0,1,0]")
                for p in range(2):
                    E(f"  v_pk_mul_f32 {vr(a+2*p,2)}, {vr(a+2*p,2)}, {vr(RS+2*mt,2)} op_sel_hi:[1,0]")
                for p in range(2):
                    E(f"  v_pk_mul_f32 {vr(tm+2*p,2)}, {vr(a+2*p,2)}, s[50:51]")
                for r in range(4): E(f"  v_exp_f32 v{tm+r}, -v{tm+r}")
                for p in range(2):
                    E(f"  v_pk_add_f32 {vr(tm+2*p,2)}, {vr(tm+2*p,2)}, 1.0 op_sel_hi:[1,0]")
                for r in range(4): E(f"  v_rcp_f32 v{tm+r}, v{tm+r}")
                E("  s_nop 0")
                for p in range(2): E(f"  v_pk_mul_f32 {vr(a+2*p,2)}, {vr(a+2*p,2)}, {vr(tm+2*p,2)}")
                d = PK + (tp * 4 + mt) * 4 + 2 * u
                E(f"  v_cvt_pk_bf16_f32 v{d}, v{a}, v{a+1}")
                E(f"  v_cvt_pk_bf16_f32 v{d+1}, v{a+2}, v{a+3}")
            d = PK + (tp * 4 + mt) * 4
            E("  s_nop 1")
            E(f"  v_permlane16_swap_b32 v{d}, v{d+2}")
            E(f"  v_permlane16_swap_b32 v{d+1}, v{d+3}")
        E(f"  s_add_u32 s46, s43, {64*tp}")
        E(f"  v_lshl_add_u32 v{t3}, v{t4}, 5, s46")
        E(f"  v_lshrrev_b32 v{TM+8}, 6, v{t3}")
        E(f"  v_lshlrev_b32 v{TM+8}, 12, v{TM+8}")
        E(f"  v_and_b32 v{TM+9}, 32, v{t3}")
        E(f"  v_xor_b32 v{TM+9}, v{TM+9}, v{t2}")
        E(f"  v_add_u32 v{TM+8}, v{TM+8}, v{TM+9}")
        E(f"  v_cmp_gt_u32 vcc, 3456, v{t3}")
        E(f"  v_subrev_u32 v{TM+9}, s41, v{t3}")
        E(f"  v_cmp_gt_u32 s[46:47], s42, v{TM+9}" if False else "  s_mov_b64 s[48:49], vcc")
        E(f"  v_cmp_gt_u32 vcc, 224, v{TM+9}")
        E("  s_and_b64 vcc, vcc, s[48:49]")
        E(f"  v_mov_b32 v{TM+9}, 0x7fffffff")
        E(f"  v_cndmask_b32 v{TM+8}, v{TM+9}, v{TM+8}, vcc")
        for mt in range(4):
            d = PK + (tp * 4 + mt) * 4
            E(f"  buffer_store_dwordx4 {vr(d,4)}, v{TM+8}, s[16:19], s40 offen offset:{mt*1024}{WT('1')}")

def head_6480(which):
    E("  s_cmp_ge_u32 s2, 256")
    E(f"  s_cbranch_scc1 L{which}_done")
    E("  s_load_dwordx4 s[36:39], s[0:1], 56")
    E("  s_load_dwordx2 s[4:5], s[0:1], 48")
    E(f"  s_load_dwordx2 s[6:7], s[0:1], {16 if which == 2 else 40}")
    E("  s_load_dwordx2 s[42:43], s[0:1], 0")
    stamp(which)
    E("  s_and_b32 s40, s2, 7")
    E("  s_lshr_b32 s41, s2, 3")
    if os.environ.get("OLDMAP"):
        E("  s_lshl_b32 s24, s40, 2")
        E("  s_and_b32 s44, s41, 3")
        E("  s_add_u32 s24, s24, s44")
        E("  s_lshr_b32 s25, s41, 2")
    else:
        E("  s_lshr_b32 s24, s40, 1")
        E("  s_lshl_b32 s24, s24, 3")
        E("  s_and_b32 s44, s41, 7")
        E("  s_add_u32 s24, s24, s44")
        E("  s_and_b32 s25, s40, 1")
        E("  s_lshl_b32 s25, s25, 2")
        E("  s_lshr_b32 s44, s41, 3")
        E("  s_add_u32 s25, s25, s44")
    E("  v_lshrrev_b32 v1, 6, v0")
    E("  v_mov_b32 v2, v0")
    E("  v_and_b32 v0, 63, v0")
    E("  v_readfirstlane_b32 s26, v1")
    E("  s_nop 3")

def res_addr():
    E("  v_lshrrev_b32 v3, 2, v2")
    E("  s_lshl_b32 s40, s24, 6")
    E("  v_add_u32 v3, s40, v3")
    E("  s_movk_i32 s41, 1280")
    E("  v_mul_lo_u32 v7, v3, s41")
    E("  v_and_b32 v4, 3, v2")
    E("  v_mad_u32_u24 v7, v4, 40, v7")
    E("  s_mul_i32 s40, s25, 160")
    E("  v_add_u32 v7, s40, v7")

def chunk_addr(vc, vrow, vcol, tmp):
    E("  s_movk_i32 s41, 6554")
    E(f"  v_mul_u32_u24 v{vrow}, s41, v{vc}")
    E(f"  v_lshrrev_b32 v{vrow}, 16, v{vrow}")
    E(f"  v_mul_u32_u24 v{tmp}, 10, v{vrow}")
    E(f"  v_sub_u32 v{vcol}, v{vc}, v{tmp}")

def res_load(rounds, res_srd, RES, GA):
    for r, add in enumerate(rounds):
        E(f"  v_add_u32 v3, {add}, v2")
        chunk_addr(3, 4, 5, 6)
        E("  s_lshl_b32 s40, s24, 6")
        E("  v_add_u32 v4, s40, v4")
        E("  s_movk_i32 s41, 1280")
        E(f"  v_mul_lo_u32 v{GA+r}, v4, s41")
        E(f"  v_lshl_add_u32 v{GA+r}, v5, 4, v{GA+r}")
        E("  s_mul_i32 s40, s25, 160")
        E(f"  v_add_u32 v{GA+r}, s40, v{GA+r}")
        E("  v_cmp_gt_u32 vcc, 640, v3")
        E(f"  v_cndmask_b32 v{GA+r}, -1, v{GA+r}, vcc")
        E(f"  buffer_load_dwordx4 {vr(RES+4*r,4)}, v{GA+r}, {sr(res_srd,4)}, 0 offen")

def final_sum(which, rounds, RES, GA, dst_srd, wstride, B):
    for r, add in enumerate(rounds):
        E(f"  v_add_u32 v3, {add}, v2")
        E("  v_min_u32 v3, 639, v3")
        chunk_addr(3, 4, 5, 6)
        E("  v_mul_u32_u24 v6, 336, v4")
        E("  v_lshl_add_u32 v6, v5, 5, v6")
        E(f"  v_add_u32 v3, {2*wstride}, v6")
        for w in range(4):
            for j in range(2):
                E(f"  ds_read_b128 {vr(B+w*8+j*4,4)}, {'v6' if w < 2 else 'v3'} offset:{(w&1)*wstride+j*16}")
        E("  s_waitcnt lgkmcnt(0)")
        for i in range(4):
            E(f"  v_pk_add_f32 {vr(B+2*i,2)}, {vr(B+2*i,2)}, {vr(B+8+2*i,2)}")
            E(f"  v_pk_add_f32 {vr(B+16+2*i,2)}, {vr(B+16+2*i,2)}, {vr(B+24+2*i,2)}")
        for i in range(4):
            E(f"  v_pk_add_f32 {vr(B+2*i,2)}, {vr(B+2*i,2)}, {vr(B+16+2*i,2)}")
        E("  s_waitcnt vmcnt(0)")
        T = B + 8
        for i in range(4):
            E(f"  v_lshlrev_b32 v{T}, 16, v{RES+4*r+i}")
            E(f"  v_and_b32 v{T+1}, 0xffff0000, v{RES+4*r+i}")
            if which == 2:
                E(f"  v_cvt_pk_bf16_f32 v{T+2}, v{B+2*i}, v{B+2*i+1}")
                E(f"  v_lshlrev_b32 v{B+2*i}, 16, v{T+2}")
                E(f"  v_and_b32 v{B+2*i+1}, 0xffff0000, v{T+2}")
            E(f"  v_pk_add_f32 {vr(B+2*i,2)}, {vr(B+2*i,2)}, {vr(T,2)}")
            E(f"  v_cvt_pk_bf16_f32 v{T+4+i}, v{B+2*i}, v{B+2*i+1}")
        E(f"  buffer_store_dwordx4 {vr(T+4,4)}, v{GA+r}, {sr(dst_srd,4)}, 0 offen")
        if which == 2:
            S = T + 8
            for i in range(4):
                E(f"  v_lshlrev_b32 v{T}, 16, v{T+4+i}")
                E(f"  v_and_b32 v{T+1}, 0xffff0000, v{T+4+i}")
                if i == 0:
                    E(f"  v_mov_b32 v{S}, v{T}")
                    E(f"  v_mov_b32 v{S+1}, v{T+1}")
                    E(f"  v_pk_mul_f32 {vr(S+2,2)}, {vr(T,2)}, {vr(T,2)}")
                else:
                    E(f"  v_pk_add_f32 {vr(S,2)}, {vr(S,2)}, {vr(T,2)}")
                    E(f"  v_pk_fma_f32 {vr(S+2,2)}, {vr(T,2)}, {vr(T,2)}, {vr(S+2,2)}")
            E(f"  v_add_f32 v{S}, v{S}, v{S+1}")
            E(f"  v_add_f32 v{S+1}, v{S+2}, v{S+3}")
            E("  v_mul_u32_u24 v6, 10, v4")
            E("  v_add_u32 v6, v6, v5")
            E("  v_lshlrev_b32 v6, 3, v6")
            E(f"  v_add_u32 v6, {K2_STAT}, v6")
            E(f"  v_add_u32 v3, {add}, v2")
            E("  v_cmp_gt_u32 vcc, 640, v3")
            E("  s_and_saveexec_b64 s[50:51], vcc")
            E(f"  ds_write_b64 v6, {vr(S,2)}")
            E("  s_mov_b64 exec, s[50:51]")

K2_STAT = 4 * 40960 - 5120 - 16

def k4(name):
    kernel_head(name)
    head_6480(4)
    E("  s_mul_i32 s40, s24, 221184")
    E(f"  s_add_u32 s40, s40, {H1_OFF}")
    E("  s_mul_i32 s41, s25, 276480")
    E(f"  s_add_u32 s41, s41, {W2T_OFF}")
    E("  s_waitcnt lgkmcnt(0)")
    E("  s_add_u32 s8, s38, s40")
    E("  s_addc_u32 s9, s39, 0")
    E("  s_mov_b32 s10, 221184")
    E("  s_mov_b32 s11, 0x00020000")
    E("  s_add_u32 s12, s38, s41")
    E("  s_addc_u32 s13, s39, 0")
    E("  s_mov_b32 s14, 276480")
    E("  s_mov_b32 s15, 0x00020000")
    srd(16, 38, 2048 * 1280, H_OFF)
    srd(20, 4, 2048 * 1280)
    res_load([0], 16, 12, 10)
    E("  s_cmp_ge_u32 s26, 4")
    E("  s_cbranch_scc1 L4_loader")
    if os.environ.get("PRIO"): E("  s_setprio 2")
    if os.environ.get("PF4"):
        E("  s_and_b32 s40, s25, 3")
        E("  s_mul_i32 s40, s40, 432")
        E("  s_and_b32 s41, s24, 7")
        E("  s_mul_i32 s41, s41, 270")
        E("  v_mov_b32 v6, 0x7fffffff")
        for r in range(2):
            E(f"  v_add_u32 v3, {256*r}, v2")
            E("  v_add_u32 v4, s40, v3")
            E("  v_lshlrev_b32 v4, 7, v4")
            E("  v_cmp_gt_u32 vcc, 432, v3")
            E("  v_cndmask_b32 v4, v6, v4, vcc")
            E(f"  buffer_load_dword v{100+r}, v4, s[8:11], 0 offen")
            E("  v_add_u32 v5, s41, v3")
            E("  v_lshlrev_b32 v5, 7, v5")
            E("  v_cmp_gt_u32 vcc, 270, v3")
            E("  v_cndmask_b32 v5, v6, v5, vcc")
            E(f"  buffer_load_dword v{102+r}, v5, s[12:15], 0 offen")
    E("  s_mul_i32 s34, s26, 36864")
    E("  v_and_b32 v3, 15, v0")
    E("  v_lshrrev_b32 v4, 4, v0")
    E("  v_lshrrev_b32 v5, 2, v3")
    E("  v_sub_u32 v6, 0, v5")
    E("  v_xor_b32 v6, v6, v4")
    E("  v_and_b32 v6, 3, v6")
    E("  v_lshlrev_b32 v6, 4, v6")
    E("  v_lshl_add_u32 v6, v3, 6, v6")
    E("  v_add_u32 v8, s34, v6")
    E("  v_lshrrev_b32 v6, 1, v4")
    E("  v_lshl_add_u32 v6, v6, 4, v5")
    E("  v_and_b32 v4, 1, v4")
    E("  v_lshl_add_u32 v6, v4, 2, v6")
    E("  v_mul_u32_u24 v6, 160, v6")
    E("  v_and_b32 v3, 3, v3")
    E("  v_lshl_add_u32 v6, v3, 3, v6")
    E("  v_add_u32 v6, 4096, v6")
    E("  v_add_u32 v9, s34, v6")
    ACC = 16
    def accf(mt, nt): return ACC + (mt * 5 + nt) * 4
    for i in range(80):
        E(f"  v_mov_b32 v{ACC+i}, 0")
    RES = 96
    X, Y = 96 + 12, 96 + 12 + 36
    X, Y = 96, 132
    RES = 168 - 0
    def reads(step, base):
        sl = step % 4
        r = []
        for mt in range(4):
            r.append(f"  ds_read_b128 {vr(base+4*mt,4)}, v8 offset:{sl*9216+mt*1024}")
        for nt in range(5):
            for h in range(2):
                r.append(f"  ds_read_b64_tr_b16 {vr(base+16+4*nt+2*h,2)}, v9 offset:{sl*9216+h*1280+nt*32}")
        return r
    NSTEP = 14
    E("  s_barrier")
    stamp(4)
    for r in reads(0, X): E(r)
    for i in range(NSTEP):
        cur, nxt = (X, Y) if i % 2 == 0 else (Y, X)
        E("  s_waitcnt lgkmcnt(0)")
        if i + 1 < NSTEP:
            E("  s_barrier")
        mfs = [f"  v_mfma_f32_16x16x32_bf16 {vr(accf(mt,nt),4)}, {vr(cur+16+4*nt,4)}, {vr(cur+4*mt,4)}, {vr(accf(mt,nt),4)}" for mt in range(4) for nt in range(5)]
        interleave(mfs, reads(i + 1, nxt) if i + 1 < NSTEP else [])
        if i == NSTEP - 2:
            pass
    stamp(4)
    pads_on()
    E("  v_and_b32 v3, 15, v0")
    E("  v_lshrrev_b32 v4, 4, v0")
    E("  v_mul_u32_u24 v5, 336, v3")
    E("  v_lshl_add_u32 v5, v4, 4, v5")
    E("  v_add_u32 v5, s34, v5")
    E("  s_nop 7")
    for mt in range(4):
        for nt in range(5):
            E(f"  ds_write_b128 v5, {vr(accf(mt,nt),4)} offset:{mt*16*336+nt*64}")
    E("  s_waitcnt lgkmcnt(0)")
    pads_off()
    E("  s_branch L4_fin")
    E("L4_loader:")
    E("  s_sub_u32 s27, s26, 4")
    E("  s_lshr_b32 s28, s27, 1")
    E("  s_and_b32 s27, s27, 1")
    E("  s_mul_i32 s34, s28, 36864")
    E(f"  s_mul_i32 s32, s28, {14*4096}")
    E(f"  s_mul_i32 s33, s28, {14*5120}")
    E("  v_lshlrev_b32 v8, 4, v0")
    for half in range(2):
        if half == 0:
            E("  s_cmp_eq_u32 s27, 1")
            E("  s_cbranch_scc1 L4_ld1")
        else:
            E("L4_ld1:")
        n = 5 if half == 0 else 4
        def dma(step):
            sl = step % 4
            if half == 0:
                E(f"  s_add_u32 s35, s34, {sl*9216}")
                E("  s_mov_b32 m0, s35")
                E("  s_add_u32 s35, s35, 8192")
                for j in range(4):
                    E(f"  buffer_load_dwordx4 v8, s[8:11], s32 offen offset:{j*1024} lds")
                E("  s_mov_b32 m0, s35")
                E("  s_add_u32 s32, s32, 4096")
                E("  s_add_u32 s35, s33, 4096")
                E("  buffer_load_dwordx4 v8, s[12:15], s35 offen lds")
            else:
                E(f"  s_add_u32 s35, s34, {sl*9216+4096}")
                E("  s_mov_b32 m0, s35")
                E("  s_nop 0")
                for j in range(4):
                    E(f"  buffer_load_dwordx4 v8, s[12:15], s33 offen offset:{j*1024} lds")
            E(f"  s_add_u32 s33, s33, 5120")
        for s in range(4): dma(s)
        last = 3
        if half == 0: pf_enter("L4", 4, "s28")
        PF = int(os.environ.get("K4PF", "0"))
        npf = 0
        if PF:
            E("  s_mov_b32 s48, s32")
            E("  s_mov_b32 s49, s33")
            for st in range(4, 4 + PF):
                if half == 0:
                    for j in range(4):
                        E(f"  buffer_load_dwordx4 v[20:23], v{8+j}, s[8:11], s48 offen offset:{j*1024}")
                    E("  buffer_load_dwordx4 v[20:23], v16, s[12:15], s49 offen")
                    E("  s_add_u32 s48, s48, 64")
                else:
                    for j in range(4):
                        E(f"  buffer_load_dwordx4 v[20:23], v{12+j}, s[12:15], s49 offen offset:{j*1024}")
                E(f"  s_add_u32 s49, s49, {32*1280}")
                npf += n
        E(f"  s_waitcnt vmcnt({3*n+npf})")
        E("  s_barrier")
        for i in range(NSTEP - 1):
            E(f"  s_waitcnt vmcnt({min(63,(last-(i+1))*n + (npf if i+1 <= 3 else 0))})")
            E("  s_barrier")
            if i + 4 < NSTEP:
                dma(i + 4); last = i + 4
            if i == NSTEP - 5:
                pass
        E("  s_branch L4_fin")
    E("L4_fin:")
    pad["on"] = True
    E("  s_barrier")
    final_sum(4, [0], 12, 10, 20, 36864, 24)
    pads_off()
    stamp(4)
    stamp_flush(4, 36)
    rt_end(4)
    E("L4_done:")
    E("  s_endpgm")

def k2(name):
    kernel_head(name)
    head_6480(2)
    E("  s_and_b32 s27, s26, 3")
    E("  s_lshr_b32 s33, s26, 2")
    E("  s_mul_i32 s34, s27, 40960")
    E("  v_lshlrev_b32 v8, 4, v0")
    E("  s_lshl_b32 s40, s24, 2")
    E("  s_add_u32 s40, s40, s27")
    E("  s_mul_i32 s44, s40, 21504")
    E("  s_mul_i32 s45, s33, 11264")
    E("  s_add_u32 s44, s44, s45")
    E("  s_add_u32 s35, s34, s45")
    E("  s_mov_b32 m0, s35")
    E("  s_waitcnt lgkmcnt(0)")
    srd(8, 38, 128 * 21504, PQT_OFF)
    srd(28, 38, 53760, KV_OFF)
    srd(12, 38, 8 * 102400, WOT_OFF)
    E("  s_mul_i32 s46, s27, 13440")
    E("  s_mul_i32 s45, s33, 7168")
    E("  s_add_u32 s46, s46, s45")
    E("  s_add_u32 s35, s34, 21504")
    E("  s_add_u32 s45, s45, s35")
    E("  s_mov_b32 s47, m0")
    E("  s_mov_b32 m0, s45")
    E("  s_nop 0")
    for j in range(7):
        E("  buffer_load_dwordx4 v8, s[28:31], s46 offen lds")
        E("  s_add_u32 m0, m0, 1024")
        E("  s_add_u32 s46, s46, 1024")
    E("  s_mov_b32 m0, s47")
    E("  s_nop 0")
    for j in range(11):
        if j == 10:
            E("  s_cmp_eq_u32 s33, 1")
            E("  s_cbranch_scc1 L2_pq10")
        E("  buffer_load_dwordx4 v8, s[8:11], s44 offen lds")
        E("  s_add_u32 m0, m0, 1024")
        E("  s_add_u32 s44, s44, 1024")
    E("L2_pq10:")
    WR = 196
    E("  s_mul_i32 s32, s27, 25600")
    E("  s_mul_i32 s45, s25, 102400")
    E("  s_add_u32 s32, s32, s45")
    E("  s_mul_i32 s45, s33, 13312")
    E("  s_add_u32 s32, s32, s45")
    E("  v_mov_b32 v7, v8")
    srd(16, 42, 2048 * 1280)
    srd(20, 38, 2048 * 1280, H_OFF)
    srd(28, 38, WS_BYTES)
    RES, GA = 248, 194
    E("  v_lshrrev_b32 v3, 3, v2")
    E("  s_lshl_b32 s40, s24, 6")
    E("  v_add_u32 v3, s40, v3")
    E("  s_movk_i32 s41, 1280")
    E(f"  v_mul_lo_u32 v{GA}, v3, s41")
    E("  v_and_b32 v4, 7, v2")
    E(f"  v_mad_u32_u24 v{GA}, v4, 20, v{GA}")
    E("  s_mul_i32 s40, s25, 160")
    E(f"  v_add_u32 v{GA}, s40, v{GA}")
    E(f"  buffer_load_dwordx4 {vr(RES,4)}, v{GA}, s[16:19], 0 offen")
    E(f"  buffer_load_dword v{RES+4}, v{GA}, s[16:19], 0 offen offset:16")
    E("  v_and_b32 v3, 15, v0")
    E("  v_lshrrev_b32 v4, 4, v0")
    E("  v_cmp_eq_u32 s[46:47], 0, v4")
    E("  v_lshrrev_b32 v5, 2, v3")
    for q in range(4):
        E(f"  v_cmp_eq_u32 s[{48+2*q}:{49+2*q}], {q}, v5")
        E(f"  v_cmp_eq_u32 s[{56+2*q}:{57+2*q}], {q}, v4")
    E("  v_mul_u32_u24 v8, 80, v3")
    E("  v_add_u32 v8, s35, v8")
    E("  v_lshl_add_u32 v9, v4, 4, v8")
    E("  v_and_b32 v10, 3, v3")
    E("  v_mul_u32_u24 v10, 80, v10")
    E("  v_add_u32 v10, s35, v10")
    E("  v_add_u32 v10, 1280, v10")
    E("  v_lshl_add_u32 v11, v4, 4, v10")
    E("  v_mov_b32 v12, s35")
    E("  v_add_u32 v12, 1600, v12")
    E("  v_lshl_add_u32 v13, v4, 4, v12")
    E("  s_mul_i32 s40, s33, 10752")
    E("  s_add_u32 s40, s40, s34")
    E("  v_mul_u32_u24 v14, 336, v3")
    E("  v_add_u32 v14, s40, v14")
    E("  v_add_u32 v15, 32, v14")
    E("  v_lshl_add_u32 v14, v4, 3, v14")
    pf_enter("L2", 8, "s26")
    E("  s_waitcnt vmcnt(12)")
    stamp(2)
    E("  s_barrier")
    stamp(2)
    KF, T = 32, 128
    def kvreads(hh):
        o = hh * 1680
        tt0 = T + 24 * (hh % 2)
        E(f"  ds_read_b128 {vr(tt0,4)}, v9 offset:{o}")
        E(f"  ds_read_b128 {vr(tt0+4,4)}, v8 offset:{o+64}")
        E(f"  ds_read_b128 {vr(tt0+8,4)}, v11 offset:{o}")
        E(f"  ds_read_b128 {vr(tt0+12,4)}, v10 offset:{o+64}")
        E(f"  ds_read_b128 {vr(tt0+16,4)}, v13 offset:{o}")
        E(f"  ds_read_b128 {vr(tt0+20,4)}, v12 offset:{o+64}")
    kvreads(0)
    for hh in range(8):
        if hh + 1 < 8:
            kvreads(hh + 1)
            E("  s_waitcnt lgkmcnt(6)")
        else:
            E("  s_waitcnt lgkmcnt(0)")
        f = KF + 12 * hh
        tt0 = T + 24 * (hh % 2)
        for tt in range(3):
            for p in range(4):
                E(f"  v_cvt_pk_bf16_f32 v{f+4*tt+p}, v{tt0+8*tt+2*p}, v{tt0+8*tt+2*p+1}")
        m = f"s[{48+2*(hh%4)}:{49+2*(hh%4)}]"
        for tt in range(3):
            E(f"  v_cndmask_b32 v{f+4*tt+2}, 0, v{f+4*tt+2}, s[46:47]")
            E(f"  v_cndmask_b32 v{f+4*tt+3}, 0, v{f+4*tt+3}, s[46:47]")
        for p in range(4):
            E(f"  v_cndmask_b32 v{f+4+p}, 0, v{f+4+p}, {m}")
    E("  s_waitcnt vmcnt(2)")
    for j in range(13):
        E(f"  buffer_load_dwordx4 {vr(WR+4*j,4)}, v7, s[12:15], s32 offen")
        E("  s_add_u32 s32, s32, 1024")
    E("  s_barrier")
    stamp(2)
    OF = 128
    def of(u, ks): return OF + u * 20 + ks * 4
    PQa, PQb, N0, D, N1, RS = 168, 16, 176, 24, 184, 192
    E("  s_mov_b32 s45, 0x358637bd")
    def pqreads(hh):
        P = PQa if hh % 2 == 0 else PQb
        for u in range(2):
            E(f"  ds_read_b64 {vr(P+4*u,2)}, v14 offset:{u*16*336+40*hh}")
            E(f"  ds_read_b64 {vr(P+4*u+2,2)}, v15 offset:{u*16*336+40*hh}")
    pqreads(0)
    for hh in range(8):
        P = PQa if hh % 2 == 0 else PQb
        f = KF + 12 * hh
        if hh + 1 < 8:
            pqreads(hh + 1)
            E("  s_waitcnt lgkmcnt(4)")
        else:
            E("  s_waitcnt lgkmcnt(0)")
        for u in range(2):
            E(f"  v_mfma_f32_16x16x32_bf16 {vr(D+4*u,4)}, {vr(f+8,4)}, {vr(P+4*u,4)}, 0")
        for u in range(2):
            E(f"  v_mfma_f32_16x16x32_bf16 {vr(N0+4*u,4)}, {vr(f,4)}, {vr(P+4*u,4)}, 0")
        for u in range(2):
            c = "0" if hh % 4 == 0 else vr(N1 + 4 * u, 4)
            E(f"  v_mfma_f32_16x16x32_bf16 {vr(N1+4*u,4)}, {vr(f+4,4)}, {vr(P+4*u,4)}, {c}")
        E("  s_nop 4")
        for u in range(2):
            E(f"  v_add_f32 v{D+4*u}, s45, v{D+4*u}")
            E(f"  v_rcp_f32 v{D+4*u}, v{D+4*u}")
        E("  s_nop 1")
        for u in range(2):
            for r in range(4):
                E(f"  v_mul_f32 v{N0+4*u+r}, v{N0+4*u+r}, v{D+4*u}")
            dst = of(u, hh // 2) + 2 * (hh % 2)
            E(f"  v_cvt_pk_bf16_f32 v{dst}, v{N0+4*u}, v{N0+4*u+1}")
            E(f"  v_cvt_pk_bf16_f32 v{dst+1}, v{N0+4*u+2}, v{N0+4*u+3}")
            gm = f"s[{56+2*(hh%4)}:{57+2*(hh%4)}]"
            E(f"  v_cndmask_b32 v{RS+u}, v{RS+u}, v{D+4*u}, {gm}")
        if hh % 4 == 3:
            E("  s_nop 4")
            for u in range(2):
                for r in range(4):
                    E(f"  v_mul_f32 v{D+4*u+r}, v{N1+4*u+r}, v{RS+u}")
                dst = of(u, 4) + 2 * (hh // 4)
                E(f"  v_cvt_pk_bf16_f32 v{dst}, v{D+4*u}, v{D+4*u+1}")
                E(f"  v_cvt_pk_bf16_f32 v{dst+1}, v{D+4*u+2}, v{D+4*u+3}")
    stamp(2)
    E("  v_lshlrev_b32 v16, 4, v0")
    E("  s_mul_i32 s40, s33, 13312")
    E("  s_add_u32 s40, s40, s34")
    E("  v_add_u32 v16, s40, v16")
    E("  v_lshl_add_u32 v8, v4, 2, v5")
    E("  v_mul_u32_u24 v8, 160, v8")
    E("  v_and_b32 v6, 3, v3")
    E("  v_lshl_add_u32 v8, v6, 3, v8")
    E("  v_add_u32 v8, s34, v8")
    E("  v_mul_u32_u24 v9, 20, v4")
    E("  v_add_u32 v9, v9, v5")
    E("  v_add_u32 v9, 16, v9")
    E("  v_mul_u32_u24 v9, 160, v9")
    E("  v_lshl_add_u32 v9, v6, 3, v9")
    E("  v_add_u32 v9, s34, v9")
    E("  s_waitcnt vmcnt(0)")
    E("  s_barrier")
    for j in range(13):
        if j == 12:
            E("  s_cmp_eq_u32 s33, 1")
            E("  s_cbranch_scc1 L2_w12")
        E(f"  ds_write_b128 v16, {vr(WR+4*j,4)} offset:{1024*j}")
    E("L2_w12:")
    E("  s_waitcnt lgkmcnt(0)")
    E("  s_barrier")
    stamp(2)
    ACC = 32
    def accf(u, nt): return ACC + (u * 5 + nt) * 4
    WFS = [72, 92]
    def wreads(ks):
        W = WFS[ks % 2]
        r = []
        for nt in range(5):
            for h in range(2):
                if ks < 4:
                    r.append(f"  ds_read_b64_tr_b16 {vr(W+4*nt+2*h,2)}, v8 offset:{ks*6400+h*3200+nt*32}")
                else:
                    r.append(f"  ds_read_b64_tr_b16 {vr(W+4*nt+2*h,2)}, v9 offset:{h*12800+nt*32}")
        return r
    for r in wreads(0): E(r)
    for ks in range(5):
        W = WFS[ks % 2]
        E("  s_waitcnt lgkmcnt(0)")
        mfs = []
        for nt in range(5):
            for u in range(2):
                c = "0" if ks == 0 else vr(accf(u, nt), 4)
                mfs.append(f"  v_mfma_f32_16x16x32_bf16 {vr(accf(u,nt),4)}, {vr(W+4*nt,4)}, {vr(of(u,ks),4)}, {c}")
        interleave(mfs, wreads(ks + 1) if ks < 4 else [], per=1)
    stamp(2)
    E("  s_barrier")
    E("  s_mul_i32 s40, s33, 10752")
    E("  s_add_u32 s40, s40, s34")
    E("  v_mul_u32_u24 v5, 336, v3")
    E("  v_lshl_add_u32 v5, v4, 4, v5")
    E("  v_add_u32 v5, s40, v5")
    for u in range(2):
        for nt in range(5):
            E(f"  ds_write_b128 v5, {vr(accf(u,nt),4)} offset:{u*16*336+nt*64}")
    E("  s_waitcnt lgkmcnt(0)")
    E("  s_barrier")
    B = 32
    E("  v_lshrrev_b32 v3, 3, v2")
    E("  v_and_b32 v4, 7, v2")
    E("  v_mul_u32_u24 v6, 336, v3")
    E("  v_mad_u32_u24 v6, v4, 40, v6")
    E(f"  v_add_u32 v5, {2*40960}, v6")
    for w in range(4):
        for j in range(5):
            E(f"  ds_read_b64 {vr(B+w*10+j*2,2)}, {'v6' if w < 2 else 'v5'} offset:{(w&1)*40960+j*8}")
    E("  s_waitcnt lgkmcnt(0)")
    for i in range(5):
        E(f"  v_pk_add_f32 {vr(B+2*i,2)}, {vr(B+2*i,2)}, {vr(B+10+2*i,2)}")
        E(f"  v_pk_add_f32 {vr(B+20+2*i,2)}, {vr(B+20+2*i,2)}, {vr(B+30+2*i,2)}")
    for i in range(5):
        E(f"  v_pk_add_f32 {vr(B+2*i,2)}, {vr(B+2*i,2)}, {vr(B+20+2*i,2)}")
    E("  s_waitcnt vmcnt(0)")
    T = B + 10
    for i in range(5):
        E(f"  v_lshlrev_b32 v{T}, 16, v{RES+i}")
        E(f"  v_and_b32 v{T+1}, 0xffff0000, v{RES+i}")
        E(f"  v_cvt_pk_bf16_f32 v{T+2}, v{B+2*i}, v{B+2*i+1}")
        E(f"  v_lshlrev_b32 v{B+2*i}, 16, v{T+2}")
        E(f"  v_and_b32 v{B+2*i+1}, 0xffff0000, v{T+2}")
        E(f"  v_pk_add_f32 {vr(B+2*i,2)}, {vr(B+2*i,2)}, {vr(T,2)}")
        E(f"  v_cvt_pk_bf16_f32 v{T+4+i}, v{B+2*i}, v{B+2*i+1}")
    E(f"  buffer_store_dwordx4 {vr(T+4,4)}, v{GA}, s[20:23], 0 offen{WT('2')}")
    E(f"  buffer_store_dword v{T+8}, v{GA}, s[20:23], 0 offen offset:16{WT('2')}")
    S = T + 10
    for i in range(5):
        E(f"  v_lshlrev_b32 v{T}, 16, v{T+4+i}")
        E(f"  v_and_b32 v{T+1}, 0xffff0000, v{T+4+i}")
        if i == 0:
            E(f"  v_mov_b32 v{S}, v{T}")
            E(f"  v_mov_b32 v{S+1}, v{T+1}")
            E(f"  v_pk_mul_f32 {vr(S+2,2)}, {vr(T,2)}, {vr(T,2)}")
        else:
            E(f"  v_pk_add_f32 {vr(S,2)}, {vr(S,2)}, {vr(T,2)}")
            E(f"  v_pk_fma_f32 {vr(S+2,2)}, {vr(T,2)}, {vr(T,2)}, {vr(S+2,2)}")
    E(f"  v_add_f32 v{S}, v{S}, v{S+1}")
    E(f"  v_add_f32 v{S+1}, v{S+2}, v{S+3}")
    for ctl in ("quad_perm:[1,0,3,2]", "quad_perm:[2,3,0,1]", "row_half_mirror"):
        E("  s_nop 1")
        for r in (S, S + 1):
            E(f"  v_add_f32_dpp v{r}, v{r}, v{r} {ctl} row_mask:0xf bank_mask:0xf")
    E("  s_lshl_b32 s40, s24, 12")
    E("  s_lshl_b32 s41, s25, 3")
    E("  s_add_u32 s40, s40, s41")
    E(f"  s_add_u32 s40, s40, {RS_OFF}")
    E("  v_lshlrev_b32 v3, 6, v3")
    E("  v_cmp_eq_u32 vcc, 0, v4")
    E("  s_and_saveexec_b64 s[50:51], vcc")
    E(f"  buffer_store_dwordx2 {vr(S,2)}, v3, s[28:31], s40 offen")
    E("  s_mov_b64 exec, -1")
    E("L2_nost:")
    pads_off()
    stamp(2)
    stamp_flush(2, 36)
    rt_end(2)
    E("L2_done:")
    E("  s_endpgm")

def main():
    N = ["k1_qkv_kernel", "k2_attn_kernel", "k3_ffn1_kernel", "k4_ffn2_kernel"]
    hdr = open('cdna_kernels/' + NAME + '.s.ref').read().split("; Override")[0]
    E(hdr.rstrip())
    lds = [163840, 163840, 163840, 4 * 36864]
    blk = [768, 512, 768, 768]
    for i, n in enumerate(N):
        E(f"; @launch kernel={n} grid=(256,1,1) block=({blk[i]},1,1) lds={lds[i]}")
    E('.amdgcn_target "amdgcn-amd-amdhsa--gfx950"')
    E(".text")
    st = len(out); ln_gemm(N[0], 1); resolve_pads("L1", st)
    st = len(out); k2(N[1]); resolve_pads("L2", st)
    st = len(out); ln_gemm(N[2], 3); resolve_pads("L3", st)
    st = len(out); k4(N[3]); resolve_pads("L4", st)
    E("Lcode_end:")
    E('.section .rodata,"a"')
    E(kernel_desc(N[0]))
    E(kernel_desc(N[1], vgpr=256))
    E(kernel_desc(N[2]))
    E(kernel_desc(N[3]))
    open(sys.argv[1], 'w').write("\n".join(out) + "\n")
main()
```

```python
import sys, os
NAME = "sequential_preLN__linear_attn_block__dense_activation_silu__prompt"
PQ_OFF = 0
KV_OFF = 0x280000
H_OFF = 0x290000
H1_OFF = 0x510000
RS_OFF = H1_OFF + 2048 * 1728 * 2
W1T_OFF = RS_OFF + 2048 * 64
W2T_OFF = W1T_OFF + 16 * 163840
WOT_OFF = W2T_OFF + 8 * 276480
PQT_OFF = WOT_OFF + 8 * 102400
CSP_OFF = PQT_OFF + 128 * 21504
WS_BYTES = CSP_OFF + 16 * 16 * 512
out = []
PADN = int(os.environ.get("PADN", "0"))
pad = {"on": False, "cnt": 0, "masked": False, "n": 0}
def E(s=""):
    out.append(s)
    t = s.strip()
    if not pad["on"] or not t or t.endswith(":") or t.startswith("."): return
    if t.startswith("s_mov_b64 exec") or "saveexec" in t:
        pad["masked"] = not t.endswith("exec, -1")
    pad["cnt"] += 1
    if PADN and pad["cnt"] >= PADN and not pad["masked"] and t.startswith(("v_", "ds_")) and not t.startswith(("v_cmp", "v_readfirst")):
        out.append(f"@PAD {pad['n']}")
        pad["n"] += 1
        pad["cnt"] = 0
def pads_on(): pad["on"] = True; pad["cnt"] = 0; pad["masked"] = False
def pads_off(): pad["on"] = False
def pf_enter(L, nw, wave_sreg, wbase=0):
    out.append(f"@PFENTER {L} {nw} {wave_sreg} {wbase}")
    E(f"{L}_PFRET:")
    E("  s_mov_b64 exec, -1")
def resolve_pads(L, start):
    n = pad["n"]
    ent = [i for i in range(start, len(out)) if out[i].startswith("@PFENTER")]
    nw = int(out[ent[0]].split()[2]) if ent else 1
    starts = [k * n // nw for k in range(nw)]
    sset = set(starts[1:])
    for i in range(start, len(out)):
        if out[i].startswith("@PAD"):
            k = int(out[i].split()[1])
            nxt = f"{L}_PFRET" if (k + 1 == n or (k + 1) in sset) else f"{L}_P{k+1}"
            out[i] = f"{L}_P{k}:\n  s_cbranch_execz {nxt}"
        elif out[i].startswith("@PFENTER"):
            _, L_, nw_, sreg, wb = out[i].split()
            txt = []
            if n:
                txt.append("  s_mov_b64 exec, 0")
                for k in range(nw):
                    txt.append(f"  s_cmp_eq_u32 {sreg}, {int(wb)+k}")
                    txt.append(f"  s_cbranch_scc1 {L}_P{starts[k]}")
            out[i] = "\n".join(txt)
    pad["n"] = 0; pad["on"] = False
def WT(level):
    return " sc1" if level in os.environ.get("WT", "") else ""
def vr(b, n=1):
    return f"v{b}" if n == 1 else f"v[{b}:{b+n-1}]"
def sr(b, n=1):
    return f"s{b}" if n == 1 else f"s[{b}:{b+n-1}]"
def srd(dst, lo, nbytes, add=0):
    if add:
        E(f"  s_add_u32 s{dst}, s{lo}, {add}")
        E(f"  s_addc_u32 s{dst+1}, s{lo+1}, 0")
    else:
        E(f"  s_mov_b32 s{dst}, s{lo}")
        E(f"  s_mov_b32 s{dst+1}, s{lo+1}")
    E(f"  s_mov_b32 s{dst+2}, {nbytes}")
    E(f"  s_mov_b32 s{dst+3}, 0x00020000")
STAMP = os.environ.get("STAMP", "")
stamp_n = [0]
SB0 = 64 if STAMP == "2" else 60
def stamp(which):
    if STAMP != str(which): return
    i = stamp_n[0]; stamp_n[0] += 1
    E(f"  s_memtime s[{SB0+2*i}:{SB0+1+2*i}]")
def stamp_flush(which, dbg_lo, wave=0):
    if STAMP != str(which): return
    n = stamp_n[0]
    E("  s_waitcnt lgkmcnt(0) vmcnt(0)")
    E("  s_mov_b64 exec, -1")
    E(f"  s_cmp_lg_u32 s2, {os.environ.get('STAMPWG','0')}")
    E(f"  s_cbranch_scc1 LS{which}_skip")
    E("  s_cmp_lg_u32 s26, 0")
    E(f"  s_cbranch_scc1 LS{which}_skip")
    E(f"  s_mov_b32 s92, s{dbg_lo}")
    E(f"  s_mov_b32 s93, s{dbg_lo+1}")
    E("  s_mov_b32 s94, 256")
    E("  s_mov_b32 s95, 0x00020000")
    E("  s_mov_b64 exec, 1")
    E("  v_mov_b32 v1, 0")
    for i in range(n):
        E(f"  s_sub_u32 s58, s{SB0+2*i}, s{SB0}")
        E("  v_mov_b32 v2, s58")
        E(f"  buffer_store_dword v2, v1, s[92:95], 0 offen offset:{128+4*i}")
    E(f"LS{which}_skip:")
    stamp_n[0] = 0
RT = os.environ.get("RT")
def kernel_head(name):
    E(f".globl {name}")
    E(".p2align 8")
    E(f".type {name},@function")
    E(f"{name}:")
    if RT: E("  s_memrealtime s[98:99]")
def rt_end(which):
    if not RT: return
    E("  s_mov_b64 exec, -1")
    E("  s_waitcnt vmcnt(0) lgkmcnt(0)")
    E("  s_memrealtime s[100:101]")
    E("  s_cmp_lg_u32 s26, 0")
    E(f"  s_cbranch_scc1 LRT{which}")
    E(f"  s_add_u32 s92, s38, {(48<<20) + which*4096}")
    E("  s_addc_u32 s93, s39, 0")
    E("  s_mov_b32 s94, 4096")
    E("  s_mov_b32 s95, 0x00020000")
    E("  s_waitcnt lgkmcnt(0)")
    E("  s_mov_b64 exec, 1")
    E("  v_mov_b32 v2, s98")
    E("  v_mov_b32 v3, s100")
    E("  s_lshl_b32 s58, s2, 3")
    E("  v_mov_b32 v1, s58")
    E("  buffer_store_dwordx2 v[2:3], v1, s[92:95], 0 offen")
    E(f"LRT{which}:")
def kernel_desc(name, vgpr=168, sgpr=(102 if os.environ.get("RT") else 96), accoff=None):
    return f""".p2align 6
.amdhsa_kernel {name}
  .amdhsa_next_free_vgpr {vgpr}
  .amdhsa_next_free_sgpr {sgpr}
  .amdhsa_accum_offset {accoff or (vgpr+3)//4*4}
  .amdhsa_group_segment_fixed_size 0
  .amdhsa_kernarg_size 72
  .amdhsa_user_sgpr_count 2
  .amdhsa_user_sgpr_kernarg_segment_ptr 1
  .amdhsa_system_sgpr_workgroup_id_x 1
.end_amdhsa_kernel"""

def interleave(mf, other, per=int(os.environ.get("PER","1"))):
    other = list(other)
    for m in mf:
        E(m)
        for _ in range(per):
            if other: E(other.pop(0))
    for o in other: E(o)

NS = 4
SLOT = 32768
NST = 10
AUX = NS * SLOT
A_SUM, A_SQ, A_CS = AUX, AUX + 512, AUX + 1024
A_MEAN, A_RSTD = AUX + 2048, AUX + 2560
A_KV = AUX + 4096
A_CP = AUX + 12288
U2 = 62

V_RA, V_RB = 2, 4
V_T = 8
V_X, V_Y, V_ACC, V_E = 16, 48, 80, 144
def acc(mt, t): return V_ACC + (mt * 4 + t) * 4

def ln_gemm(name, which):
    k1 = which == 1
    L = f"L{which}"
    ldb = 3840 if k1 else 3456
    swapped = [False, False, False, True] if k1 else [True] * 4
    t0, t1, t2, t3, t4 = V_T, V_T + 1, V_T + 2, V_T + 3, V_T + 4
    kernel_head(name)
    E("  s_cmp_ge_u32 s2, 256")
    E(f"  s_cbranch_scc1 {L}_done")
    E("  s_load_dwordx2 s[4:5], s[0:1], 0" if k1 else "  s_load_dwordx2 s[4:5], s[0:1], 64")
    E(f"  s_load_dwordx2 s[6:7], s[0:1], {8 if k1 else 32}")
    E("  s_load_dwordx4 s[36:39], s[0:1], 56")
    stamp(which)
    E("  s_and_b32 s40, s2, 7")
    E("  s_lshr_b32 s41, s2, 3")
    E("  s_lshr_b32 s24, s40, 1")
    E("  s_lshl_b32 s24, s24, 2")
    E("  s_and_b32 s42, s41, 3")
    E("  s_add_u32 s24, s24, s42")
    E("  s_and_b32 s25, s40, 1")
    E("  s_lshl_b32 s25, s25, 3")
    E("  s_lshr_b32 s42, s41, 2")
    E("  s_add_u32 s25, s25, s42")
    E("  v_lshrrev_b32 v1, 6, v0")
    E("  v_and_b32 v0, 63, v0")
    E("  v_readfirstlane_b32 s26, v1")
    E("  s_waitcnt lgkmcnt(0)")
    if k1: srd(8, 4, 2048 * 1280)
    else: srd(8, 4, 2048 * 1280, H_OFF)
    if k1: srd(12, 6, 640 * ldb)
    else: srd(12, 4, 16 * 163840, W1T_OFF)
    srd(16, 38, WS_BYTES)
    srd(20, 36, 256)
    E("  s_cmp_ge_u32 s26, 4")
    E(f"  s_cbranch_scc1 {L}_loader")
    if os.environ.get("PRIO"): E("  s_setprio 2")
    E("  s_lshr_b32 s27, s26, 1")
    E("  s_and_b32 s28, s26, 1")
    E(f"  v_and_b32 v{t0}, 15, v0")
    E(f"  v_lshrrev_b32 v{t1}, 4, v0")
    E(f"  v_and_b32 v{t2}, 7, v{t0}")
    E(f"  v_xor_b32 v{t2}, v{t2}, v{t1}")
    E(f"  v_lshlrev_b32 v{t2}, 4, v{t2}")
    E(f"  v_lshl_add_u32 v{t2}, v{t0}, 7, v{t2}")
    E("  s_lshl_b32 s40, s27, 13")
    E(f"  v_add_u32 v{V_RA}, s40, v{t2}")
    E(f"  v_xor_b32 v{V_RA+1}, 64, v{V_RA}")
    E(f"  v_lshrrev_b32 v{t2}, 2, v{t0}")
    E(f"  v_and_b32 v{t3}, 1, v{t1}")
    E(f"  v_lshl_add_u32 v{t3}, v{t3}, 2, v{t2}")
    E(f"  v_lshl_add_u32 v{t2}, v{t1}, 3, v{t2}")
    E(f"  v_lshlrev_b32 v{t2}, 8, v{t2}")
    E(f"  v_add_u32 v{t2}, 16384, v{t2}")
    E(f"  v_and_b32 v{t4}, 3, v{t0}")
    for t in range(4):
        u = V_E
        if k1:
            E("  s_mul_i32 s40, s28, 5")
            if t == 0:
                E(f"  v_add_u32 v{u}, s40, v{t4}")
            elif t == 1:
                E("  s_add_u32 s40, s40, 10")
                E(f"  v_add_u32 v{u}, s40, v{t4}")
            elif t == 3:
                E("  s_lshl_b32 s40, s28, 2")
                E("  s_add_u32 s40, s40, 20")
                E(f"  v_add_u32 v{u}, s40, v{t4}")
            else:
                E(f"  v_mul_u32_u24 v{u}, 10, v{t4}")
                E("  s_add_u32 s40, s40, 4")
                E(f"  v_add_u32 v{u}, s40, v{u}")
                E(f"  v_add_u32 v{u+1}, 26, v{t4}")
                E(f"  v_cmp_gt_u32 vcc, 2, v{t4}")
                E("  s_nop 1")
                E(f"  v_cndmask_b32 v{u}, v{u+1}, v{u}, vcc")
        else:
            E("  s_lshl_b32 s40, s28, 4")
            E(f"  s_add_u32 s40, s40, {4*t}")
            E(f"  v_add_u32 v{u}, s40, v{t4}")
        E(f"  v_lshrrev_b32 v{u+1}, 2, v{u}")
        E(f"  v_xor_b32 v{u+1}, v{u+1}, v{t3}")
        E(f"  v_lshl_add_u32 v{u+1}, v{u+1}, 5, v{t2}")
        E(f"  v_and_b32 v{u}, 3, v{u}")
        E(f"  v_lshl_add_u32 v{V_RB+t}, v{u}, 3, v{u+1}")
    for i in range(64):
        E(f"  v_mov_b32 v{V_ACC+i}, 0")
    E(f"  s_mov_b32 s52, {SLOT}")
    E(f"  v_lshl_or_b32 v{t3}, s26, 6, v0")
    if k1 and os.environ.get("CODEPF"):
        E("  s_lshr_b32 s40, s2, 3")
        E("  s_cmp_lg_u32 s40, 3")
        E("  s_cbranch_scc1 L1_nocpf")
        E("  s_getpc_b64 s[60:61]")
        E("L1_pc:")
        E("  s_add_u32 s60, s60, k2_attn_kernel-L1_pc")
        E("  s_addc_u32 s61, s61, 0")
        E(f"  v_lshlrev_b32 v{t4}, 7, v{t3}")
        E(f"  v_cmp_gt_u32 vcc, (Lcode_end-k2_attn_kernel), v{t4}")
        E("  s_and_saveexec_b64 s[62:63], vcc")
        E("  s_cbranch_execz L1_nocpf2")
        E(f"  global_load_dword v14, v{t4}, s[60:61]")
        E("L1_nocpf2:")
        E("  s_mov_b64 exec, -1")
        E("L1_nocpf:")
    if k1 and os.environ.get("PF1"):
        a, b, c = V_X, V_X + 1, V_X + 2
        PFR = [165, 166, 167, 15]
        E("  s_movk_i32 s41, 6554")
        E(f"  v_mul_u32_u24 v{a}, s41, v{t3}")
        E(f"  v_lshrrev_b32 v{a}, 16, v{a}")
        E(f"  v_mul_u32_u24 v{b}, 10, v{a}")
        E(f"  v_sub_u32 v{b}, v{t3}, v{b}")
        E("  s_movk_i32 s41, 10923")
        E("  s_and_b32 s40, s25, 7")
        E("  s_lshl_b32 s40, s40, 4")
        E("  s_lshl_b32 s42, s24, 7")
        E("  s_add_u32 s40, s40, s42")
        E(f"  v_add_u32 v{a}, s40, v{a}")
        E(f"  v_mul_u32_u24 v{a}, 1280, v{a}")
        E(f"  v_lshl_add_u32 v{a}, v{b}, 7, v{a}")
        E(f"  v_cmp_gt_u32 vcc, 160, v{t3}")
        E(f"  v_cndmask_b32 v164, -1, v{a}, vcc")
        E("  s_and_b32 s40, s24, 3")
        E("  s_mul_i32 s40, s40, 160")
        E("  s_mul_i32 s42, s25, 80")
        for r in range(4):
            E(f"  v_add_u32 v{c}, {256*r}, v{t3}")
            E(f"  v_mul_u32_u24 v{a}, s41, v{c}")
            E(f"  v_lshrrev_b32 v{a}, 16, v{a}")
            E(f"  v_mul_u32_u24 v{b}, 6, v{a}")
            E(f"  v_sub_u32 v{b}, v{c}, v{b}")
            E(f"  v_add_u32 v{a}, s40, v{a}")
            E(f"  v_mul_u32_u24 v{a}, 3840, v{a}")
            E(f"  v_add_u32 v{a}, s42, v{a}")
            E(f"  v_lshrrev_b32 v{V_X+3}, 1, v{b}")
            E(f"  v_add_u32 v{V_X+3}, 1, v{V_X+3}")
            E(f"  v_cmp_eq_u32 vcc, 3, v{V_X+3}")
            E(f"  v_cndmask_b32 v{V_X+3}, v{V_X+3}, 0, vcc")
            E(f"  v_mul_u32_u24 v{V_X+3}, 1280, v{V_X+3}")
            E(f"  v_add_u32 v{a}, v{a}, v{V_X+3}")
            E(f"  v_and_b32 v{b}, 1, v{b}")
            E(f"  v_mul_u32_u24 v{b}, 76, v{b}")
            E(f"  v_add_u32 v{a}, v{a}, v{b}")
            E(f"  v_cmp_gt_u32 vcc, 960, v{c}")
            E(f"  v_cndmask_b32 v{PFR[r]}, -1, v{a}, vcc")
    if k1:
        for i in range(4):
            E(f"  v_mov_b32 v{V_E+i}, 0")
        E(f"  v_lshlrev_b32 v{t4}, 4, v{t3}")
        E(f"  v_add_u32 v{t2}, {A_KV}, v{t4}")
        E(f"  ds_write_b128 v{t2}, {vr(V_E,4)}")
        E("  s_cmp_ge_u32 s2, 16")
        E(f"  s_cbranch_scc1 {L}_nozero")
        E("  s_mul_i32 s40, s2, 3360")
        E(f"  s_add_u32 s40, s40, {KV_OFF}")
        E(f"  v_cmp_gt_u32 vcc, 210, v{t3}")
        E("  s_and_saveexec_b64 s[46:47], vcc")
        E(f"  buffer_store_dwordx4 {vr(V_E,4)}, v{t4}, s[16:19], s40 offen sc0 sc1")
        E("  s_mov_b64 exec, s[46:47]")
        E("  s_waitcnt vmcnt(0)")
        E("  s_lshl_b32 s40, s2, 2")
        E(f"  v_mov_b32 v{t2}, s40")
        E(f"  v_mov_b32 v{t4}, 1")
        E("  s_mov_b64 exec, 1")
        E(f"  buffer_atomic_add v{t4}, v{t2}, s[20:23], 0 offen sc1")
        E("  s_mov_b64 exec, -1")
        E(f"{L}_nozero:")
    else:
        E("  s_cmp_ge_u32 s26, 2")
        E(f"  s_cbranch_scc1 {L}_nors")
        E("  s_lshl_b32 s40, s24, 13")
        E(f"  s_add_u32 s40, s40, {RS_OFF}")
        E(f"  v_lshlrev_b32 v{t4}, 6, v{t3}")
        for i in range(4):
            E(f"  buffer_load_dwordx4 {vr(V_X+4*i,4)}, v{t4}, s[16:19], s40 offen offset:{16*i}")
        E("  s_waitcnt vmcnt(0)")
        for i in range(1, 8):
            E(f"  v_add_f32 v{V_X}, v{V_X}, v{V_X+2*i}")
            E(f"  v_add_f32 v{V_X+1}, v{V_X+1}, v{V_X+2*i+1}")
        fin_stats(V_X, V_X + 1, t3, t4)
        E(f"  s_branch {L}_nors2")
        E(f"{L}_nors:")
        E("  s_lshl_b32 s40, s25, 13")
        E(f"  s_add_u32 s40, s40, {CSP_OFF-512}")
        E(f"  v_lshlrev_b32 v{t4}, 2, v{t3}")
        for i in range(16):
            E(f"  buffer_load_dword v{V_X+i}, v{t4}, s[16:19], s40 offen offset:{512*i if 512*i < 4096 else 0}" if i < 8 else f"  buffer_load_dword v{V_X+i}, v{t4}, s[16:19], s41 offen offset:{512*(i-8)}")
            if i == 0: E("  s_add_u32 s41, s40, 4096")
        E("  s_waitcnt vmcnt(0)")
        for i in range(1, 16):
            E(f"  v_add_f32 v{V_X}, v{V_X}, v{V_X+i}")
        E(f"  v_add_u32 v{t4}, {A_CS-512}, v{t4}")
        E(f"  ds_write_b32 v{t4}, v{V_X}")
        E(f"{L}_nors2:")
    E("  s_waitcnt lgkmcnt(0)")
    stamp(which)
    PFE = os.environ.get("PFE", "early") if os.environ.get("PF1") else "none"
    def pf_issue():
        E("  buffer_load_dword v164, v164, s[8:11], 0 offen")
        for r in (165, 166, 167, 15):
            E(f"  buffer_load_dword v{r}, v{r}, s[12:15], 0 offen")
    if k1 and PFE == "early": pf_issue()
    E("  s_barrier")
    if k1 and PFE == "late": pf_issue()
    stamp(which)
    def rd(base, kk):
        r = []
        for mt in range(4):
            r.append(f"  ds_read_b128 {vr(base+mt*4,4)}, v{V_RA+kk} offset:{mt*2048}")
        for t in range(4):
            for h in range(2):
                r.append(f"  ds_read_b64_tr_b16 {vr(base+16+t*4+h*2,2)}, v{V_RB+t} offset:{kk*8192+h*1024}")
        return r
    def mf(base):
        seq = []
        for mt in range(4):
            for t in range(4):
                a, b = vr(base + mt * 4, 4), vr(base + 16 + t * 4, 4)
                if swapped[t]: a, b = b, a
                seq.append(f"  v_mfma_f32_16x16x32_bf16 {vr(acc(mt,t),4)}, {a}, {b}, {vr(acc(mt,t),4)}")
        return seq
    for r in rd(V_X, 0): E(r)
    E("  s_mov_b32 s29, 0")
    E("  s_mov_b32 s30, 0")
    ST = V_E
    if k1:
        for i in range(16): E(f"  v_mov_b32 v{ST+i}, 0")
        for i in range(4): E(f"  v_mov_b32 v{ST+16+i}, 0x3f803f80")
        E(f"  v_and_b32 v{t0}, 15, v0")
        E(f"  v_cmp_lt_u32 s[48:49], 7, v{t0}")
        E("  s_cmp_eq_u32 s26, 1")
        E(f"  s_cbranch_scc1 {L}_loop1")
        E("  s_cmp_eq_u32 s26, 2")
        E(f"  s_cbranch_scc1 {L}_loop2")
        E("  s_cmp_eq_u32 s26, 3")
        E(f"  s_cbranch_scc1 {L}_loop3")
    def mfs(base, WM, WN):
        seq = mf(base)
        if not k1: return seq
        pre = []
        if WN == 1:
            pre = [f"  v_cndmask_b32 v{base+16+8+r}, v{base+16+8+r}, v{ST+16}, s[48:49]" for r in range(4)]
        ex = []
        for q in range(2):
            mt = 2 * WN + q
            ex.append(f"  v_mfma_f32_16x16x32_bf16 {vr(ST+4*q,4)}, {vr(base+4*mt,4)}, {vr(base+4*mt,4)}, {vr(ST+4*q,4)}")
            t = 2 * WM + q
            ex.append(None if False else (t, q))
        out_ = pre + seq[:8]
        for q in range(2):
            mt = 2 * WN + q
            out_.append(f"  v_mfma_f32_16x16x32_bf16 {vr(ST+4*q,4)}, {vr(base+4*mt,4)}, {vr(base+4*mt,4)}, {vr(ST+4*q,4)}")
        out_ += seq[8:]
        for q in range(2):
            t = 2 * WM + q
            out_.append(f"  v_mfma_f32_16x16x32_bf16 {vr(ST+8+4*q,4)}, {vr(ST+16,4)}, {vr(base+16+4*t,4)}, {vr(ST+8+4*q,4)}")
        return out_
    for w in range(4 if k1 else 1):
        WM, WN = w >> 1, w & 1
        E(f"{L}_loop{w}:")
        E(f"  s_add_u32 s30, s30, {SLOT}")
        E(f"  s_cmp_eq_u32 s30, {NS*SLOT}")
        E(f"  s_cselect_b32 s40, {-(NS-1)*SLOT}, s52")
        E("  s_cselect_b32 s30, 0, s30")
        E("  s_waitcnt lgkmcnt(0)")
        adds = [f"  v_add_u32 v{r}, s40, v{r}" for r in (V_RA, V_RA + 1, V_RB, V_RB + 1, V_RB + 2, V_RB + 3)]
        interleave(mfs(V_X, WM, WN), rd(V_Y, 1) + adds)
        E(f"  s_cmp_eq_u32 s29, {NST-1}")
        E(f"  s_cbranch_scc1 {L}_last{w}")
        E("  s_add_u32 s29, s29, 1")
        E("  s_waitcnt lgkmcnt(0)")
        E("  s_barrier")
        interleave(mfs(V_Y, WM, WN), rd(V_X, 0))
        E(f"  s_branch {L}_loop{w}")
        E(f"{L}_last{w}:")
        E("  s_waitcnt lgkmcnt(0)")
        for m in mfs(V_Y, WM, WN): E(m)
        if k1:
            E(f"  v_lshrrev_b32 v{t1}, 4, v0")
            E(f"  v_lshrrev_b32 v{t2}, 2, v{t0}")
            E(f"  v_cmp_eq_u32 s[50:51], v{t1}, v{t2}")
            E(f"  v_and_b32 v{t2}, 3, v{t0}")
            E("  s_nop 7")
            for q in range(2):
                E(f"  v_mov_b32 v{t3}, v{ST+4*q}")
                for r in range(1, 4):
                    E(f"  v_cmp_eq_u32 vcc, {r}, v{t2}")
                    E("  s_nop 1")
                    E(f"  v_cndmask_b32 v{t3}, v{t3}, v{ST+4*q+r}, vcc")
                E(f"  v_lshlrev_b32 v{t4}, 2, v{t0}")
                E(f"  v_add_u32 v{t4}, {A_SQ + (64*WM + 16*(2*WN+q))*4}, v{t4}")
                E("  s_mov_b64 exec, s[50:51]")
                E(f"  ds_write_b32 v{t4}, v{t3}")
                E("  s_mov_b64 exec, -1")
            for q in range(2):
                t = 2 * WM + q
                if t == 0: E(f"  v_lshlrev_b32 v{t4}, 2, v{t0}"); off = (20*WN)*4
                elif t == 1: E(f"  v_lshlrev_b32 v{t4}, 2, v{t0}"); off = (40+20*WN)*4
                elif t == 3: E(f"  v_lshlrev_b32 v{t4}, 2, v{t0}"); off = (80+16*WN)*4
                else:
                    E(f"  v_lshlrev_b32 v{t4}, 2, v{t0}")
                    E(f"  v_add_u32 v{t3}, {(20*WN+16)*4}, v{t4}")
                    E(f"  v_add_u32 v{t1}, {(52+20*WN)*4}, v{t4}")
                    E(f"  v_cmp_gt_u32 vcc, 4, v{t0}")
                    E("  s_nop 1")
                    E(f"  v_cndmask_b32 v{t3}, v{t1}, v{t3}, vcc")
                    E(f"  v_add_u32 v{t1}, {104*4}, v{t4}")
                    E(f"  v_cmp_gt_u32 vcc, 8, v{t0}")
                    E("  s_nop 1")
                    E(f"  v_cndmask_b32 v{t4}, v{t1}, v{t3}, vcc")
                    off = 0
                E(f"  v_add_u32 v{t4}, {A_CS+off}, v{t4}")
                if t == 2 and WN == 1:
                    E("  s_mov_b64 exec, 0xff")
                else:
                    E("  s_mov_b64 exec, 0xffff")
                E(f"  ds_write_b32 v{t4}, v{ST+8+4*q}")
                E("  s_mov_b64 exec, -1")
            if WN == 1:
                E(f"  v_lshrrev_b32 v{t1}, 4, v0")
                E(f"  v_lshlrev_b32 v{t4}, 4, v{t1}")
                E(f"  v_add_u32 v{t4}, {A_SUM + 64*WM*4}, v{t4}")
                E("  s_mov_b32 s50, 0x01000100")
                E("  s_mov_b32 s51, 0x01000100")
                E("  s_mov_b64 exec, s[50:51]")
                for mt in range(4):
                    E(f"  ds_write_b128 v{t4}, {vr(acc(mt,2),4)} offset:{64*mt}")
                E("  s_mov_b64 exec, -1")
            E(f"  s_branch {L}_fins")
    if not k1: stamp(which)
    if k1:
        E(f"{L}_fins:")
        stamp(which)
        E("  s_waitcnt lgkmcnt(0)")
        E("  s_barrier")
        E("  s_cmp_ge_u32 s26, 2")
        E(f"  s_cbranch_scc1 {L}_fb")
        E(f"  v_lshl_or_b32 v{t3}, s26, 6, v0")
        E(f"  v_lshlrev_b32 v{t4}, 2, v{t3}")
        E(f"  v_add_u32 v{t4}, {A_SUM}, v{t4}")
        E(f"  ds_read_b32 v{V_X}, v{t4}")
        E(f"  ds_read_b32 v{V_X+1}, v{t4} offset:512")
        E("  s_waitcnt lgkmcnt(0)")
        fin_stats(V_X, V_X + 1, t3, t4)
        E("  s_waitcnt lgkmcnt(0)")
        E(f"{L}_fb:")
        E("  s_barrier")
    stamp(which)
    E("  s_mov_b32 s45, 0x3fb8aa3b")
    pads_on()
    if k1: k1_epilogue()
    else: k3_epilogue()
    pads_off()
    stamp(which)
    stamp_flush(which, 36)
    rt_end(which)
    E(f"  s_branch {L}_done")
    E(f"{L}_loader:")
    E("  s_sub_u32 s27, s26, 4")
    LA, LB = 2, 4
    E(f"  v_lshrrev_b32 v{t0}, 3, v0")
    E(f"  v_and_b32 v{t1}, 7, v0")
    E(f"  v_xor_b32 v{t1}, v{t1}, v{t0}")
    E(f"  v_lshlrev_b32 v{t1}, 4, v{t1}")
    E("  s_lshl_b32 s40, s24, 7")
    E("  s_lshl_b32 s41, s27, 4")
    E("  s_add_u32 s40, s40, s41")
    E(f"  v_add_u32 v{t0}, s40, v{t0}")
    E("  s_movk_i32 s41, 1280")
    E(f"  v_mad_u32_u24 v{LA}, v{t0}, s41, v{t1}")
    E(f"  v_add_u32 v{LA+1}, {8*1280-1024}, v{LA}")
    E(f"  v_lshrrev_b32 v{t0}, 4, v0")
    E(f"  v_and_b32 v{t1}, 15, v0")
    E("  s_lshl_b32 s40, s27, 3")
    E(f"  v_add_u32 v{t4}, s40, v{t0}")
    E("  s_and_b32 s40, s27, 1")
    E("  s_lshl_b32 s40, s40, 2")
    E(f"  v_add_u32 v{t0}, s40, v{t0}")
    E(f"  v_lshrrev_b32 v{t2}, 1, v{t1}")
    E(f"  v_xor_b32 v{t2}, v{t2}, v{t0}")
    E(f"  v_lshlrev_b32 v{t2}, 1, v{t2}")
    E(f"  v_and_b32 v{t3}, 1, v{t1}")
    E(f"  v_or_b32 v{t2}, v{t2}, v{t3}")
    if k1:
        E(f"  v_min_u32 v{t2}, 14, v{t2}")
        E(f"  v_lshlrev_b32 v{t3}, 4, v{t2}")
        E(f"  v_add_u32 v20, 1280, v{t3}")
        E(f"  v_add_u32 v21, {2560-80}, v{t3}")
        E(f"  v_subrev_u32 v22, 160, v{t3}")
        E(f"  v_cmp_gt_u32 vcc, 5, v{t2}")
        E("  s_nop 1")
        E("  v_cndmask_b32 v21, v21, v20, vcc")
        E(f"  v_cmp_gt_u32 vcc, 10, v{t2}")
        E("  s_nop 1")
        E(f"  v_cndmask_b32 v{t3}, v22, v21, vcc")
        E("  s_mul_i32 s42, s25, 80")
    else:
        E(f"  v_lshlrev_b32 v{t3}, 4, v{t2}")
        E("  s_mul_i32 s42, s25, 224")
    if k1:
        E(f"  v_add_u32 v{t3}, s42, v{t3}")
        E(f"  s_movk_i32 s41, {ldb}")
        E(f"  v_mad_u32_u24 v{LB}, v{t4}, s41, v{t3}")
        E(f"  v_add_u32 v{LB+1}, {4*ldb-1024}, v{LB}")
    else:
        E("  s_mul_i32 s42, s25, 163840")
        E("  s_lshl_b32 s41, s27, 11")
        E("  s_add_u32 s42, s42, s41")
        E(f"  v_lshlrev_b32 v{LB}, 4, v0")
        E(f"  v_add_u32 v{LB}, s42, v{LB}")
        E(f"  v_mov_b32 v{LB+1}, v{LB}")
    E("  s_lshl_b32 s34, s27, 11")
    E("  s_mov_b32 s31, 0")
    E("  s_mov_b32 s32, 0")
    E("  s_mov_b32 s33, 0")
    ROT = k1 and not os.environ.get("NOROT")
    if ROT:
        E("  s_mul_i32 s40, s24, 3")
        E("  s_add_u32 s40, s40, s25")
        E("  s_mul_i32 s41, s40, 205")
        E("  s_lshr_b32 s41, s41, 11")
        E("  s_mul_i32 s41, s41, 10")
        E("  s_sub_u32 s40, s40, s41")
        E("  s_lshl_b32 s32, s40, 7")
        E(f"  s_mul_i32 s33, s40, {64*ldb}")
    def dma_stage():
        E("  s_add_u32 s35, s31, s34")
        E("  s_mov_b32 m0, s35")
        E("  s_add_u32 s35, s35, 16384")
        for j in range(2):
            E(f"  buffer_load_dwordx4 v{LA+j}, s[8:11], s32 offen offset:{j*1024} lds")
        E("  s_mov_b32 m0, s35")
        E("  s_add_u32 s32, s32, 128")
        for j in range(2):
            E(f"  buffer_load_dwordx4 v{LB+j}, s[12:15], s33 offen offset:{j*1024} lds")
        E(f"  s_add_u32 s33, s33, {64*ldb if k1 else 16384}")
        if ROT:
            E("  s_cmp_eq_u32 s32, 1280")
            E("  s_cselect_b32 s32, 0, s32")
            E("  s_cselect_b32 s33, 0, s33")
        E(f"  s_add_u32 s31, s31, {SLOT}")
        E(f"  s_cmp_eq_u32 s31, {NS*SLOT}")
        E("  s_cselect_b32 s31, 0, s31")
    for s in range(NS):
        dma_stage()
    pf_enter(L, 8, "s27")
    E(f"  s_waitcnt vmcnt({4*(NS-1)})")
    E("  s_barrier")
    NX = 0
    for sv in range(NST - 1):
        issued = min(NST - 1, sv + NS - 1)
        extra = NX if sv > NST - NS else 0
        E(f"  s_waitcnt vmcnt({4*(issued-(sv+1)) + NX})")
        E("  s_barrier")
        if sv + NS < NST:
            dma_stage()
        if k1 and sv + NS == NST - 1:
            NX = relayout_loads()
    if k1:
        relayout_finish()
    E(f"{L}_done:")
    E("  s_endpgm")

RL_SA, RL_DA, RL_DT = 16, 24, 32
def relayout_loads():
    E("  s_load_dwordx2 s[64:65], s[0:1], 32")
    E("  s_load_dwordx2 s[66:67], s[0:1], 40")
    E("  s_load_dwordx2 s[68:69], s[0:1], 16")
    SA_, DA_, DT = RL_SA, RL_DA, RL_DT
    a, b, c, d, tid = 60, 61, 62, 63, 59
    E(f"  v_lshl_or_b32 v{tid}, s27, 6, v0")
    for i in range(20): E(f"  v_mov_b32 v{DT+i}, 0")
    E("  s_lshr_b32 s40, s2, 4")
    E("  s_and_b32 s41, s2, 15")
    E("  s_mul_i32 s41, s41, 40")
    E("  s_mul_i32 s42, s40, 224")
    E("  s_movk_i32 s43, 3456")
    for r in range(2):
        E(f"  v_add_u32 v{a}, {512*r}, v{tid}")
        E(f"  v_lshrrev_b32 v{b}, 4, v{a}")
        E(f"  v_add_u32 v{b}, s41, v{b}")
        E(f"  v_and_b32 v{c}, 15, v{a}")
        E(f"  v_bfe_u32 v{d}, v{b}, 3, 1")
        E(f"  v_lshlrev_b32 v{d}, 2, v{d}")
        E(f"  v_and_or_b32 v{d}, v{b}, 3, v{d}")
        E(f"  v_lshrrev_b32 v{DA_+r}, 1, v{c}")
        E(f"  v_xor_b32 v{d}, v{d}, v{DA_+r}")
        E(f"  v_and_b32 v{DA_+r}, 1, v{c}")
        E(f"  v_lshl_or_b32 v{d}, v{d}, 1, v{DA_+r}")
        E(f"  v_lshlrev_b32 v{DA_+r}, 8, v{b}")
        E(f"  v_lshl_add_u32 v{DA_+r}, v{d}, 4, v{DA_+r}")
        E(f"  v_lshl_add_u32 v{d}, v{c}, 4, s42")
        E(f"  v_mad_u32_u24 v{SA_+r}, v{b}, s43, v{d}")
        E(f"  v_cmp_gt_u32 s[{80+2*r}:{81+2*r}], 14, v{c}")
        E(f"  v_cmp_gt_u32 vcc, s43, v{d}")
        E(f"  s_and_b64 s[{80+2*r}:{81+2*r}], s[{80+2*r}:{81+2*r}], vcc")
        E(f"  v_cmp_gt_u32 vcc, 640, v{a}")
        E(f"  s_mov_b64 s[{70+2*r}:{71+2*r}], vcc")
        E(f"  s_and_b64 s[{80+2*r}:{81+2*r}], s[{80+2*r}:{81+2*r}], vcc")
    E("  s_lshr_b32 s40, s2, 5")
    E("  s_and_b32 s41, s2, 31")
    E("  s_movk_i32 s43, 6554")
    E("  s_mul_i32 s42, s40, 160")
    for r in range(3):
        wo = r == 2
        q = 2 + r
        E(f"  v_add_u32 v{a}, {0 if wo else 512*r}, v{tid}")
        E(f"  v_mul_u32_u24 v{b}, s43, v{a}")
        E(f"  v_lshrrev_b32 v{b}, 16, v{b}")
        E(f"  v_mul_u32_u24 v{c}, 10, v{b}")
        E(f"  v_sub_u32 v{c}, v{a}, v{c}")
        E(f"  s_mul_i32 s47, s41, {20 if wo else 54}")
        E(f"  v_add_u32 v{b}, s47, v{b}")
        E(f"  v_lshlrev_b32 v{c}, 4, v{c}")
        E(f"  v_mul_u32_u24 v{SA_+q}, 1280, v{b}")
        E(f"  v_add_u32 v{SA_+q}, v{SA_+q}, v{c}")
        E(f"  v_add_u32 v{SA_+q}, s42, v{SA_+q}")
        if wo:
            E(f"  v_mul_u32_u24 v{DA_+q}, 160, v{b}")
        else:
            E(f"  v_and_b32 v{d}, 0x13, v{b}")
            E(f"  v_bfe_u32 v{DA_+q}, v{b}, 2, 1")
            E(f"  v_lshl_or_b32 v{d}, v{DA_+q}, 3, v{d}")
            E(f"  v_bfe_u32 v{DA_+q}, v{b}, 3, 1")
            E(f"  v_lshl_or_b32 v{d}, v{DA_+q}, 2, v{d}")
            E(f"  v_mul_u32_u24 v{d}, 160, v{d}")
            E(f"  v_lshrrev_b32 v{DA_+q}, 5, v{b}")
            E(f"  v_mul_u32_u24 v{DA_+q}, 5120, v{DA_+q}")
            E(f"  v_add_u32 v{DA_+q}, v{DA_+q}, v{d}")
        E(f"  v_add_u32 v{DA_+q}, v{DA_+q}, v{c}")
        E(f"  v_cmp_gt_u32 vcc, {200 if wo else 540}, v{a}")
        E(f"  s_mov_b64 s[{70+2*q}:{71+2*q}], vcc")
    E("  s_waitcnt lgkmcnt(0)")
    for (dd, lo, nb) in [(84, 64, 640 * 3456), (88, 66, 1728 * 1280), (92, 68, 640 * 1280)]:
        srd(dd, lo, nb)
    for r in range(5):
        q = 84 if r < 2 else (88 if r < 4 else 92)
        mk = 80 + 2 * r if r < 2 else 70 + 2 * r
        E(f"  v_cndmask_b32 v{SA_+r}, 0, v{SA_+r}, s[{mk}:{mk+1}]")
        E(f"  buffer_load_dwordx4 {vr(DT+4*r,4)}, v{SA_+r}, s[{q}:{q+3}], 0 offen")
    return 5

def relayout_finish():
    SA_, DA_, DT = RL_SA, RL_DA, RL_DT
    srd(16, 38, WS_BYTES)
    E("  s_lshr_b32 s40, s2, 5")
    E("  s_lshr_b32 s41, s2, 4")
    E("  s_mul_i32 s41, s41, 163840")
    E(f"  s_add_u32 s41, s41, {W1T_OFF}")
    E("  s_mul_i32 s42, s40, 276480")
    E(f"  s_add_u32 s42, s42, {W2T_OFF}")
    E("  s_mul_i32 s43, s40, 102400")
    E(f"  s_add_u32 s43, s43, {WOT_OFF}")
    E("  s_waitcnt vmcnt(0)")
    for r in range(5):
        so = "s41" if r < 2 else ("s42" if r < 4 else "s43")
        E(f"  s_mov_b64 exec, s[{70+2*r}:{71+2*r}]")
        E(f"  s_cbranch_execz LRS{r}")
        E(f"  buffer_store_dwordx4 {vr(DT+4*r,4)}, v{DA_+r}, s[16:19], {so} offen{os.environ.get('RLW', ' sc0 sc1')}")
        E(f"LRS{r}:")
    E("  s_mov_b64 exec, -1")
    for i in range(4):
        E(f"  v_cndmask_b32 v{DT+4+i}, 0, v{DT+4+i}, s[72:73]")
    C = 64
    for i in range(4):
        for r in range(2):
            x = DT + 4 * r + i
            E(f"  v_lshlrev_b32 v60, 16, v{x}")
            E(f"  v_and_b32 v61, 0xffff0000, v{x}")
            if r == 0:
                E(f"  v_mov_b32 v{C+2*i}, v60")
                E(f"  v_mov_b32 v{C+2*i+1}, v61")
            else:
                E(f"  v_pk_add_f32 {vr(C+2*i,2)}, {vr(C+2*i,2)}, v[60:61]")
    for c in range(8):
        r = C + c
        E(f"  v_mov_b32 v62, v{r}")
        E("  s_nop 1")
        E(f"  v_permlane32_swap_b32 v{r}, v62")
        E("  s_nop 1")
        E(f"  v_add_f32 v{r}, v{r}, v62")
        E(f"  v_mov_b32 v62, v{r}")
        E("  s_nop 1")
        E(f"  v_permlane16_swap_b32 v{r}, v62")
        E("  s_nop 1")
        E(f"  v_add_f32 v{r}, v{r}, v62")
    E("  v_and_b32 v60, 15, v0")
    E("  v_lshlrev_b32 v60, 5, v60")
    E("  s_lshl_b32 s40, s27, 9")
    E(f"  s_add_u32 s40, s40, {A_CP}")
    E("  v_add_u32 v60, s40, v60")
    E(f"  ds_write_b128 v60, {vr(C,4)}")
    E(f"  ds_write_b128 v60, {vr(C+4,4)} offset:16")
    E("  s_waitcnt lgkmcnt(0)")
    E("  s_barrier")
    E("  s_cmp_ge_u32 s27, 2")
    E("  s_cbranch_scc1 L1_rf2")
    E("  v_lshl_or_b32 v60, s27, 6, v0")
    E("  v_lshlrev_b32 v60, 2, v60")
    E(f"  v_add_u32 v61, {A_CP}, v60")
    for q in range(8):
        E(f"  ds_read_b32 v{40+q}, v61 offset:{512*q}")
    E("  s_waitcnt lgkmcnt(0)")
    for q in range(1, 8):
        E(f"  v_add_f32 v40, v40, v{40+q}")
    E("  s_lshl_b32 s40, s2, 9")
    E(f"  s_add_u32 s40, s40, {CSP_OFF}")
    E("  buffer_store_dword v40, v60, s[16:19], s40 offen")
    E("L1_rf2:")
    E("  s_barrier")

def fin_stats(vs, vq, vrow, tmp):
    E("  s_mov_b32 s40, 0x3acccccd")
    E(f"  v_mul_f32 v{vs}, s40, v{vs}")
    E(f"  v_mul_f32 v{vq}, s40, v{vq}")
    E(f"  v_fma_f32 v{vq}, -v{vs}, v{vs}, v{vq}")
    E(f"  v_max_f32 v{vq}, 0, v{vq}")
    E(f"  v_add_f32 v{vq}, 0x3727c5ac, v{vq}")
    E(f"  v_rsq_f32 v{vq}, v{vq}")
    E(f"  v_lshlrev_b32 v{tmp}, 2, v{vrow}")
    E(f"  v_add_u32 v{tmp}, {A_MEAN}, v{tmp}")
    E(f"  ds_write_b32 v{tmp}, v{vs}")
    E(f"  ds_write_b32 v{tmp}, v{vq} offset:512")

def k1_epilogue():
    t0, t1, t2, t3, t4 = V_T, V_T + 1, V_T + 2, V_T + 3, V_T + 4
    CSN, CSV3, MN, RN, MS, RS = 2, 16, 20, 36, 52, 53
    pk = [64, 72, 144, 152]
    TM = 160
    E("  s_waitcnt vmcnt(0)")
    E(f"  v_and_b32 v{t0}, 15, v0")
    E(f"  v_lshrrev_b32 v{t1}, 4, v0")
    E("  s_lshl_b32 s40, s27, 8")
    E(f"  s_add_u32 s40, s40, {A_MEAN}")
    E(f"  v_lshl_add_u32 v{t2}, v{t0}, 2, s40")
    E(f"  v_lshl_add_u32 v{t3}, v{t1}, 4, s40")
    for mt in range(4):
        E(f"  ds_read_b128 {vr(MN+4*mt,4)}, v{t3} offset:{64*mt}")
        E(f"  ds_read_b128 {vr(RN+4*mt,4)}, v{t3} offset:{512+64*mt}")
        E(f"  ds_read_b32 v{MS+2*mt}, v{t2} offset:{64*mt}")
        E(f"  ds_read_b32 v{RS+2*mt}, v{t2} offset:{512+64*mt}")
    E("  s_mul_i32 s41, s28, 80")
    E(f"  s_add_u32 s41, s41, {A_CS}")
    E(f"  v_lshl_add_u32 v{t2}, v{t0}, 2, s41")
    E(f"  ds_read_b32 v{CSN}, v{t2}")
    E(f"  ds_read_b32 v{CSN+2}, v{t2} offset:160")
    E(f"  v_add_u32 v{t3}, 64, v{t2}")
    E(f"  v_add_u32 v{t4}, {52*4}, v{t2}")
    E(f"  v_cmp_gt_u32 vcc, 4, v{t0}")
    E("  s_nop 1")
    E(f"  v_cndmask_b32 v{t3}, v{t4}, v{t3}, vcc")
    E(f"  v_lshlrev_b32 v{t4}, 2, v{t0}")
    E(f"  v_add_u32 v{t4}, {A_CS+104*4}, v{t4}")
    E(f"  v_cmp_gt_u32 vcc, 8, v{t0}")
    E("  s_nop 1")
    E(f"  v_cndmask_b32 v{t3}, v{t4}, v{t3}, vcc")
    E(f"  ds_read_b32 v{CSN+4}, v{t3}")
    E("  s_lshl_b32 s41, s28, 6")
    E(f"  s_add_u32 s41, s41, {A_CS+320}")
    E(f"  v_lshl_add_u32 v{t3}, v{t1}, 4, s41")
    E(f"  ds_read_b128 {vr(CSV3,4)}, v{t3}")
    E("  s_mov_b32 s46, 0x358637bd")
    E(f"  v_and_b32 v{t2}, 12, v{t0}")
    E(f"  v_cmp_eq_u32 s[48:49], 4, v{t2}")
    E("  s_waitcnt lgkmcnt(0)")
    E("  s_mov_b32 s54, s45")
    E("  s_mov_b32 s55, s45")
    E("  s_mov_b32 s56, s46")
    E("  s_mov_b32 s57, s46")
    def phi4(a):
        for r in range(4): E(f"  v_min_f32 v{TM+r}, 0, v{a+r}")
        for p in range(2): E(f"  v_pk_mul_f32 {vr(TM+2*p,2)}, {vr(TM+2*p,2)}, s[54:55]")
        for r in range(4): E(f"  v_exp_f32 v{TM+r}, v{TM+r}")
        for r in range(4): E(f"  v_max_f32 v{a+r}, 0, v{a+r}")
        for p in range(2): E(f"  v_pk_add_f32 {vr(TM+2*p,2)}, {vr(TM+2*p,2)}, s[56:57]")
        for p in range(2): E(f"  v_pk_add_f32 {vr(a+2*p,2)}, {vr(a+2*p,2)}, {vr(TM+2*p,2)}")
    for mt in range(4):
        for t in range(3):
            a = acc(mt, t)
            for p in range(2):
                E(f"  v_pk_fma_f32 {vr(a+2*p,2)}, {vr(MN+4*mt+2*p,2)}, {vr(CSN+2*t,2)}, {vr(a+2*p,2)} op_sel_hi:[1,0,1] neg_lo:[1,0,0] neg_hi:[1,0,0]")
            for p in range(2):
                E(f"  v_pk_mul_f32 {vr(a+2*p,2)}, {vr(a+2*p,2)}, {vr(RN+4*mt+2*p,2)}")
        a = acc(mt, 3)
        for p in range(2):
            E(f"  v_pk_fma_f32 {vr(a+2*p,2)}, {vr(CSV3+2*p,2)}, {vr(MS+2*mt,2)}, {vr(a+2*p,2)} op_sel_hi:[1,0,1] neg_lo:[0,1,0] neg_hi:[0,1,0]")
        for p in range(2):
            E(f"  v_pk_mul_f32 {vr(a+2*p,2)}, {vr(a+2*p,2)}, {vr(MS+2*mt,2)} op_sel:[0,1] op_sel_hi:[1,1]")
        phi4(acc(mt, 0)); phi4(acc(mt, 3))
        a = acc(mt, 2)
        for r in range(4): E(f"  v_mov_b32 v{TM+4+r}, v{a+r}")
        phi4(a)
        for r in range(4): E(f"  v_cndmask_b32 v{a+r}, v{a+r}, v{TM+4+r}, s[48:49]")
        for t in range(4):
            a = acc(mt, t)
            E(f"  v_cvt_pk_bf16_f32 v{pk[t]+2*mt}, v{a}, v{a+1}")
            E(f"  v_cvt_pk_bf16_f32 v{pk[t]+2*mt+1}, v{a+2}, v{a+3}")
    E("  s_lshl_b32 s40, s24, 1")
    E("  s_add_u32 s40, s40, s27")
    E("  s_lshl_b32 s40, s40, 2")
    E("  s_lshr_b32 s41, s25, 2")
    E("  s_add_u32 s40, s40, s41")
    E("  s_mul_i32 s40, s40, 21504")
    E("  s_and_b32 s41, s25, 3")
    E("  s_mul_i32 s41, s41, 80")
    E("  s_add_u32 s41, s41, s40")
    E("  s_movk_i32 s42, 336")
    E(f"  v_mul_u32_u24 v{t2}, s42, v{t0}")
    E(f"  v_lshl_add_u32 v{t2}, v{t1}, 3, v{t2}")
    E("  s_lshl_b32 s43, s28, 5")
    E("  s_add_u32 s43, s43, s41")
    for mt in range(4):
        E(f"  s_add_u32 s47, s43, {mt*16*336+PQT_OFF}")
        E(f"  buffer_store_dwordx2 {vr(pk[3]+2*mt,2)}, v{t2}, s[16:19], s47 offen{WT('3')}")
    M = V_ACC
    ON = TM
    for i in range(4):
        E(f"  v_mov_b32 v{ON+i}, 0x3f803f80")
    E("  s_nop 1")
    for p in range(2):
        P0, V1, X2 = pk[0] + 4 * p, pk[1] + 4 * p, pk[2] + 4 * p
        for i, (a, b) in enumerate(((P0, V1), (P0, X2), (X2, V1), (X2, X2), (P0, ON), (X2, ON))):
            c = "0" if p == 0 else vr(M + 4 * i, 4)
            E(f"  v_mfma_f32_16x16x32_bf16 {vr(M+4*i,4)}, {vr(a,4)}, {vr(b,4)}, {c}")
    E("  s_cmp_eq_u32 s28, 1")
    E("  s_cbranch_scc1 L1_noq2")
    E(f"  v_lshlrev_b32 v{t3}, 2, v{t1}")
    E(f"  v_mul_u32_u24 v{t3}, s42, v{t3}")
    E(f"  v_lshl_add_u32 v{t3}, v{t0}, 1, v{t3}")
    E(f"  v_cmp_lt_u32 vcc, 7, v{t0}")
    E("  s_and_saveexec_b64 s[50:51], vcc")
    for mt in range(4):
        E(f"  s_add_u32 s47, s41, {mt*16*336+PQT_OFF+64-16}")
        E(f"  buffer_store_short v{pk[2]+2*mt}, v{t3}, s[16:19], s47 offen")
        E(f"  buffer_store_short_d16_hi v{pk[2]+2*mt}, v{t3}, s[16:19], s47 offen offset:336")
        E(f"  buffer_store_short v{pk[2]+2*mt+1}, v{t3}, s[16:19], s47 offen offset:672")
        E(f"  buffer_store_short_d16_hi v{pk[2]+2*mt+1}, v{t3}, s[16:19], s47 offen offset:1008")
    E("  s_mov_b64 exec, s[50:51]")
    E("L1_noq2:")
    E("  s_lshl_b32 s40, s25, 2")
    E(f"  v_mov_b32 v{t3}, s40")
    E("  s_mul_i32 s40, s28, 1680")
    E(f"  s_add_u32 s40, s40, {A_KV}")
    E(f"  v_mul_u32_u24 v{t2}, 80, v{t0}")
    E(f"  v_lshl_add_u32 v{t2}, v{t1}, 4, v{t2}")
    E(f"  v_add_u32 v{t2}, s40, v{t2}")
    E("  s_lshl_b32 s41, s27, 12")
    E(f"  v_add_u32 v{t2}, s41, v{t2}")
    E("  s_nop 4")
    E(f"  ds_write_b128 v{t2}, {vr(M,4)}")
    E("  s_mov_b64 exec, s[48:49]")
    E(f"  ds_write_b128 v{t2}, {vr(M+4,4)} offset:960")
    E("  s_mov_b64 exec, 0xffff")
    E(f"  ds_write_b128 v{t2}, {vr(M+8,4)} offset:64")
    E("  s_mov_b64 exec, 0xf0")
    E(f"  ds_write_b128 v{t2}, {vr(M+12,4)} offset:{960+64}")
    E("  s_mov_b32 s50, 0x00010001")
    E("  s_mov_b32 s51, 0x00010001")
    E("  s_mov_b64 exec, s[50:51]")
    E(f"  ds_write_b128 v{t2}, {vr(M+16,4)} offset:1600")
    E("  s_mov_b64 exec, 1")
    E(f"  ds_write_b128 v{t2}, {vr(M+20,4)} offset:{1600+64}")
    stamp(1)
    E("  s_cmp_lg_u32 s26, 0")
    E("  s_cbranch_scc1 L1_nopoll")
    E("L1_poll:")
    E(f"  buffer_load_dword v{t4}, v{t3}, s[20:23], 0 offen sc0 sc1")
    E("  s_waitcnt vmcnt(0)")
    E(f"  v_readfirstlane_b32 s41, v{t4}")
    E("  s_nop 3")
    E("  s_cmp_lt_u32 s41, 4")
    E("  s_cbranch_scc1 L1_poll")
    E("L1_nopoll:")
    E("  s_mov_b64 exec, -1")
    E("  s_waitcnt lgkmcnt(0)")
    E("  s_barrier")
    stamp(1)
    E(f"  v_lshl_or_b32 v{t3}, s26, 6, v0")
    E(f"  v_lshlrev_b32 v{t3}, 2, v{t3}")
    E(f"  v_add_u32 v{t4}, {A_KV}, v{t3}")
    for j in range(4):
        E(f"  ds_read_b32 v{TM+j}, v{t4} offset:{1024*j}")
        E(f"  ds_read_b32 v{TM+4+j}, v{t4} offset:{4096+1024*j}")
    E("  s_mul_i32 s40, s25, 3360")
    E(f"  s_add_u32 s40, s40, {KV_OFF}")
    E("  s_waitcnt lgkmcnt(0)")
    for j in range(4):
        E(f"  v_add_f32 v{TM+j}, v{TM+j}, v{TM+4+j}")
    for j in range(3):
        E(f"  buffer_atomic_add_f32 v{TM+j}, v{t3}, s[16:19], s40 offen offset:{1024*j}")
    E(f"  v_cmp_gt_u32 vcc, {3360-3072}, v{t3}")
    E("  s_and_saveexec_b64 s[50:51], vcc")
    E("  s_cbranch_execz L1_fin")
    E(f"  buffer_atomic_add_f32 v{TM+3}, v{t3}, s[16:19], s40 offen offset:3072")
    E("L1_fin:")

def k3_epilogue():
    t0, t1, t2, t3, t4 = V_T, V_T + 1, V_T + 2, V_T + 3, V_T + 4
    MS, RS, CSV, PK, TM = 16, 24, 32, 48, 144
    E(f"  v_and_b32 v{t0}, 15, v0")
    E(f"  v_lshrrev_b32 v{t1}, 4, v0")
    E("  s_lshl_b32 s40, s27, 8")
    E(f"  s_add_u32 s40, s40, {A_MEAN}")
    E(f"  v_lshl_add_u32 v{t2}, v{t0}, 2, s40")
    for mt in range(4):
        E(f"  ds_read_b32 v{MS+2*mt}, v{t2} offset:{64*mt}")
        E(f"  ds_read_b32 v{RS+2*mt}, v{t2} offset:{512+64*mt}")
    E("  s_lshl_b32 s41, s28, 8")
    E(f"  s_add_u32 s41, s41, {A_CS}")
    E(f"  v_lshl_add_u32 v{t3}, v{t1}, 4, s41")
    for t in range(4):
        E(f"  ds_read_b128 {vr(CSV+4*t,4)}, v{t3} offset:{64*t}")
    E(f"  v_lshrrev_b32 v{t2}, 2, v{t0}")
    E(f"  v_sub_u32 v{t2}, 0, v{t2}")
    E(f"  v_lshrrev_b32 v{t4}, 1, v{t1}")
    E(f"  v_xor_b32 v{t2}, v{t2}, v{t4}")
    E(f"  v_and_b32 v{t2}, 3, v{t2}")
    E(f"  v_lshlrev_b32 v{t2}, 4, v{t2}")
    E(f"  v_lshl_add_u32 v{t2}, v{t0}, 6, v{t2}")
    E(f"  v_and_b32 v{t4}, 1, v{t1}")
    E("  s_lshl_b32 s40, s24, 1")
    E("  s_add_u32 s40, s40, s27")
    E("  s_mul_i32 s40, s40, 221184")
    E(f"  s_add_u32 s40, s40, {H1_OFF}")
    E("  s_mul_i32 s41, s25, 224")
    E("  s_lshl_b32 s43, s28, 7")
    E("  s_add_u32 s43, s43, s41")
    E("  s_mov_b32 s50, s45")
    E("  s_mov_b32 s51, s45")
    E("  s_waitcnt lgkmcnt(0)")
    for tp in range(2):
        for mt in range(4):
            for u in range(2):
                t = 2 * tp + u
                a = acc(mt, t)
                tm = TM + 4 * u
                for p in range(2):
                    E(f"  v_pk_fma_f32 {vr(a+2*p,2)}, {vr(CSV+4*t+2*p,2)}, {vr(MS+2*mt,2)}, {vr(a+2*p,2)} op_sel_hi:[1,0,1] neg_lo:[0,1,0] neg_hi:[0,1,0]")
                for p in range(2):
                    E(f"  v_pk_mul_f32 {vr(a+2*p,2)}, {vr(a+2*p,2)}, {vr(RS+2*mt,2)} op_sel_hi:[1,0]")
                for p in range(2):
                    E(f"  v_pk_mul_f32 {vr(tm+2*p,2)}, {vr(a+2*p,2)}, s[50:51]")
                for r in range(4): E(f"  v_exp_f32 v{tm+r}, -v{tm+r}")
                for p in range(2):
                    E(f"  v_pk_add_f32 {vr(tm+2*p,2)}, {vr(tm+2*p,2)}, 1.0 op_sel_hi:[1,0]")
                for r in range(4): E(f"  v_rcp_f32 v{tm+r}, v{tm+r}")
                E("  s_nop 0")
                for p in range(2): E(f"  v_pk_mul_f32 {vr(a+2*p,2)}, {vr(a+2*p,2)}, {vr(tm+2*p,2)}")
                d = PK + (tp * 4 + mt) * 4 + 2 * u
                E(f"  v_cvt_pk_bf16_f32 v{d}, v{a}, v{a+1}")
                E(f"  v_cvt_pk_bf16_f32 v{d+1}, v{a+2}, v{a+3}")
            d = PK + (tp * 4 + mt) * 4
            E("  s_nop 1")
            E(f"  v_permlane16_swap_b32 v{d}, v{d+2}")
            E(f"  v_permlane16_swap_b32 v{d+1}, v{d+3}")
        E(f"  s_add_u32 s46, s43, {64*tp}")
        E(f"  v_lshl_add_u32 v{t3}, v{t4}, 5, s46")
        E(f"  v_lshrrev_b32 v{TM+8}, 6, v{t3}")
        E(f"  v_lshlrev_b32 v{TM+8}, 12, v{TM+8}")
        E(f"  v_and_b32 v{TM+9}, 32, v{t3}")
        E(f"  v_xor_b32 v{TM+9}, v{TM+9}, v{t2}")
        E(f"  v_add_u32 v{TM+8}, v{TM+8}, v{TM+9}")
        E(f"  v_cmp_gt_u32 vcc, 3456, v{t3}")
        E(f"  v_subrev_u32 v{TM+9}, s41, v{t3}")
        E(f"  v_cmp_gt_u32 s[46:47], s42, v{TM+9}" if False else "  s_mov_b64 s[48:49], vcc")
        E(f"  v_cmp_gt_u32 vcc, 224, v{TM+9}")
        E("  s_and_b64 vcc, vcc, s[48:49]")
        E(f"  v_mov_b32 v{TM+9}, 0x7fffffff")
        E(f"  v_cndmask_b32 v{TM+8}, v{TM+9}, v{TM+8}, vcc")
        for mt in range(4):
            d = PK + (tp * 4 + mt) * 4
            E(f"  buffer_store_dwordx4 {vr(d,4)}, v{TM+8}, s[16:19], s40 offen offset:{mt*1024}{WT('1')}")

def head_6480(which):
    E("  s_cmp_ge_u32 s2, 256")
    E(f"  s_cbranch_scc1 L{which}_done")
    E("  s_load_dwordx4 s[36:39], s[0:1], 56")
    E("  s_load_dwordx2 s[4:5], s[0:1], 48")
    E(f"  s_load_dwordx2 s[6:7], s[0:1], {16 if which == 2 else 40}")
    E("  s_load_dwordx2 s[42:43], s[0:1], 0")
    stamp(which)
    E("  s_and_b32 s40, s2, 7")
    E("  s_lshr_b32 s41, s2, 3")
    if os.environ.get("OLDMAP"):
        E("  s_lshl_b32 s24, s40, 2")
        E("  s_and_b32 s44, s41, 3")
        E("  s_add_u32 s24, s24, s44")
        E("  s_lshr_b32 s25, s41, 2")
    else:
        E("  s_lshr_b32 s24, s40, 1")
        E("  s_lshl_b32 s24, s24, 3")
        E("  s_and_b32 s44, s41, 7")
        E("  s_add_u32 s24, s24, s44")
        E("  s_and_b32 s25, s40, 1")
        E("  s_lshl_b32 s25, s25, 2")
        E("  s_lshr_b32 s44, s41, 3")
        E("  s_add_u32 s25, s25, s44")
    E("  v_lshrrev_b32 v1, 6, v0")
    E("  v_mov_b32 v2, v0")
    E("  v_and_b32 v0, 63, v0")
    E("  v_readfirstlane_b32 s26, v1")
    E("  s_nop 3")

def res_addr():
    E("  v_lshrrev_b32 v3, 2, v2")
    E("  s_lshl_b32 s40, s24, 6")
    E("  v_add_u32 v3, s40, v3")
    E("  s_movk_i32 s41, 1280")
    E("  v_mul_lo_u32 v7, v3, s41")
    E("  v_and_b32 v4, 3, v2")
    E("  v_mad_u32_u24 v7, v4, 40, v7")
    E("  s_mul_i32 s40, s25, 160")
    E("  v_add_u32 v7, s40, v7")

def chunk_addr(vc, vrow, vcol, tmp):
    E("  s_movk_i32 s41, 6554")
    E(f"  v_mul_u32_u24 v{vrow}, s41, v{vc}")
    E(f"  v_lshrrev_b32 v{vrow}, 16, v{vrow}")
    E(f"  v_mul_u32_u24 v{tmp}, 10, v{vrow}")
    E(f"  v_sub_u32 v{vcol}, v{vc}, v{tmp}")

def res_load(rounds, res_srd, RES, GA):
    for r, add in enumerate(rounds):
        E(f"  v_add_u32 v3, {add}, v2")
        chunk_addr(3, 4, 5, 6)
        E("  s_lshl_b32 s40, s24, 6")
        E("  v_add_u32 v4, s40, v4")
        E("  s_movk_i32 s41, 1280")
        E(f"  v_mul_lo_u32 v{GA+r}, v4, s41")
        E(f"  v_lshl_add_u32 v{GA+r}, v5, 4, v{GA+r}")
        E("  s_mul_i32 s40, s25, 160")
        E(f"  v_add_u32 v{GA+r}, s40, v{GA+r}")
        E("  v_cmp_gt_u32 vcc, 640, v3")
        E(f"  v_cndmask_b32 v{GA+r}, -1, v{GA+r}, vcc")
        E(f"  buffer_load_dwordx4 {vr(RES+4*r,4)}, v{GA+r}, {sr(res_srd,4)}, 0 offen")

def final_sum(which, rounds, RES, GA, dst_srd, wstride, B):
    for r, add in enumerate(rounds):
        E(f"  v_add_u32 v3, {add}, v2")
        E("  v_min_u32 v3, 639, v3")
        chunk_addr(3, 4, 5, 6)
        E("  v_mul_u32_u24 v6, 336, v4")
        E("  v_lshl_add_u32 v6, v5, 5, v6")
        E(f"  v_add_u32 v3, {2*wstride}, v6")
        for w in range(4):
            for j in range(2):
                E(f"  ds_read_b128 {vr(B+w*8+j*4,4)}, {'v6' if w < 2 else 'v3'} offset:{(w&1)*wstride+j*16}")
        E("  s_waitcnt lgkmcnt(0)")
        for i in range(4):
            E(f"  v_pk_add_f32 {vr(B+2*i,2)}, {vr(B+2*i,2)}, {vr(B+8+2*i,2)}")
            E(f"  v_pk_add_f32 {vr(B+16+2*i,2)}, {vr(B+16+2*i,2)}, {vr(B+24+2*i,2)}")
        for i in range(4):
            E(f"  v_pk_add_f32 {vr(B+2*i,2)}, {vr(B+2*i,2)}, {vr(B+16+2*i,2)}")
        E("  s_waitcnt vmcnt(0)")
        T = B + 8
        for i in range(4):
            E(f"  v_lshlrev_b32 v{T}, 16, v{RES+4*r+i}")
            E(f"  v_and_b32 v{T+1}, 0xffff0000, v{RES+4*r+i}")
            if which == 2:
                E(f"  v_cvt_pk_bf16_f32 v{T+2}, v{B+2*i}, v{B+2*i+1}")
                E(f"  v_lshlrev_b32 v{B+2*i}, 16, v{T+2}")
                E(f"  v_and_b32 v{B+2*i+1}, 0xffff0000, v{T+2}")
            E(f"  v_pk_add_f32 {vr(B+2*i,2)}, {vr(B+2*i,2)}, {vr(T,2)}")
            E(f"  v_cvt_pk_bf16_f32 v{T+4+i}, v{B+2*i}, v{B+2*i+1}")
        E(f"  buffer_store_dwordx4 {vr(T+4,4)}, v{GA+r}, {sr(dst_srd,4)}, 0 offen")
        if which == 2:
            S = T + 8
            for i in range(4):
                E(f"  v_lshlrev_b32 v{T}, 16, v{T+4+i}")
                E(f"  v_and_b32 v{T+1}, 0xffff0000, v{T+4+i}")
                if i == 0:
                    E(f"  v_mov_b32 v{S}, v{T}")
                    E(f"  v_mov_b32 v{S+1}, v{T+1}")
                    E(f"  v_pk_mul_f32 {vr(S+2,2)}, {vr(T,2)}, {vr(T,2)}")
                else:
                    E(f"  v_pk_add_f32 {vr(S,2)}, {vr(S,2)}, {vr(T,2)}")
                    E(f"  v_pk_fma_f32 {vr(S+2,2)}, {vr(T,2)}, {vr(T,2)}, {vr(S+2,2)}")
            E(f"  v_add_f32 v{S}, v{S}, v{S+1}")
            E(f"  v_add_f32 v{S+1}, v{S+2}, v{S+3}")
            E("  v_mul_u32_u24 v6, 10, v4")
            E("  v_add_u32 v6, v6, v5")
            E("  v_lshlrev_b32 v6, 3, v6")
            E(f"  v_add_u32 v6, {K2_STAT}, v6")
            E(f"  v_add_u32 v3, {add}, v2")
            E("  v_cmp_gt_u32 vcc, 640, v3")
            E("  s_and_saveexec_b64 s[50:51], vcc")
            E(f"  ds_write_b64 v6, {vr(S,2)}")
            E("  s_mov_b64 exec, s[50:51]")

K2_STAT = 4 * 40960 - 5120 - 16

def k4(name):
    kernel_head(name)
    head_6480(4)
    E("  s_mul_i32 s40, s24, 221184")
    E(f"  s_add_u32 s40, s40, {H1_OFF}")
    E("  s_mul_i32 s41, s25, 276480")
    E(f"  s_add_u32 s41, s41, {W2T_OFF}")
    E("  s_waitcnt lgkmcnt(0)")
    E("  s_add_u32 s8, s38, s40")
    E("  s_addc_u32 s9, s39, 0")
    E("  s_mov_b32 s10, 221184")
    E("  s_mov_b32 s11, 0x00020000")
    E("  s_add_u32 s12, s38, s41")
    E("  s_addc_u32 s13, s39, 0")
    E("  s_mov_b32 s14, 276480")
    E("  s_mov_b32 s15, 0x00020000")
    srd(16, 38, 2048 * 1280, H_OFF)
    srd(20, 4, 2048 * 1280)
    res_load([0], 16, 12, 10)
    E("  s_cmp_ge_u32 s26, 4")
    E("  s_cbranch_scc1 L4_loader")
    if os.environ.get("PRIO"): E("  s_setprio 2")
    if os.environ.get("PF4"):
        E("  s_and_b32 s40, s25, 3")
        E("  s_mul_i32 s40, s40, 432")
        E("  s_and_b32 s41, s24, 7")
        E("  s_mul_i32 s41, s41, 270")
        E("  v_mov_b32 v6, 0x7fffffff")
        for r in range(2):
            E(f"  v_add_u32 v3, {256*r}, v2")
            E("  v_add_u32 v4, s40, v3")
            E("  v_lshlrev_b32 v4, 7, v4")
            E("  v_cmp_gt_u32 vcc, 432, v3")
            E("  v_cndmask_b32 v4, v6, v4, vcc")
            E(f"  buffer_load_dword v{100+r}, v4, s[8:11], 0 offen")
            E("  v_add_u32 v5, s41, v3")
            E("  v_lshlrev_b32 v5, 7, v5")
            E("  v_cmp_gt_u32 vcc, 270, v3")
            E("  v_cndmask_b32 v5, v6, v5, vcc")
            E(f"  buffer_load_dword v{102+r}, v5, s[12:15], 0 offen")
    E("  s_mul_i32 s34, s26, 36864")
    E("  v_and_b32 v3, 15, v0")
    E("  v_lshrrev_b32 v4, 4, v0")
    E("  v_lshrrev_b32 v5, 2, v3")
    E("  v_sub_u32 v6, 0, v5")
    E("  v_xor_b32 v6, v6, v4")
    E("  v_and_b32 v6, 3, v6")
    E("  v_lshlrev_b32 v6, 4, v6")
    E("  v_lshl_add_u32 v6, v3, 6, v6")
    E("  v_add_u32 v8, s34, v6")
    E("  v_lshrrev_b32 v6, 1, v4")
    E("  v_lshl_add_u32 v6, v6, 4, v5")
    E("  v_and_b32 v4, 1, v4")
    E("  v_lshl_add_u32 v6, v4, 2, v6")
    E("  v_mul_u32_u24 v6, 160, v6")
    E("  v_and_b32 v3, 3, v3")
    E("  v_lshl_add_u32 v6, v3, 3, v6")
    E("  v_add_u32 v6, 4096, v6")
    E("  v_add_u32 v9, s34, v6")
    ACC = 16
    def accf(mt, nt): return ACC + (mt * 5 + nt) * 4
    for i in range(80):
        E(f"  v_mov_b32 v{ACC+i}, 0")
    RES = 96
    X, Y = 96 + 12, 96 + 12 + 36
    X, Y = 96, 132
    RES = 168 - 0
    def reads(step, base):
        sl = step % 4
        r = []
        for mt in range(4):
            r.append(f"  ds_read_b128 {vr(base+4*mt,4)}, v8 offset:{sl*9216+mt*1024}")
        for nt in range(5):
            for h in range(2):
                r.append(f"  ds_read_b64_tr_b16 {vr(base+16+4*nt+2*h,2)}, v9 offset:{sl*9216+h*1280+nt*32}")
        return r
    NSTEP = 14
    E("  s_barrier")
    stamp(4)
    for r in reads(0, X): E(r)
    for i in range(NSTEP):
        cur, nxt = (X, Y) if i % 2 == 0 else (Y, X)
        E("  s_waitcnt lgkmcnt(0)")
        if i + 1 < NSTEP:
            E("  s_barrier")
        mfs = [f"  v_mfma_f32_16x16x32_bf16 {vr(accf(mt,nt),4)}, {vr(cur+16+4*nt,4)}, {vr(cur+4*mt,4)}, {vr(accf(mt,nt),4)}" for mt in range(4) for nt in range(5)]
        interleave(mfs, reads(i + 1, nxt) if i + 1 < NSTEP else [])
        if i == NSTEP - 2:
            pass
    stamp(4)
    pads_on()
    E("  v_and_b32 v3, 15, v0")
    E("  v_lshrrev_b32 v4, 4, v0")
    E("  v_mul_u32_u24 v5, 336, v3")
    E("  v_lshl_add_u32 v5, v4, 4, v5")
    E("  v_add_u32 v5, s34, v5")
    E("  s_nop 7")
    for mt in range(4):
        for nt in range(5):
            E(f"  ds_write_b128 v5, {vr(accf(mt,nt),4)} offset:{mt*16*336+nt*64}")
    E("  s_waitcnt lgkmcnt(0)")
    pads_off()
    E("  s_branch L4_fin")
    E("L4_loader:")
    E("  s_sub_u32 s27, s26, 4")
    E("  s_lshr_b32 s28, s27, 1")
    E("  s_and_b32 s27, s27, 1")
    E("  s_mul_i32 s34, s28, 36864")
    E(f"  s_mul_i32 s32, s28, {14*4096}")
    E(f"  s_mul_i32 s33, s28, {14*5120}")
    E("  v_lshlrev_b32 v8, 4, v0")
    for half in range(2):
        if half == 0:
            E("  s_cmp_eq_u32 s27, 1")
            E("  s_cbranch_scc1 L4_ld1")
        else:
            E("L4_ld1:")
        n = 5 if half == 0 else 4
        def dma(step):
            sl = step % 4
            if half == 0:
                E(f"  s_add_u32 s35, s34, {sl*9216}")
                E("  s_mov_b32 m0, s35")
                E("  s_add_u32 s35, s35, 8192")
                for j in range(4):
                    E(f"  buffer_load_dwordx4 v8, s[8:11], s32 offen offset:{j*1024} lds")
                E("  s_mov_b32 m0, s35")
                E("  s_add_u32 s32, s32, 4096")
                E("  s_add_u32 s35, s33, 4096")
                E("  buffer_load_dwordx4 v8, s[12:15], s35 offen lds")
            else:
                E(f"  s_add_u32 s35, s34, {sl*9216+4096}")
                E("  s_mov_b32 m0, s35")
                E("  s_nop 0")
                for j in range(4):
                    E(f"  buffer_load_dwordx4 v8, s[12:15], s33 offen offset:{j*1024} lds")
            E(f"  s_add_u32 s33, s33, 5120")
        for s in range(4): dma(s)
        last = 3
        if half == 0: pf_enter("L4", 4, "s28")
        PF = int(os.environ.get("K4PF", "0"))
        npf = 0
        if PF:
            E("  s_mov_b32 s48, s32")
            E("  s_mov_b32 s49, s33")
            for st in range(4, 4 + PF):
                if half == 0:
                    for j in range(4):
                        E(f"  buffer_load_dwordx4 v[20:23], v{8+j}, s[8:11], s48 offen offset:{j*1024}")
                    E("  buffer_load_dwordx4 v[20:23], v16, s[12:15], s49 offen")
                    E("  s_add_u32 s48, s48, 64")
                else:
                    for j in range(4):
                        E(f"  buffer_load_dwordx4 v[20:23], v{12+j}, s[12:15], s49 offen offset:{j*1024}")
                E(f"  s_add_u32 s49, s49, {32*1280}")
                npf += n
        E(f"  s_waitcnt vmcnt({3*n+npf})")
        E("  s_barrier")
        for i in range(NSTEP - 1):
            E(f"  s_waitcnt vmcnt({min(63,(last-(i+1))*n + (npf if i+1 <= 3 else 0))})")
            E("  s_barrier")
            if i + 4 < NSTEP:
                dma(i + 4); last = i + 4
            if i == NSTEP - 5:
                pass
        E("  s_branch L4_fin")
    E("L4_fin:")
    pad["on"] = True
    E("  s_barrier")
    final_sum(4, [0], 12, 10, 20, 36864, 24)
    pads_off()
    stamp(4)
    stamp_flush(4, 36)
    rt_end(4)
    E("L4_done:")
    E("  s_endpgm")

def k2(name):
    kernel_head(name)
    head_6480(2)
    E("  s_and_b32 s27, s26, 3")
    E("  s_lshr_b32 s33, s26, 2")
    E("  s_mul_i32 s34, s27, 40960")
    E("  v_lshlrev_b32 v8, 4, v0")
    E("  s_lshl_b32 s40, s24, 2")
    E("  s_add_u32 s40, s40, s27")
    E("  s_mul_i32 s44, s40, 21504")
    E("  s_mul_i32 s45, s33, 11264")
    E("  s_add_u32 s44, s44, s45")
    E("  s_add_u32 s35, s34, s45")
    E("  s_mov_b32 m0, s35")
    E("  s_waitcnt lgkmcnt(0)")
    srd(8, 38, 128 * 21504, PQT_OFF)
    srd(28, 38, 53760, KV_OFF)
    srd(12, 38, 8 * 102400, WOT_OFF)
    E("  s_mul_i32 s46, s27, 13440")
    E("  s_mul_i32 s45, s33, 7168")
    E("  s_add_u32 s46, s46, s45")
    E("  s_add_u32 s35, s34, 21504")
    E("  s_add_u32 s45, s45, s35")
    E("  s_mov_b32 s47, m0")
    E("  s_mov_b32 m0, s45")
    E("  s_nop 0")
    for j in range(7):
        E("  buffer_load_dwordx4 v8, s[28:31], s46 offen lds")
        E("  s_add_u32 m0, m0, 1024")
        E("  s_add_u32 s46, s46, 1024")
    E("  s_mov_b32 m0, s47")
    E("  s_nop 0")
    for j in range(11):
        if j == 10:
            E("  s_cmp_eq_u32 s33, 1")
            E("  s_cbranch_scc1 L2_pq10")
        E("  buffer_load_dwordx4 v8, s[8:11], s44 offen lds")
        E("  s_add_u32 m0, m0, 1024")
        E("  s_add_u32 s44, s44, 1024")
    E("L2_pq10:")
    WR = 196
    E("  s_mul_i32 s32, s27, 25600")
    E("  s_mul_i32 s45, s25, 102400")
    E("  s_add_u32 s32, s32, s45")
    E("  s_mul_i32 s45, s33, 13312")
    E("  s_add_u32 s32, s32, s45")
    E("  v_mov_b32 v7, v8")
    srd(16, 42, 2048 * 1280)
    srd(20, 38, 2048 * 1280, H_OFF)
    srd(28, 38, WS_BYTES)
    RES, GA = 248, 194
    E("  v_lshrrev_b32 v3, 3, v2")
    E("  s_lshl_b32 s40, s24, 6")
    E("  v_add_u32 v3, s40, v3")
    E("  s_movk_i32 s41, 1280")
    E(f"  v_mul_lo_u32 v{GA}, v3, s41")
    E("  v_and_b32 v4, 7, v2")
    E(f"  v_mad_u32_u24 v{GA}, v4, 20, v{GA}")
    E("  s_mul_i32 s40, s25, 160")
    E(f"  v_add_u32 v{GA}, s40, v{GA}")
    E(f"  buffer_load_dwordx4 {vr(RES,4)}, v{GA}, s[16:19], 0 offen")
    E(f"  buffer_load_dword v{RES+4}, v{GA}, s[16:19], 0 offen offset:16")
    E("  v_and_b32 v3, 15, v0")
    E("  v_lshrrev_b32 v4, 4, v0")
    E("  v_cmp_eq_u32 s[46:47], 0, v4")
    E("  v_lshrrev_b32 v5, 2, v3")
    for q in range(4):
        E(f"  v_cmp_eq_u32 s[{48+2*q}:{49+2*q}], {q}, v5")
        E(f"  v_cmp_eq_u32 s[{56+2*q}:{57+2*q}], {q}, v4")
    E("  v_mul_u32_u24 v8, 80, v3")
    E("  v_add_u32 v8, s35, v8")
    E("  v_lshl_add_u32 v9, v4, 4, v8")
    E("  v_and_b32 v10, 3, v3")
    E("  v_mul_u32_u24 v10, 80, v10")
    E("  v_add_u32 v10, s35, v10")
    E("  v_add_u32 v10, 1280, v10")
    E("  v_lshl_add_u32 v11, v4, 4, v10")
    E("  v_mov_b32 v12, s35")
    E("  v_add_u32 v12, 1600, v12")
    E("  v_lshl_add_u32 v13, v4, 4, v12")
    E("  s_mul_i32 s40, s33, 10752")
    E("  s_add_u32 s40, s40, s34")
    E("  v_mul_u32_u24 v14, 336, v3")
    E("  v_add_u32 v14, s40, v14")
    E("  v_add_u32 v15, 32, v14")
    E("  v_lshl_add_u32 v14, v4, 3, v14")
    pf_enter("L2", 8, "s26")
    E("  s_waitcnt vmcnt(12)")
    stamp(2)
    E("  s_barrier")
    stamp(2)
    KF, T = 32, 128
    def kvreads(hh):
        o = hh * 1680
        tt0 = T + 24 * (hh % 2)
        E(f"  ds_read_b128 {vr(tt0,4)}, v9 offset:{o}")
        E(f"  ds_read_b128 {vr(tt0+4,4)}, v8 offset:{o+64}")
        E(f"  ds_read_b128 {vr(tt0+8,4)}, v11 offset:{o}")
        E(f"  ds_read_b128 {vr(tt0+12,4)}, v10 offset:{o+64}")
        E(f"  ds_read_b128 {vr(tt0+16,4)}, v13 offset:{o}")
        E(f"  ds_read_b128 {vr(tt0+20,4)}, v12 offset:{o+64}")
    kvreads(0)
    for hh in range(8):
        if hh + 1 < 8:
            kvreads(hh + 1)
            E("  s_waitcnt lgkmcnt(6)")
        else:
            E("  s_waitcnt lgkmcnt(0)")
        f = KF + 12 * hh
        tt0 = T + 24 * (hh % 2)
        for tt in range(3):
            for p in range(4):
                E(f"  v_cvt_pk_bf16_f32 v{f+4*tt+p}, v{tt0+8*tt+2*p}, v{tt0+8*tt+2*p+1}")
        m = f"s[{48+2*(hh%4)}:{49+2*(hh%4)}]"
        for tt in range(3):
            E(f"  v_cndmask_b32 v{f+4*tt+2}, 0, v{f+4*tt+2}, s[46:47]")
            E(f"  v_cndmask_b32 v{f+4*tt+3}, 0, v{f+4*tt+3}, s[46:47]")
        for p in range(4):
            E(f"  v_cndmask_b32 v{f+4+p}, 0, v{f+4+p}, {m}")
        for j in range(2 * hh, min(13, 2 * hh + 2)):
            E(f"  buffer_load_dwordx4 {vr(WR+4*j,4)}, v7, s[12:15], s32 offen")
            E("  s_add_u32 s32, s32, 1024")
    E("  s_waitcnt vmcnt(15)")
    E("  s_barrier")
    stamp(2)
    OF = 128
    def of(u, ks): return OF + u * 20 + ks * 4
    PQa, PQb, N0, D, N1, RS = 168, 16, 176, 24, 184, 192
    E("  s_mov_b32 s45, 0x358637bd")
    def pqreads(hh):
        P = PQa if hh % 2 == 0 else PQb
        for u in range(2):
            E(f"  ds_read_b64 {vr(P+4*u,2)}, v14 offset:{u*16*336+40*hh}")
            E(f"  ds_read_b64 {vr(P+4*u+2,2)}, v15 offset:{u*16*336+40*hh}")
    pqreads(0)
    for hh in range(8):
        P = PQa if hh % 2 == 0 else PQb
        f = KF + 12 * hh
        if hh + 1 < 8:
            pqreads(hh + 1)
            E("  s_waitcnt lgkmcnt(4)")
        else:
            E("  s_waitcnt lgkmcnt(0)")
        for u in range(2):
            E(f"  v_mfma_f32_16x16x32_bf16 {vr(D+4*u,4)}, {vr(f+8,4)}, {vr(P+4*u,4)}, 0")
        for u in range(2):
            E(f"  v_mfma_f32_16x16x32_bf16 {vr(N0+4*u,4)}, {vr(f,4)}, {vr(P+4*u,4)}, 0")
        for u in range(2):
            c = "0" if hh % 4 == 0 else vr(N1 + 4 * u, 4)
            E(f"  v_mfma_f32_16x16x32_bf16 {vr(N1+4*u,4)}, {vr(f+4,4)}, {vr(P+4*u,4)}, {c}")
        E("  s_nop 4")
        for u in range(2):
            E(f"  v_add_f32 v{D+4*u}, s45, v{D+4*u}")
            E(f"  v_rcp_f32 v{D+4*u}, v{D+4*u}")
        E("  s_nop 1")
        for u in range(2):
            for r in range(4):
                E(f"  v_mul_f32 v{N0+4*u+r}, v{N0+4*u+r}, v{D+4*u}")
            dst = of(u, hh // 2) + 2 * (hh % 2)
            E(f"  v_cvt_pk_bf16_f32 v{dst}, v{N0+4*u}, v{N0+4*u+1}")
            E(f"  v_cvt_pk_bf16_f32 v{dst+1}, v{N0+4*u+2}, v{N0+4*u+3}")
            gm = f"s[{56+2*(hh%4)}:{57+2*(hh%4)}]"
            E(f"  v_cndmask_b32 v{RS+u}, v{RS+u}, v{D+4*u}, {gm}")
        if hh % 4 == 3:
            E("  s_nop 4")
            for u in range(2):
                for r in range(4):
                    E(f"  v_mul_f32 v{D+4*u+r}, v{N1+4*u+r}, v{RS+u}")
                dst = of(u, 4) + 2 * (hh // 4)
                E(f"  v_cvt_pk_bf16_f32 v{dst}, v{D+4*u}, v{D+4*u+1}")
                E(f"  v_cvt_pk_bf16_f32 v{dst+1}, v{D+4*u+2}, v{D+4*u+3}")
    stamp(2)
    E("  v_lshlrev_b32 v16, 4, v0")
    E("  s_mul_i32 s40, s33, 13312")
    E("  s_add_u32 s40, s40, s34")
    E("  v_add_u32 v16, s40, v16")
    E("  v_lshl_add_u32 v8, v4, 2, v5")
    E("  v_mul_u32_u24 v8, 160, v8")
    E("  v_and_b32 v6, 3, v3")
    E("  v_lshl_add_u32 v8, v6, 3, v8")
    E("  v_add_u32 v8, s34, v8")
    E("  v_mul_u32_u24 v9, 20, v4")
    E("  v_add_u32 v9, v9, v5")
    E("  v_add_u32 v9, 16, v9")
    E("  v_mul_u32_u24 v9, 160, v9")
    E("  v_lshl_add_u32 v9, v6, 3, v9")
    E("  v_add_u32 v9, s34, v9")
    E("  s_waitcnt vmcnt(0)")
    E("  s_barrier")
    for j in range(13):
        if j == 12:
            E("  s_cmp_eq_u32 s33, 1")
            E("  s_cbranch_scc1 L2_w12")
        E(f"  ds_write_b128 v16, {vr(WR+4*j,4)} offset:{1024*j}")
    E("L2_w12:")
    E("  s_waitcnt lgkmcnt(0)")
    E("  s_barrier")
    stamp(2)
    ACC = 32
    def accf(u, nt): return ACC + (u * 5 + nt) * 4
    WFS = [72, 92]
    def wreads(ks):
        W = WFS[ks % 2]
        r = []
        for nt in range(5):
            for h in range(2):
                if ks < 4:
                    r.append(f"  ds_read_b64_tr_b16 {vr(W+4*nt+2*h,2)}, v8 offset:{ks*6400+h*3200+nt*32}")
                else:
                    r.append(f"  ds_read_b64_tr_b16 {vr(W+4*nt+2*h,2)}, v9 offset:{h*12800+nt*32}")
        return r
    for r in wreads(0): E(r)
    for ks in range(5):
        W = WFS[ks % 2]
        E("  s_waitcnt lgkmcnt(0)")
        mfs = []
        for nt in range(5):
            for u in range(2):
                c = "0" if ks == 0 else vr(accf(u, nt), 4)
                mfs.append(f"  v_mfma_f32_16x16x32_bf16 {vr(accf(u,nt),4)}, {vr(W+4*nt,4)}, {vr(of(u,ks),4)}, {c}")
        interleave(mfs, wreads(ks + 1) if ks < 4 else [], per=1)
    stamp(2)
    E("  s_barrier")
    E("  s_mul_i32 s40, s33, 10752")
    E("  s_add_u32 s40, s40, s34")
    E("  v_mul_u32_u24 v5, 336, v3")
    E("  v_lshl_add_u32 v5, v4, 4, v5")
    E("  v_add_u32 v5, s40, v5")
    for u in range(2):
        for nt in range(5):
            E(f"  ds_write_b128 v5, {vr(accf(u,nt),4)} offset:{u*16*336+nt*64}")
    E("  s_waitcnt lgkmcnt(0)")
    E("  s_barrier")
    B = 32
    E("  v_lshrrev_b32 v3, 3, v2")
    E("  v_and_b32 v4, 7, v2")
    E("  v_mul_u32_u24 v6, 336, v3")
    E("  v_mad_u32_u24 v6, v4, 40, v6")
    E(f"  v_add_u32 v5, {2*40960}, v6")
    for w in range(4):
        for j in range(5):
            E(f"  ds_read_b64 {vr(B+w*10+j*2,2)}, {'v6' if w < 2 else 'v5'} offset:{(w&1)*40960+j*8}")
    E("  s_waitcnt lgkmcnt(0)")
    for i in range(5):
        E(f"  v_pk_add_f32 {vr(B+2*i,2)}, {vr(B+2*i,2)}, {vr(B+10+2*i,2)}")
        E(f"  v_pk_add_f32 {vr(B+20+2*i,2)}, {vr(B+20+2*i,2)}, {vr(B+30+2*i,2)}")
    for i in range(5):
        E(f"  v_pk_add_f32 {vr(B+2*i,2)}, {vr(B+2*i,2)}, {vr(B+20+2*i,2)}")
    E("  s_waitcnt vmcnt(0)")
    T = B + 10
    for i in range(5):
        E(f"  v_lshlrev_b32 v{T}, 16, v{RES+i}")
        E(f"  v_and_b32 v{T+1}, 0xffff0000, v{RES+i}")
        E(f"  v_cvt_pk_bf16_f32 v{T+2}, v{B+2*i}, v{B+2*i+1}")
        E(f"  v_lshlrev_b32 v{B+2*i}, 16, v{T+2}")
        E(f"  v_and_b32 v{B+2*i+1}, 0xffff0000, v{T+2}")
        E(f"  v_pk_add_f32 {vr(B+2*i,2)}, {vr(B+2*i,2)}, {vr(T,2)}")
        E(f"  v_cvt_pk_bf16_f32 v{T+4+i}, v{B+2*i}, v{B+2*i+1}")
    E(f"  buffer_store_dwordx4 {vr(T+4,4)}, v{GA}, s[20:23], 0 offen{WT('2')}")
    E(f"  buffer_store_dword v{T+8}, v{GA}, s[20:23], 0 offen offset:16{WT('2')}")
    S = T + 10
    for i in range(5):
        E(f"  v_lshlrev_b32 v{T}, 16, v{T+4+i}")
        E(f"  v_and_b32 v{T+1}, 0xffff0000, v{T+4+i}")
        if i == 0:
            E(f"  v_mov_b32 v{S}, v{T}")
            E(f"  v_mov_b32 v{S+1}, v{T+1}")
            E(f"  v_pk_mul_f32 {vr(S+2,2)}, {vr(T,2)}, {vr(T,2)}")
        else:
            E(f"  v_pk_add_f32 {vr(S,2)}, {vr(S,2)}, {vr(T,2)}")
            E(f"  v_pk_fma_f32 {vr(S+2,2)}, {vr(T,2)}, {vr(T,2)}, {vr(S+2,2)}")
    E(f"  v_add_f32 v{S}, v{S}, v{S+1}")
    E(f"  v_add_f32 v{S+1}, v{S+2}, v{S+3}")
    for ctl in ("quad_perm:[1,0,3,2]", "quad_perm:[2,3,0,1]", "row_half_mirror"):
        E("  s_nop 1")
        for r in (S, S + 1):
            E(f"  v_add_f32_dpp v{r}, v{r}, v{r} {ctl} row_mask:0xf bank_mask:0xf")
    E("  s_lshl_b32 s40, s24, 12")
    E("  s_lshl_b32 s41, s25, 3")
    E("  s_add_u32 s40, s40, s41")
    E(f"  s_add_u32 s40, s40, {RS_OFF}")
    E("  v_lshlrev_b32 v3, 6, v3")
    E("  v_cmp_eq_u32 vcc, 0, v4")
    E("  s_and_saveexec_b64 s[50:51], vcc")
    E(f"  buffer_store_dwordx2 {vr(S,2)}, v3, s[28:31], s40 offen")
    E("  s_mov_b64 exec, -1")
    E("L2_nost:")
    pads_off()
    stamp(2)
    stamp_flush(2, 36)
    rt_end(2)
    E("L2_done:")
    E("  s_endpgm")

def main():
    N = ["k1_qkv_kernel", "k2_attn_kernel", "k3_ffn1_kernel", "k4_ffn2_kernel"]
    hdr = open('cdna_kernels/' + NAME + '.s.ref').read().split("; Override")[0]
    E(hdr.rstrip())
    lds = [163840, 163840, 163840, 4 * 36864]
    blk = [768, 512, 768, 768]
    for i, n in enumerate(N):
        E(f"; @launch kernel={n} grid=(256,1,1) block=({blk[i]},1,1) lds={lds[i]}")
    E('.amdgcn_target "amdgcn-amd-amdhsa--gfx950"')
    E(".text")
    st = len(out); ln_gemm(N[0], 1); resolve_pads("L1", st)
    st = len(out); k2(N[1]); resolve_pads("L2", st)
    st = len(out); ln_gemm(N[2], 3); resolve_pads("L3", st)
    st = len(out); k4(N[3]); resolve_pads("L4", st)
    E("Lcode_end:")
    E('.section .rodata,"a"')
    E(kernel_desc(N[0]))
    E(kernel_desc(N[1], vgpr=256))
    E(kernel_desc(N[2]))
    E(kernel_desc(N[3]))
    open(sys.argv[1], 'w').write("\n".join(out) + "\n")
main()
```

```python
import sys, os
NAME = "sequential_preLN__linear_attn_block__dense_activation_silu__prompt"
PQ_OFF = 0
KV_OFF = 0x280000
H_OFF = 0x290000
H1_OFF = 0x510000
RS_OFF = H1_OFF + 2048 * 1728 * 2
W1T_OFF = RS_OFF + 2048 * 64
W2T_OFF = W1T_OFF + 16 * 163840
WOT_OFF = W2T_OFF + 8 * 276480
PQT_OFF = WOT_OFF + 8 * 102400
CSP_OFF = PQT_OFF + 128 * 21504
WS_BYTES = CSP_OFF + 16 * 16 * 512
out = []
PADN = int(os.environ.get("PADN", "0"))
pad = {"on": False, "cnt": 0, "masked": False, "n": 0}
def E(s=""):
    out.append(s)
    t = s.strip()
    if not pad["on"] or not t or t.endswith(":") or t.startswith("."): return
    if t.startswith("s_mov_b64 exec") or "saveexec" in t:
        pad["masked"] = not t.endswith("exec, -1")
    pad["cnt"] += 1
    if PADN and pad["cnt"] >= PADN and not pad["masked"] and t.startswith(("v_", "ds_")) and not t.startswith(("v_cmp", "v_readfirst")):
        out.append(f"@PAD {pad['n']}")
        pad["n"] += 1
        pad["cnt"] = 0
def pads_on(): pad["on"] = True; pad["cnt"] = 0; pad["masked"] = False
def pads_off(): pad["on"] = False
def pf_enter(L, nw, wave_sreg, wbase=0):
    out.append(f"@PFENTER {L} {nw} {wave_sreg} {wbase}")
    E(f"{L}_PFRET:")
    E("  s_mov_b64 exec, -1")
def resolve_pads(L, start):
    n = pad["n"]
    ent = [i for i in range(start, len(out)) if out[i].startswith("@PFENTER")]
    nw = int(out[ent[0]].split()[2]) if ent else 1
    starts = [k * n // nw for k in range(nw)]
    sset = set(starts[1:])
    for i in range(start, len(out)):
        if out[i].startswith("@PAD"):
            k = int(out[i].split()[1])
            nxt = f"{L}_PFRET" if (k + 1 == n or (k + 1) in sset) else f"{L}_P{k+1}"
            out[i] = f"{L}_P{k}:\n  s_cbranch_execz {nxt}"
        elif out[i].startswith("@PFENTER"):
            _, L_, nw_, sreg, wb = out[i].split()
            txt = []
            if n:
                txt.append("  s_mov_b64 exec, 0")
                for k in range(nw):
                    txt.append(f"  s_cmp_eq_u32 {sreg}, {int(wb)+k}")
                    txt.append(f"  s_cbranch_scc1 {L}_P{starts[k]}")
            out[i] = "\n".join(txt)
    pad["n"] = 0; pad["on"] = False
def WT(level):
    return os.environ.get("WTF", " sc1") if level in os.environ.get("WT", "") else ""
def vr(b, n=1):
    return f"v{b}" if n == 1 else f"v[{b}:{b+n-1}]"
def sr(b, n=1):
    return f"s{b}" if n == 1 else f"s[{b}:{b+n-1}]"
def srd(dst, lo, nbytes, add=0):
    if add:
        E(f"  s_add_u32 s{dst}, s{lo}, {add}")
        E(f"  s_addc_u32 s{dst+1}, s{lo+1}, 0")
    else:
        E(f"  s_mov_b32 s{dst}, s{lo}")
        E(f"  s_mov_b32 s{dst+1}, s{lo+1}")
    E(f"  s_mov_b32 s{dst+2}, {nbytes}")
    E(f"  s_mov_b32 s{dst+3}, 0x00020000")
STAMP = os.environ.get("STAMP", "")
stamp_n = [0]
SB0 = 64 if STAMP == "2" else 60
def stamp(which):
    if STAMP != str(which): return
    i = stamp_n[0]; stamp_n[0] += 1
    E(f"  s_memtime s[{SB0+2*i}:{SB0+1+2*i}]")
def stamp_flush(which, dbg_lo, wave=0):
    if STAMP != str(which): return
    n = stamp_n[0]
    E("  s_waitcnt lgkmcnt(0) vmcnt(0)")
    E("  s_mov_b64 exec, -1")
    E(f"  s_cmp_lg_u32 s2, {os.environ.get('STAMPWG','0')}")
    E(f"  s_cbranch_scc1 LS{which}_skip")
    E("  s_cmp_lg_u32 s26, 0")
    E(f"  s_cbranch_scc1 LS{which}_skip")
    E(f"  s_mov_b32 s92, s{dbg_lo}")
    E(f"  s_mov_b32 s93, s{dbg_lo+1}")
    E("  s_mov_b32 s94, 256")
    E("  s_mov_b32 s95, 0x00020000")
    E("  s_mov_b64 exec, 1")
    E("  v_mov_b32 v1, 0")
    for i in range(n):
        E(f"  s_sub_u32 s58, s{SB0+2*i}, s{SB0}")
        E("  v_mov_b32 v2, s58")
        E(f"  buffer_store_dword v2, v1, s[92:95], 0 offen offset:{128+4*i}")
    E(f"LS{which}_skip:")
    stamp_n[0] = 0
RT = os.environ.get("RT")
def kernel_head(name):
    E(f".globl {name}")
    E(".p2align 8")
    E(f".type {name},@function")
    E(f"{name}:")
    if RT or os.environ.get("RT2"): E("  s_memrealtime s[98:99]")
RT2 = os.environ.get("RT2")
def rt2_end(which):
    if not RT2: return
    E("  s_mov_b64 exec, -1")
    E("  s_waitcnt vmcnt(0) lgkmcnt(0)")
    E("  s_memrealtime s[100:101]")
    E("  s_cmp_lg_u32 s26, 0")
    E(f"  s_cbranch_scc1 LR2{which}")
    E("  s_cmp_lg_u32 s2, 0")
    E(f"  s_cbranch_scc1 LR2{which}")
    E(f"  s_add_u32 s92, s38, {(48<<20)}")
    E("  s_addc_u32 s93, s39, 0")
    E("  s_mov_b32 s94, 4096")
    E("  s_mov_b32 s95, 0x00020000")
    E("  s_waitcnt lgkmcnt(0)")
    E("  s_mov_b64 exec, 1")
    E("  v_mov_b32 v2, s98")
    E("  v_mov_b32 v3, s100")
    E(f"  v_mov_b32 v1, {which*8}")
    E("  buffer_store_dwordx2 v[2:3], v1, s[92:95], 0 offen")
    if which == 4:
        E("  s_waitcnt vmcnt(0)")
        E("  s_mov_b64 exec, 0xffff")
        E("  v_lshlrev_b32 v1, 2, v0")
        E("  buffer_load_dword v2, v1, s[92:95], 0 offen sc0 sc1")
        E("  s_mov_b32 s92, s36")
        E("  s_mov_b32 s93, s37")
        E("  s_mov_b32 s94, 256")
        E("  s_waitcnt vmcnt(0)")
        E("  buffer_store_dword v2, v1, s[92:95], 0 offen")
    E(f"LR2{which}:")
def rt_end(which):
    rt2_end(which)
    if not RT: return
    E("  s_mov_b64 exec, -1")
    E("  s_waitcnt vmcnt(0) lgkmcnt(0)")
    E("  s_memrealtime s[100:101]")
    E("  s_cmp_lg_u32 s26, 0")
    E(f"  s_cbranch_scc1 LRT{which}")
    E(f"  s_add_u32 s92, s38, {(48<<20) + which*4096}")
    E("  s_addc_u32 s93, s39, 0")
    E("  s_mov_b32 s94, 4096")
    E("  s_mov_b32 s95, 0x00020000")
    E("  s_waitcnt lgkmcnt(0)")
    E("  s_mov_b64 exec, 1")
    E("  v_mov_b32 v2, s98")
    E("  v_mov_b32 v3, s100")
    E("  s_lshl_b32 s58, s2, 3")
    E("  v_mov_b32 v1, s58")
    E("  buffer_store_dwordx2 v[2:3], v1, s[92:95], 0 offen")
    E(f"LRT{which}:")
def kernel_desc(name, vgpr=168, sgpr=(102 if (os.environ.get("RT") or os.environ.get("RT2")) else 96), accoff=None):
    return f""".p2align 6
.amdhsa_kernel {name}
  .amdhsa_next_free_vgpr {vgpr}
  .amdhsa_next_free_sgpr {sgpr}
  .amdhsa_accum_offset {accoff or (vgpr+3)//4*4}
  .amdhsa_group_segment_fixed_size 0
  .amdhsa_kernarg_size 72
  .amdhsa_user_sgpr_count 2
  .amdhsa_user_sgpr_kernarg_segment_ptr 1
  .amdhsa_system_sgpr_workgroup_id_x 1
.end_amdhsa_kernel"""

def interleave(mf, other, per=int(os.environ.get("PER","1"))):
    other = list(other)
    for m in mf:
        E(m)
        for _ in range(per):
            if other: E(other.pop(0))
    for o in other: E(o)

NS = 4
SLOT = 32768
NST = 10
AUX = NS * SLOT
A_SUM, A_SQ, A_CS = AUX, AUX + 512, AUX + 1024
A_MEAN, A_RSTD = AUX + 2048, AUX + 2560
A_KV = AUX + 4096
A_CP = AUX + 12288
U2 = 62

V_RA, V_RB = 2, 4
V_T = 8
V_X, V_Y, V_ACC, V_E = 16, 48, 80, 144
def acc(mt, t): return V_ACC + (mt * 4 + t) * 4

def ln_gemm(name, which):
    k1 = which == 1
    L = f"L{which}"
    ldb = 3840 if k1 else 3456
    swapped = [False, False, False, True] if k1 else [True] * 4
    t0, t1, t2, t3, t4 = V_T, V_T + 1, V_T + 2, V_T + 3, V_T + 4
    kernel_head(name)
    E("  s_cmp_ge_u32 s2, 256")
    E(f"  s_cbranch_scc1 {L}_done")
    E("  s_load_dwordx2 s[4:5], s[0:1], 0" if k1 else "  s_load_dwordx2 s[4:5], s[0:1], 64")
    E(f"  s_load_dwordx2 s[6:7], s[0:1], {8 if k1 else 32}")
    E("  s_load_dwordx4 s[36:39], s[0:1], 56")
    stamp(which)
    E("  s_and_b32 s40, s2, 7")
    E("  s_lshr_b32 s41, s2, 3")
    E("  s_lshr_b32 s24, s40, 1")
    E("  s_lshl_b32 s24, s24, 2")
    E("  s_and_b32 s42, s41, 3")
    E("  s_add_u32 s24, s24, s42")
    E("  s_and_b32 s25, s40, 1")
    E("  s_lshl_b32 s25, s25, 3")
    E("  s_lshr_b32 s42, s41, 2")
    E("  s_add_u32 s25, s25, s42")
    E("  v_lshrrev_b32 v1, 6, v0")
    E("  v_and_b32 v0, 63, v0")
    E("  v_readfirstlane_b32 s26, v1")
    E("  s_waitcnt lgkmcnt(0)")
    if k1: srd(8, 4, 2048 * 1280)
    else: srd(8, 4, 2048 * 1280, H_OFF)
    if k1: srd(12, 6, 640 * ldb)
    else: srd(12, 4, 16 * 163840, W1T_OFF)
    srd(16, 38, WS_BYTES)
    srd(20, 36, 256)
    E("  s_cmp_ge_u32 s26, 4")
    E(f"  s_cbranch_scc1 {L}_loader")
    if os.environ.get("PRIO"): E("  s_setprio 2")
    E("  s_lshr_b32 s27, s26, 1")
    E("  s_and_b32 s28, s26, 1")
    E(f"  v_and_b32 v{t0}, 15, v0")
    E(f"  v_lshrrev_b32 v{t1}, 4, v0")
    E(f"  v_and_b32 v{t2}, 7, v{t0}")
    E(f"  v_xor_b32 v{t2}, v{t2}, v{t1}")
    E(f"  v_lshlrev_b32 v{t2}, 4, v{t2}")
    E(f"  v_lshl_add_u32 v{t2}, v{t0}, 7, v{t2}")
    E("  s_lshl_b32 s40, s27, 13")
    E(f"  v_add_u32 v{V_RA}, s40, v{t2}")
    E(f"  v_xor_b32 v{V_RA+1}, 64, v{V_RA}")
    E(f"  v_lshrrev_b32 v{t2}, 2, v{t0}")
    E(f"  v_and_b32 v{t3}, 1, v{t1}")
    E(f"  v_lshl_add_u32 v{t3}, v{t3}, 2, v{t2}")
    E(f"  v_lshl_add_u32 v{t2}, v{t1}, 3, v{t2}")
    E(f"  v_lshlrev_b32 v{t2}, 8, v{t2}")
    E(f"  v_add_u32 v{t2}, 16384, v{t2}")
    E(f"  v_and_b32 v{t4}, 3, v{t0}")
    for t in range(4):
        u = V_E
        if k1:
            E("  s_mul_i32 s40, s28, 5")
            if t == 0:
                E(f"  v_add_u32 v{u}, s40, v{t4}")
            elif t == 1:
                E("  s_add_u32 s40, s40, 10")
                E(f"  v_add_u32 v{u}, s40, v{t4}")
            elif t == 3:
                E("  s_lshl_b32 s40, s28, 2")
                E("  s_add_u32 s40, s40, 20")
                E(f"  v_add_u32 v{u}, s40, v{t4}")
            else:
                E(f"  v_mul_u32_u24 v{u}, 10, v{t4}")
                E("  s_add_u32 s40, s40, 4")
                E(f"  v_add_u32 v{u}, s40, v{u}")
                E(f"  v_add_u32 v{u+1}, 26, v{t4}")
                E(f"  v_cmp_gt_u32 vcc, 2, v{t4}")
                E("  s_nop 1")
                E(f"  v_cndmask_b32 v{u}, v{u+1}, v{u}, vcc")
        else:
            E("  s_lshl_b32 s40, s28, 4")
            E(f"  s_add_u32 s40, s40, {4*t}")
            E(f"  v_add_u32 v{u}, s40, v{t4}")
        E(f"  v_lshrrev_b32 v{u+1}, 2, v{u}")
        E(f"  v_xor_b32 v{u+1}, v{u+1}, v{t3}")
        E(f"  v_lshl_add_u32 v{u+1}, v{u+1}, 5, v{t2}")
        E(f"  v_and_b32 v{u}, 3, v{u}")
        E(f"  v_lshl_add_u32 v{V_RB+t}, v{u}, 3, v{u+1}")
    for i in range(64):
        E(f"  v_mov_b32 v{V_ACC+i}, 0")
    E(f"  s_mov_b32 s52, {SLOT}")
    E(f"  v_lshl_or_b32 v{t3}, s26, 6, v0")
    if k1 and os.environ.get("CODEPF"):
        E("  s_lshr_b32 s40, s2, 3")
        E("  s_cmp_lg_u32 s40, 3")
        E("  s_cbranch_scc1 L1_nocpf")
        E("  s_getpc_b64 s[60:61]")
        E("L1_pc:")
        E("  s_add_u32 s60, s60, k2_attn_kernel-L1_pc")
        E("  s_addc_u32 s61, s61, 0")
        E(f"  v_lshlrev_b32 v{t4}, 7, v{t3}")
        E(f"  v_cmp_gt_u32 vcc, (Lcode_end-k2_attn_kernel), v{t4}")
        E("  s_and_saveexec_b64 s[62:63], vcc")
        E("  s_cbranch_execz L1_nocpf2")
        E(f"  global_load_dword v14, v{t4}, s[60:61]")
        E("L1_nocpf2:")
        E("  s_mov_b64 exec, -1")
        E("L1_nocpf:")
    if k1 and os.environ.get("PF1"):
        a, b, c = V_X, V_X + 1, V_X + 2
        PFR = [165, 166, 167, 15]
        E("  s_movk_i32 s41, 6554")
        E(f"  v_mul_u32_u24 v{a}, s41, v{t3}")
        E(f"  v_lshrrev_b32 v{a}, 16, v{a}")
        E(f"  v_mul_u32_u24 v{b}, 10, v{a}")
        E(f"  v_sub_u32 v{b}, v{t3}, v{b}")
        E("  s_movk_i32 s41, 10923")
        E("  s_and_b32 s40, s25, 7")
        E("  s_lshl_b32 s40, s40, 4")
        E("  s_lshl_b32 s42, s24, 7")
        E("  s_add_u32 s40, s40, s42")
        E(f"  v_add_u32 v{a}, s40, v{a}")
        E(f"  v_mul_u32_u24 v{a}, 1280, v{a}")
        E(f"  v_lshl_add_u32 v{a}, v{b}, 7, v{a}")
        E(f"  v_cmp_gt_u32 vcc, 160, v{t3}")
        E(f"  v_cndmask_b32 v164, -1, v{a}, vcc")
        E("  s_and_b32 s40, s24, 3")
        E("  s_mul_i32 s40, s40, 160")
        E("  s_mul_i32 s42, s25, 80")
        for r in range(4):
            E(f"  v_add_u32 v{c}, {256*r}, v{t3}")
            E(f"  v_mul_u32_u24 v{a}, s41, v{c}")
            E(f"  v_lshrrev_b32 v{a}, 16, v{a}")
            E(f"  v_mul_u32_u24 v{b}, 6, v{a}")
            E(f"  v_sub_u32 v{b}, v{c}, v{b}")
            E(f"  v_add_u32 v{a}, s40, v{a}")
            E(f"  v_mul_u32_u24 v{a}, 3840, v{a}")
            E(f"  v_add_u32 v{a}, s42, v{a}")
            E(f"  v_lshrrev_b32 v{V_X+3}, 1, v{b}")
            E(f"  v_add_u32 v{V_X+3}, 1, v{V_X+3}")
            E(f"  v_cmp_eq_u32 vcc, 3, v{V_X+3}")
            E(f"  v_cndmask_b32 v{V_X+3}, v{V_X+3}, 0, vcc")
            E(f"  v_mul_u32_u24 v{V_X+3}, 1280, v{V_X+3}")
            E(f"  v_add_u32 v{a}, v{a}, v{V_X+3}")
            E(f"  v_and_b32 v{b}, 1, v{b}")
            E(f"  v_mul_u32_u24 v{b}, 76, v{b}")
            E(f"  v_add_u32 v{a}, v{a}, v{b}")
            E(f"  v_cmp_gt_u32 vcc, 960, v{c}")
            E(f"  v_cndmask_b32 v{PFR[r]}, -1, v{a}, vcc")
    if k1:
        for i in range(4):
            E(f"  v_mov_b32 v{V_E+i}, 0")
        E(f"  v_lshlrev_b32 v{t4}, 4, v{t3}")
        E(f"  v_add_u32 v{t2}, {A_KV}, v{t4}")
        E(f"  ds_write_b128 v{t2}, {vr(V_E,4)}")
        E("  s_cmp_ge_u32 s2, 16")
        E(f"  s_cbranch_scc1 {L}_nozero")
        E("  s_mul_i32 s40, s2, 3360")
        E(f"  s_add_u32 s40, s40, {KV_OFF}")
        E(f"  v_cmp_gt_u32 vcc, 210, v{t3}")
        E("  s_and_saveexec_b64 s[46:47], vcc")
        E(f"  buffer_store_dwordx4 {vr(V_E,4)}, v{t4}, s[16:19], s40 offen sc0 sc1")
        E("  s_mov_b64 exec, s[46:47]")
        E("  s_waitcnt vmcnt(0)")
        E("  s_lshl_b32 s40, s2, 2")
        E(f"  v_mov_b32 v{t2}, s40")
        E(f"  v_mov_b32 v{t4}, 1")
        E("  s_mov_b64 exec, 1")
        E(f"  buffer_atomic_add v{t4}, v{t2}, s[20:23], 0 offen sc1")
        E("  s_mov_b64 exec, -1")
        E(f"{L}_nozero:")
    else:
        E("  s_cmp_ge_u32 s26, 2")
        E(f"  s_cbranch_scc1 {L}_nors")
        E("  s_lshl_b32 s40, s24, 13")
        E(f"  s_add_u32 s40, s40, {RS_OFF}")
        E(f"  v_lshlrev_b32 v{t4}, 6, v{t3}")
        for i in range(4):
            E(f"  buffer_load_dwordx4 {vr(V_X+4*i,4)}, v{t4}, s[16:19], s40 offen offset:{16*i}")
        E("  s_waitcnt vmcnt(0)")
        for i in range(1, 8):
            E(f"  v_add_f32 v{V_X}, v{V_X}, v{V_X+2*i}")
            E(f"  v_add_f32 v{V_X+1}, v{V_X+1}, v{V_X+2*i+1}")
        fin_stats(V_X, V_X + 1, t3, t4)
        E(f"  s_branch {L}_nors2")
        E(f"{L}_nors:")
        E("  s_lshl_b32 s40, s25, 13")
        E(f"  s_add_u32 s40, s40, {CSP_OFF-512}")
        E(f"  v_lshlrev_b32 v{t4}, 2, v{t3}")
        for i in range(16):
            E(f"  buffer_load_dword v{V_X+i}, v{t4}, s[16:19], s40 offen offset:{512*i if 512*i < 4096 else 0}" if i < 8 else f"  buffer_load_dword v{V_X+i}, v{t4}, s[16:19], s41 offen offset:{512*(i-8)}")
            if i == 0: E("  s_add_u32 s41, s40, 4096")
        E("  s_waitcnt vmcnt(0)")
        for i in range(1, 16):
            E(f"  v_add_f32 v{V_X}, v{V_X}, v{V_X+i}")
        E(f"  v_add_u32 v{t4}, {A_CS-512}, v{t4}")
        E(f"  ds_write_b32 v{t4}, v{V_X}")
        E(f"{L}_nors2:")
    E("  s_waitcnt lgkmcnt(0)")
    stamp(which)
    PFE = os.environ.get("PFE", "early") if os.environ.get("PF1") else "none"
    def pf_issue():
        E("  buffer_load_dword v164, v164, s[8:11], 0 offen")
        for r in (165, 166, 167, 15):
            E(f"  buffer_load_dword v{r}, v{r}, s[12:15], 0 offen")
    if k1 and PFE == "early": pf_issue()
    E("  s_barrier")
    if k1 and PFE == "late": pf_issue()
    stamp(which)
    def rd(base, kk):
        r = []
        for mt in range(4):
            r.append(f"  ds_read_b128 {vr(base+mt*4,4)}, v{V_RA+kk} offset:{mt*2048}")
        for t in range(4):
            for h in range(2):
                r.append(f"  ds_read_b64_tr_b16 {vr(base+16+t*4+h*2,2)}, v{V_RB+t} offset:{kk*8192+h*1024}")
        return r
    def mf(base):
        seq = []
        for mt in range(4):
            for t in range(4):
                a, b = vr(base + mt * 4, 4), vr(base + 16 + t * 4, 4)
                if swapped[t]: a, b = b, a
                seq.append(f"  v_mfma_f32_16x16x32_bf16 {vr(acc(mt,t),4)}, {a}, {b}, {vr(acc(mt,t),4)}")
        return seq
    for r in rd(V_X, 0): E(r)
    E("  s_mov_b32 s29, 0")
    E("  s_mov_b32 s30, 0")
    ST = V_E
    if k1:
        for i in range(16): E(f"  v_mov_b32 v{ST+i}, 0")
        for i in range(4): E(f"  v_mov_b32 v{ST+16+i}, 0x3f803f80")
        E(f"  v_and_b32 v{t0}, 15, v0")
        E(f"  v_cmp_lt_u32 s[48:49], 7, v{t0}")
        E("  s_cmp_eq_u32 s26, 1")
        E(f"  s_cbranch_scc1 {L}_loop1")
        E("  s_cmp_eq_u32 s26, 2")
        E(f"  s_cbranch_scc1 {L}_loop2")
        E("  s_cmp_eq_u32 s26, 3")
        E(f"  s_cbranch_scc1 {L}_loop3")
    def mfs(base, WM, WN):
        seq = mf(base)
        if not k1: return seq
        pre = []
        if WN == 1:
            pre = [f"  v_cndmask_b32 v{base+16+8+r}, v{base+16+8+r}, v{ST+16}, s[48:49]" for r in range(4)]
        ex = []
        for q in range(2):
            mt = 2 * WN + q
            ex.append(f"  v_mfma_f32_16x16x32_bf16 {vr(ST+4*q,4)}, {vr(base+4*mt,4)}, {vr(base+4*mt,4)}, {vr(ST+4*q,4)}")
            t = 2 * WM + q
            ex.append(None if False else (t, q))
        out_ = pre + seq[:8]
        for q in range(2):
            mt = 2 * WN + q
            out_.append(f"  v_mfma_f32_16x16x32_bf16 {vr(ST+4*q,4)}, {vr(base+4*mt,4)}, {vr(base+4*mt,4)}, {vr(ST+4*q,4)}")
        out_ += seq[8:]
        for q in range(2):
            t = 2 * WM + q
            out_.append(f"  v_mfma_f32_16x16x32_bf16 {vr(ST+8+4*q,4)}, {vr(ST+16,4)}, {vr(base+16+4*t,4)}, {vr(ST+8+4*q,4)}")
        return out_
    for w in range(4 if k1 else 1):
        WM, WN = w >> 1, w & 1
        E(f"{L}_loop{w}:")
        E(f"  s_add_u32 s30, s30, {SLOT}")
        E(f"  s_cmp_eq_u32 s30, {NS*SLOT}")
        E(f"  s_cselect_b32 s40, {-(NS-1)*SLOT}, s52")
        E("  s_cselect_b32 s30, 0, s30")
        E("  s_waitcnt lgkmcnt(0)")
        adds = [f"  v_add_u32 v{r}, s40, v{r}" for r in (V_RA, V_RA + 1, V_RB, V_RB + 1, V_RB + 2, V_RB + 3)]
        interleave(mfs(V_X, WM, WN), rd(V_Y, 1) + adds)
        E(f"  s_cmp_eq_u32 s29, {NST-1}")
        E(f"  s_cbranch_scc1 {L}_last{w}")
        E("  s_add_u32 s29, s29, 1")
        E("  s_waitcnt lgkmcnt(0)")
        E("  s_barrier")
        interleave(mfs(V_Y, WM, WN), rd(V_X, 0))
        E(f"  s_branch {L}_loop{w}")
        E(f"{L}_last{w}:")
        E("  s_waitcnt lgkmcnt(0)")
        for m in mfs(V_Y, WM, WN): E(m)
        if k1:
            E(f"  v_lshrrev_b32 v{t1}, 4, v0")
            E(f"  v_lshrrev_b32 v{t2}, 2, v{t0}")
            E(f"  v_cmp_eq_u32 s[50:51], v{t1}, v{t2}")
            E(f"  v_and_b32 v{t2}, 3, v{t0}")
            E("  s_nop 7")
            for q in range(2):
                E(f"  v_mov_b32 v{t3}, v{ST+4*q}")
                for r in range(1, 4):
                    E(f"  v_cmp_eq_u32 vcc, {r}, v{t2}")
                    E("  s_nop 1")
                    E(f"  v_cndmask_b32 v{t3}, v{t3}, v{ST+4*q+r}, vcc")
                E(f"  v_lshlrev_b32 v{t4}, 2, v{t0}")
                E(f"  v_add_u32 v{t4}, {A_SQ + (64*WM + 16*(2*WN+q))*4}, v{t4}")
                E("  s_mov_b64 exec, s[50:51]")
                E(f"  ds_write_b32 v{t4}, v{t3}")
                E("  s_mov_b64 exec, -1")
            for q in range(2):
                t = 2 * WM + q
                if t == 0: E(f"  v_lshlrev_b32 v{t4}, 2, v{t0}"); off = (20*WN)*4
                elif t == 1: E(f"  v_lshlrev_b32 v{t4}, 2, v{t0}"); off = (40+20*WN)*4
                elif t == 3: E(f"  v_lshlrev_b32 v{t4}, 2, v{t0}"); off = (80+16*WN)*4
                else:
                    E(f"  v_lshlrev_b32 v{t4}, 2, v{t0}")
                    E(f"  v_add_u32 v{t3}, {(20*WN+16)*4}, v{t4}")
                    E(f"  v_add_u32 v{t1}, {(52+20*WN)*4}, v{t4}")
                    E(f"  v_cmp_gt_u32 vcc, 4, v{t0}")
                    E("  s_nop 1")
                    E(f"  v_cndmask_b32 v{t3}, v{t1}, v{t3}, vcc")
                    E(f"  v_add_u32 v{t1}, {104*4}, v{t4}")
                    E(f"  v_cmp_gt_u32 vcc, 8, v{t0}")
                    E("  s_nop 1")
                    E(f"  v_cndmask_b32 v{t4}, v{t1}, v{t3}, vcc")
                    off = 0
                E(f"  v_add_u32 v{t4}, {A_CS+off}, v{t4}")
                if t == 2 and WN == 1:
                    E("  s_mov_b64 exec, 0xff")
                else:
                    E("  s_mov_b64 exec, 0xffff")
                E(f"  ds_write_b32 v{t4}, v{ST+8+4*q}")
                E("  s_mov_b64 exec, -1")
            if WN == 1:
                E(f"  v_lshrrev_b32 v{t1}, 4, v0")
                E(f"  v_lshlrev_b32 v{t4}, 4, v{t1}")
                E(f"  v_add_u32 v{t4}, {A_SUM + 64*WM*4}, v{t4}")
                E("  s_mov_b32 s50, 0x01000100")
                E("  s_mov_b32 s51, 0x01000100")
                E("  s_mov_b64 exec, s[50:51]")
                for mt in range(4):
                    E(f"  ds_write_b128 v{t4}, {vr(acc(mt,2),4)} offset:{64*mt}")
                E("  s_mov_b64 exec, -1")
            E(f"  s_branch {L}_fins")
    if not k1: stamp(which)
    if k1:
        E(f"{L}_fins:")
        stamp(which)
        E("  s_waitcnt lgkmcnt(0)")
        E("  s_barrier")
        E("  s_cmp_ge_u32 s26, 2")
        E(f"  s_cbranch_scc1 {L}_fb")
        E(f"  v_lshl_or_b32 v{t3}, s26, 6, v0")
        E(f"  v_lshlrev_b32 v{t4}, 2, v{t3}")
        E(f"  v_add_u32 v{t4}, {A_SUM}, v{t4}")
        E(f"  ds_read_b32 v{V_X}, v{t4}")
        E(f"  ds_read_b32 v{V_X+1}, v{t4} offset:512")
        E("  s_waitcnt lgkmcnt(0)")
        fin_stats(V_X, V_X + 1, t3, t4)
        E("  s_waitcnt lgkmcnt(0)")
        E(f"{L}_fb:")
        E("  s_barrier")
    stamp(which)
    E("  s_mov_b32 s45, 0x3fb8aa3b")
    pads_on()
    if k1: k1_epilogue()
    else: k3_epilogue()
    pads_off()
    stamp(which)
    stamp_flush(which, 36)
    rt_end(which)
    E(f"  s_branch {L}_done")
    E(f"{L}_loader:")
    E("  s_sub_u32 s27, s26, 4")
    LA, LB = 2, 4
    E(f"  v_lshrrev_b32 v{t0}, 3, v0")
    E(f"  v_and_b32 v{t1}, 7, v0")
    E(f"  v_xor_b32 v{t1}, v{t1}, v{t0}")
    E(f"  v_lshlrev_b32 v{t1}, 4, v{t1}")
    E("  s_lshl_b32 s40, s24, 7")
    E("  s_lshl_b32 s41, s27, 4")
    E("  s_add_u32 s40, s40, s41")
    E(f"  v_add_u32 v{t0}, s40, v{t0}")
    E("  s_movk_i32 s41, 1280")
    E(f"  v_mad_u32_u24 v{LA}, v{t0}, s41, v{t1}")
    E(f"  v_add_u32 v{LA+1}, {8*1280-1024}, v{LA}")
    E(f"  v_lshrrev_b32 v{t0}, 4, v0")
    E(f"  v_and_b32 v{t1}, 15, v0")
    E("  s_lshl_b32 s40, s27, 3")
    E(f"  v_add_u32 v{t4}, s40, v{t0}")
    E("  s_and_b32 s40, s27, 1")
    E("  s_lshl_b32 s40, s40, 2")
    E(f"  v_add_u32 v{t0}, s40, v{t0}")
    E(f"  v_lshrrev_b32 v{t2}, 1, v{t1}")
    E(f"  v_xor_b32 v{t2}, v{t2}, v{t0}")
    E(f"  v_lshlrev_b32 v{t2}, 1, v{t2}")
    E(f"  v_and_b32 v{t3}, 1, v{t1}")
    E(f"  v_or_b32 v{t2}, v{t2}, v{t3}")
    if k1:
        E(f"  v_min_u32 v{t2}, 14, v{t2}")
        E(f"  v_lshlrev_b32 v{t3}, 4, v{t2}")
        E(f"  v_add_u32 v20, 1280, v{t3}")
        E(f"  v_add_u32 v21, {2560-80}, v{t3}")
        E(f"  v_subrev_u32 v22, 160, v{t3}")
        E(f"  v_cmp_gt_u32 vcc, 5, v{t2}")
        E("  s_nop 1")
        E("  v_cndmask_b32 v21, v21, v20, vcc")
        E(f"  v_cmp_gt_u32 vcc, 10, v{t2}")
        E("  s_nop 1")
        E(f"  v_cndmask_b32 v{t3}, v22, v21, vcc")
        E("  s_mul_i32 s42, s25, 80")
    else:
        E(f"  v_lshlrev_b32 v{t3}, 4, v{t2}")
        E("  s_mul_i32 s42, s25, 224")
    if k1:
        E(f"  v_add_u32 v{t3}, s42, v{t3}")
        E(f"  s_movk_i32 s41, {ldb}")
        E(f"  v_mad_u32_u24 v{LB}, v{t4}, s41, v{t3}")
        E(f"  v_add_u32 v{LB+1}, {4*ldb-1024}, v{LB}")
    else:
        E("  s_mul_i32 s42, s25, 163840")
        E("  s_lshl_b32 s41, s27, 11")
        E("  s_add_u32 s42, s42, s41")
        E(f"  v_lshlrev_b32 v{LB}, 4, v0")
        E(f"  v_add_u32 v{LB}, s42, v{LB}")
        E(f"  v_mov_b32 v{LB+1}, v{LB}")
    E("  s_lshl_b32 s34, s27, 11")
    E("  s_mov_b32 s31, 0")
    E("  s_mov_b32 s32, 0")
    E("  s_mov_b32 s33, 0")
    ROT = k1 and not os.environ.get("NOROT")
    if ROT:
        E("  s_mul_i32 s40, s24, 3")
        E("  s_add_u32 s40, s40, s25")
        E("  s_mul_i32 s41, s40, 205")
        E("  s_lshr_b32 s41, s41, 11")
        E("  s_mul_i32 s41, s41, 10")
        E("  s_sub_u32 s40, s40, s41")
        E("  s_lshl_b32 s32, s40, 7")
        E(f"  s_mul_i32 s33, s40, {64*ldb}")
    def dma_stage():
        E("  s_add_u32 s35, s31, s34")
        E("  s_mov_b32 m0, s35")
        E("  s_add_u32 s35, s35, 16384")
        for j in range(2):
            E(f"  buffer_load_dwordx4 v{LA+j}, s[8:11], s32 offen offset:{j*1024} lds")
        E("  s_mov_b32 m0, s35")
        E("  s_add_u32 s32, s32, 128")
        for j in range(2):
            E(f"  buffer_load_dwordx4 v{LB+j}, s[12:15], s33 offen offset:{j*1024} lds")
        E(f"  s_add_u32 s33, s33, {64*ldb if k1 else 16384}")
        if ROT:
            E("  s_cmp_eq_u32 s32, 1280")
            E("  s_cselect_b32 s32, 0, s32")
            E("  s_cselect_b32 s33, 0, s33")
        E(f"  s_add_u32 s31, s31, {SLOT}")
        E(f"  s_cmp_eq_u32 s31, {NS*SLOT}")
        E("  s_cselect_b32 s31, 0, s31")
    for s in range(NS):
        dma_stage()
    pf_enter(L, 8, "s27")
    E(f"  s_waitcnt vmcnt({4*(NS-1)})")
    E("  s_barrier")
    NX = 0
    for sv in range(NST - 1):
        issued = min(NST - 1, sv + NS - 1)
        extra = NX if sv > NST - NS else 0
        E(f"  s_waitcnt vmcnt({4*(issued-(sv+1)) + NX})")
        E("  s_barrier")
        if sv + NS < NST:
            dma_stage()
        if k1 and sv + NS == NST - 1:
            NX = relayout_loads()
    if k1:
        relayout_finish()
    E(f"{L}_done:")
    E("  s_endpgm")

RL_SA, RL_DA, RL_DT = 16, 24, 32
def relayout_loads():
    E("  s_load_dwordx2 s[64:65], s[0:1], 32")
    E("  s_load_dwordx2 s[66:67], s[0:1], 40")
    E("  s_load_dwordx2 s[68:69], s[0:1], 16")
    SA_, DA_, DT = RL_SA, RL_DA, RL_DT
    a, b, c, d, tid = 60, 61, 62, 63, 59
    E(f"  v_lshl_or_b32 v{tid}, s27, 6, v0")
    for i in range(20): E(f"  v_mov_b32 v{DT+i}, 0")
    E("  s_lshr_b32 s40, s2, 4")
    E("  s_and_b32 s41, s2, 15")
    E("  s_mul_i32 s41, s41, 40")
    E("  s_mul_i32 s42, s40, 224")
    E("  s_movk_i32 s43, 3456")
    for r in range(2):
        E(f"  v_add_u32 v{a}, {512*r}, v{tid}")
        E(f"  v_lshrrev_b32 v{b}, 4, v{a}")
        E(f"  v_add_u32 v{b}, s41, v{b}")
        E(f"  v_and_b32 v{c}, 15, v{a}")
        E(f"  v_bfe_u32 v{d}, v{b}, 3, 1")
        E(f"  v_lshlrev_b32 v{d}, 2, v{d}")
        E(f"  v_and_or_b32 v{d}, v{b}, 3, v{d}")
        E(f"  v_lshrrev_b32 v{DA_+r}, 1, v{c}")
        E(f"  v_xor_b32 v{d}, v{d}, v{DA_+r}")
        E(f"  v_and_b32 v{DA_+r}, 1, v{c}")
        E(f"  v_lshl_or_b32 v{d}, v{d}, 1, v{DA_+r}")
        E(f"  v_lshlrev_b32 v{DA_+r}, 8, v{b}")
        E(f"  v_lshl_add_u32 v{DA_+r}, v{d}, 4, v{DA_+r}")
        E(f"  v_lshl_add_u32 v{d}, v{c}, 4, s42")
        E(f"  v_mad_u32_u24 v{SA_+r}, v{b}, s43, v{d}")
        E(f"  v_cmp_gt_u32 s[{80+2*r}:{81+2*r}], 14, v{c}")
        E(f"  v_cmp_gt_u32 vcc, s43, v{d}")
        E(f"  s_and_b64 s[{80+2*r}:{81+2*r}], s[{80+2*r}:{81+2*r}], vcc")
        E(f"  v_cmp_gt_u32 vcc, 640, v{a}")
        E(f"  s_mov_b64 s[{70+2*r}:{71+2*r}], vcc")
        E(f"  s_and_b64 s[{80+2*r}:{81+2*r}], s[{80+2*r}:{81+2*r}], vcc")
    E("  s_lshr_b32 s40, s2, 5")
    E("  s_and_b32 s41, s2, 31")
    E("  s_movk_i32 s43, 6554")
    E("  s_mul_i32 s42, s40, 160")
    for r in range(3):
        wo = r == 2
        q = 2 + r
        E(f"  v_add_u32 v{a}, {0 if wo else 512*r}, v{tid}")
        E(f"  v_mul_u32_u24 v{b}, s43, v{a}")
        E(f"  v_lshrrev_b32 v{b}, 16, v{b}")
        E(f"  v_mul_u32_u24 v{c}, 10, v{b}")
        E(f"  v_sub_u32 v{c}, v{a}, v{c}")
        E(f"  s_mul_i32 s47, s41, {20 if wo else 54}")
        E(f"  v_add_u32 v{b}, s47, v{b}")
        E(f"  v_lshlrev_b32 v{c}, 4, v{c}")
        E(f"  v_mul_u32_u24 v{SA_+q}, 1280, v{b}")
        E(f"  v_add_u32 v{SA_+q}, v{SA_+q}, v{c}")
        E(f"  v_add_u32 v{SA_+q}, s42, v{SA_+q}")
        if wo:
            E(f"  v_mul_u32_u24 v{DA_+q}, 160, v{b}")
        else:
            E(f"  v_and_b32 v{d}, 0x13, v{b}")
            E(f"  v_bfe_u32 v{DA_+q}, v{b}, 2, 1")
            E(f"  v_lshl_or_b32 v{d}, v{DA_+q}, 3, v{d}")
            E(f"  v_bfe_u32 v{DA_+q}, v{b}, 3, 1")
            E(f"  v_lshl_or_b32 v{d}, v{DA_+q}, 2, v{d}")
            E(f"  v_mul_u32_u24 v{d}, 160, v{d}")
            E(f"  v_lshrrev_b32 v{DA_+q}, 5, v{b}")
            E(f"  v_mul_u32_u24 v{DA_+q}, 5120, v{DA_+q}")
            E(f"  v_add_u32 v{DA_+q}, v{DA_+q}, v{d}")
        E(f"  v_add_u32 v{DA_+q}, v{DA_+q}, v{c}")
        E(f"  v_cmp_gt_u32 vcc, {200 if wo else 540}, v{a}")
        E(f"  s_mov_b64 s[{70+2*q}:{71+2*q}], vcc")
    E("  s_waitcnt lgkmcnt(0)")
    for (dd, lo, nb) in [(84, 64, 640 * 3456), (88, 66, 1728 * 1280), (92, 68, 640 * 1280)]:
        srd(dd, lo, nb)
    for r in range(5):
        q = 84 if r < 2 else (88 if r < 4 else 92)
        mk = 80 + 2 * r if r < 2 else 70 + 2 * r
        E(f"  v_cndmask_b32 v{SA_+r}, 0, v{SA_+r}, s[{mk}:{mk+1}]")
        E(f"  buffer_load_dwordx4 {vr(DT+4*r,4)}, v{SA_+r}, s[{q}:{q+3}], 0 offen")
    return 5

def relayout_finish():
    SA_, DA_, DT = RL_SA, RL_DA, RL_DT
    srd(16, 38, WS_BYTES)
    E("  s_lshr_b32 s40, s2, 5")
    E("  s_lshr_b32 s41, s2, 4")
    E("  s_mul_i32 s41, s41, 163840")
    E(f"  s_add_u32 s41, s41, {W1T_OFF}")
    E("  s_mul_i32 s42, s40, 276480")
    E(f"  s_add_u32 s42, s42, {W2T_OFF}")
    E("  s_mul_i32 s43, s40, 102400")
    E(f"  s_add_u32 s43, s43, {WOT_OFF}")
    E("  s_waitcnt vmcnt(0)")
    for r in range(5):
        so = "s41" if r < 2 else ("s42" if r < 4 else "s43")
        E(f"  s_mov_b64 exec, s[{70+2*r}:{71+2*r}]")
        E(f"  s_cbranch_execz LRS{r}")
        E(f"  buffer_store_dwordx4 {vr(DT+4*r,4)}, v{DA_+r}, s[16:19], {so} offen{os.environ.get('RLW', ' sc0 sc1')}")
        E(f"LRS{r}:")
    E("  s_mov_b64 exec, -1")
    for i in range(4):
        E(f"  v_cndmask_b32 v{DT+4+i}, 0, v{DT+4+i}, s[72:73]")
    C = 64
    for i in range(4):
        for r in range(2):
            x = DT + 4 * r + i
            E(f"  v_lshlrev_b32 v60, 16, v{x}")
            E(f"  v_and_b32 v61, 0xffff0000, v{x}")
            if r == 0:
                E(f"  v_mov_b32 v{C+2*i}, v60")
                E(f"  v_mov_b32 v{C+2*i+1}, v61")
            else:
                E(f"  v_pk_add_f32 {vr(C+2*i,2)}, {vr(C+2*i,2)}, v[60:61]")
    for c in range(8):
        r = C + c
        E(f"  v_mov_b32 v62, v{r}")
        E("  s_nop 1")
        E(f"  v_permlane32_swap_b32 v{r}, v62")
        E("  s_nop 1")
        E(f"  v_add_f32 v{r}, v{r}, v62")
        E(f"  v_mov_b32 v62, v{r}")
        E("  s_nop 1")
        E(f"  v_permlane16_swap_b32 v{r}, v62")
        E("  s_nop 1")
        E(f"  v_add_f32 v{r}, v{r}, v62")
    E("  v_and_b32 v60, 15, v0")
    E("  v_lshlrev_b32 v60, 5, v60")
    E("  s_lshl_b32 s40, s27, 9")
    E(f"  s_add_u32 s40, s40, {A_CP}")
    E("  v_add_u32 v60, s40, v60")
    E(f"  ds_write_b128 v60, {vr(C,4)}")
    E(f"  ds_write_b128 v60, {vr(C+4,4)} offset:16")
    E("  s_waitcnt lgkmcnt(0)")
    E("  s_barrier")
    E("  s_cmp_ge_u32 s27, 2")
    E("  s_cbranch_scc1 L1_rf2")
    E("  v_lshl_or_b32 v60, s27, 6, v0")
    E("  v_lshlrev_b32 v60, 2, v60")
    E(f"  v_add_u32 v61, {A_CP}, v60")
    for q in range(8):
        E(f"  ds_read_b32 v{40+q}, v61 offset:{512*q}")
    E("  s_waitcnt lgkmcnt(0)")
    for q in range(1, 8):
        E(f"  v_add_f32 v40, v40, v{40+q}")
    E("  s_lshl_b32 s40, s2, 9")
    E(f"  s_add_u32 s40, s40, {CSP_OFF}")
    E("  buffer_store_dword v40, v60, s[16:19], s40 offen")
    E("L1_rf2:")
    E("  s_barrier")

def fin_stats(vs, vq, vrow, tmp):
    E("  s_mov_b32 s40, 0x3acccccd")
    E(f"  v_mul_f32 v{vs}, s40, v{vs}")
    E(f"  v_mul_f32 v{vq}, s40, v{vq}")
    E(f"  v_fma_f32 v{vq}, -v{vs}, v{vs}, v{vq}")
    E(f"  v_max_f32 v{vq}, 0, v{vq}")
    E(f"  v_add_f32 v{vq}, 0x3727c5ac, v{vq}")
    E(f"  v_rsq_f32 v{vq}, v{vq}")
    E(f"  v_lshlrev_b32 v{tmp}, 2, v{vrow}")
    E(f"  v_add_u32 v{tmp}, {A_MEAN}, v{tmp}")
    E(f"  ds_write_b32 v{tmp}, v{vs}")
    E(f"  ds_write_b32 v{tmp}, v{vq} offset:512")

def k1_epilogue():
    t0, t1, t2, t3, t4 = V_T, V_T + 1, V_T + 2, V_T + 3, V_T + 4
    CSN, CSV3, MN, RN, MS, RS = 2, 16, 20, 36, 52, 53
    pk = [64, 72, 144, 152]
    TM = 160
    E("  s_waitcnt vmcnt(0)")
    E(f"  v_and_b32 v{t0}, 15, v0")
    E(f"  v_lshrrev_b32 v{t1}, 4, v0")
    E("  s_lshl_b32 s40, s27, 8")
    E(f"  s_add_u32 s40, s40, {A_MEAN}")
    E(f"  v_lshl_add_u32 v{t2}, v{t0}, 2, s40")
    E(f"  v_lshl_add_u32 v{t3}, v{t1}, 4, s40")
    for mt in range(4):
        E(f"  ds_read_b128 {vr(MN+4*mt,4)}, v{t3} offset:{64*mt}")
        E(f"  ds_read_b128 {vr(RN+4*mt,4)}, v{t3} offset:{512+64*mt}")
        E(f"  ds_read_b32 v{MS+2*mt}, v{t2} offset:{64*mt}")
        E(f"  ds_read_b32 v{RS+2*mt}, v{t2} offset:{512+64*mt}")
    E("  s_mul_i32 s41, s28, 80")
    E(f"  s_add_u32 s41, s41, {A_CS}")
    E(f"  v_lshl_add_u32 v{t2}, v{t0}, 2, s41")
    E(f"  ds_read_b32 v{CSN}, v{t2}")
    E(f"  ds_read_b32 v{CSN+2}, v{t2} offset:160")
    E(f"  v_add_u32 v{t3}, 64, v{t2}")
    E(f"  v_add_u32 v{t4}, {52*4}, v{t2}")
    E(f"  v_cmp_gt_u32 vcc, 4, v{t0}")
    E("  s_nop 1")
    E(f"  v_cndmask_b32 v{t3}, v{t4}, v{t3}, vcc")
    E(f"  v_lshlrev_b32 v{t4}, 2, v{t0}")
    E(f"  v_add_u32 v{t4}, {A_CS+104*4}, v{t4}")
    E(f"  v_cmp_gt_u32 vcc, 8, v{t0}")
    E("  s_nop 1")
    E(f"  v_cndmask_b32 v{t3}, v{t4}, v{t3}, vcc")
    E(f"  ds_read_b32 v{CSN+4}, v{t3}")
    E("  s_lshl_b32 s41, s28, 6")
    E(f"  s_add_u32 s41, s41, {A_CS+320}")
    E(f"  v_lshl_add_u32 v{t3}, v{t1}, 4, s41")
    E(f"  ds_read_b128 {vr(CSV3,4)}, v{t3}")
    E("  s_mov_b32 s46, 0x358637bd")
    E(f"  v_and_b32 v{t2}, 12, v{t0}")
    E(f"  v_cmp_eq_u32 s[48:49], 4, v{t2}")
    E("  s_waitcnt lgkmcnt(0)")
    E("  s_mov_b32 s54, s45")
    E("  s_mov_b32 s55, s45")
    E("  s_mov_b32 s56, s46")
    E("  s_mov_b32 s57, s46")
    def phi4(a):
        for r in range(4): E(f"  v_min_f32 v{TM+r}, 0, v{a+r}")
        for p in range(2): E(f"  v_pk_mul_f32 {vr(TM+2*p,2)}, {vr(TM+2*p,2)}, s[54:55]")
        for r in range(4): E(f"  v_exp_f32 v{TM+r}, v{TM+r}")
        for r in range(4): E(f"  v_max_f32 v{a+r}, 0, v{a+r}")
        for p in range(2): E(f"  v_pk_add_f32 {vr(TM+2*p,2)}, {vr(TM+2*p,2)}, s[56:57]")
        for p in range(2): E(f"  v_pk_add_f32 {vr(a+2*p,2)}, {vr(a+2*p,2)}, {vr(TM+2*p,2)}")
    for mt in range(4):
        for t in range(3):
            a = acc(mt, t)
            for p in range(2):
                E(f"  v_pk_fma_f32 {vr(a+2*p,2)}, {vr(MN+4*mt+2*p,2)}, {vr(CSN+2*t,2)}, {vr(a+2*p,2)} op_sel_hi:[1,0,1] neg_lo:[1,0,0] neg_hi:[1,0,0]")
            for p in range(2):
                E(f"  v_pk_mul_f32 {vr(a+2*p,2)}, {vr(a+2*p,2)}, {vr(RN+4*mt+2*p,2)}")
        a = acc(mt, 3)
        for p in range(2):
            E(f"  v_pk_fma_f32 {vr(a+2*p,2)}, {vr(CSV3+2*p,2)}, {vr(MS+2*mt,2)}, {vr(a+2*p,2)} op_sel_hi:[1,0,1] neg_lo:[0,1,0] neg_hi:[0,1,0]")
        for p in range(2):
            E(f"  v_pk_mul_f32 {vr(a+2*p,2)}, {vr(a+2*p,2)}, {vr(MS+2*mt,2)} op_sel:[0,1] op_sel_hi:[1,1]")
        phi4(acc(mt, 0)); phi4(acc(mt, 3))
        a = acc(mt, 2)
        for r in range(4): E(f"  v_mov_b32 v{TM+4+r}, v{a+r}")
        phi4(a)
        for r in range(4): E(f"  v_cndmask_b32 v{a+r}, v{a+r}, v{TM+4+r}, s[48:49]")
        for t in range(4):
            a = acc(mt, t)
            E(f"  v_cvt_pk_bf16_f32 v{pk[t]+2*mt}, v{a}, v{a+1}")
            E(f"  v_cvt_pk_bf16_f32 v{pk[t]+2*mt+1}, v{a+2}, v{a+3}")
    E("  s_lshl_b32 s40, s24, 1")
    E("  s_add_u32 s40, s40, s27")
    E("  s_lshl_b32 s40, s40, 2")
    E("  s_lshr_b32 s41, s25, 2")
    E("  s_add_u32 s40, s40, s41")
    E("  s_mul_i32 s40, s40, 21504")
    E("  s_and_b32 s41, s25, 3")
    E("  s_mul_i32 s41, s41, 80")
    E("  s_add_u32 s41, s41, s40")
    E("  s_movk_i32 s42, 336")
    E(f"  v_mul_u32_u24 v{t2}, s42, v{t0}")
    E(f"  v_lshl_add_u32 v{t2}, v{t1}, 3, v{t2}")
    E("  s_lshl_b32 s43, s28, 5")
    E("  s_add_u32 s43, s43, s41")
    for mt in range(4):
        E(f"  s_add_u32 s47, s43, {mt*16*336+PQT_OFF}")
        E(f"  buffer_store_dwordx2 {vr(pk[3]+2*mt,2)}, v{t2}, s[16:19], s47 offen{WT('3')}")
    M = V_ACC
    ON = TM
    for i in range(4):
        E(f"  v_mov_b32 v{ON+i}, 0x3f803f80")
    E("  s_nop 1")
    for p in range(2):
        P0, V1, X2 = pk[0] + 4 * p, pk[1] + 4 * p, pk[2] + 4 * p
        for i, (a, b) in enumerate(((P0, V1), (P0, X2), (X2, V1), (X2, X2), (P0, ON), (X2, ON))):
            c = "0" if p == 0 else vr(M + 4 * i, 4)
            E(f"  v_mfma_f32_16x16x32_bf16 {vr(M+4*i,4)}, {vr(a,4)}, {vr(b,4)}, {c}")
    E("  s_cmp_eq_u32 s28, 1")
    E("  s_cbranch_scc1 L1_noq2")
    E(f"  v_lshlrev_b32 v{t3}, 2, v{t1}")
    E(f"  v_mul_u32_u24 v{t3}, s42, v{t3}")
    E(f"  v_lshl_add_u32 v{t3}, v{t0}, 1, v{t3}")
    E(f"  v_cmp_lt_u32 vcc, 7, v{t0}")
    E("  s_and_saveexec_b64 s[50:51], vcc")
    for mt in range(4):
        E(f"  s_add_u32 s47, s41, {mt*16*336+PQT_OFF+64-16}")
        E(f"  buffer_store_short v{pk[2]+2*mt}, v{t3}, s[16:19], s47 offen")
        E(f"  buffer_store_short_d16_hi v{pk[2]+2*mt}, v{t3}, s[16:19], s47 offen offset:336")
        E(f"  buffer_store_short v{pk[2]+2*mt+1}, v{t3}, s[16:19], s47 offen offset:672")
        E(f"  buffer_store_short_d16_hi v{pk[2]+2*mt+1}, v{t3}, s[16:19], s47 offen offset:1008")
    E("  s_mov_b64 exec, s[50:51]")
    E("L1_noq2:")
    E("  s_lshl_b32 s40, s25, 2")
    E(f"  v_mov_b32 v{t3}, s40")
    E("  s_mul_i32 s40, s28, 1680")
    E(f"  s_add_u32 s40, s40, {A_KV}")
    E(f"  v_mul_u32_u24 v{t2}, 80, v{t0}")
    E(f"  v_lshl_add_u32 v{t2}, v{t1}, 4, v{t2}")
    E(f"  v_add_u32 v{t2}, s40, v{t2}")
    E("  s_lshl_b32 s41, s27, 12")
    E(f"  v_add_u32 v{t2}, s41, v{t2}")
    E("  s_nop 4")
    E(f"  ds_write_b128 v{t2}, {vr(M,4)}")
    E("  s_mov_b64 exec, s[48:49]")
    E(f"  ds_write_b128 v{t2}, {vr(M+4,4)} offset:960")
    E("  s_mov_b64 exec, 0xffff")
    E(f"  ds_write_b128 v{t2}, {vr(M+8,4)} offset:64")
    E("  s_mov_b64 exec, 0xf0")
    E(f"  ds_write_b128 v{t2}, {vr(M+12,4)} offset:{960+64}")
    E("  s_mov_b32 s50, 0x00010001")
    E("  s_mov_b32 s51, 0x00010001")
    E("  s_mov_b64 exec, s[50:51]")
    E(f"  ds_write_b128 v{t2}, {vr(M+16,4)} offset:1600")
    E("  s_mov_b64 exec, 1")
    E(f"  ds_write_b128 v{t2}, {vr(M+20,4)} offset:{1600+64}")
    stamp(1)
    E("  s_cmp_lg_u32 s26, 0")
    E("  s_cbranch_scc1 L1_nopoll")
    E("L1_poll:")
    E(f"  buffer_load_dword v{t4}, v{t3}, s[20:23], 0 offen sc0 sc1")
    E("  s_waitcnt vmcnt(0)")
    E(f"  v_readfirstlane_b32 s41, v{t4}")
    E("  s_nop 3")
    E("  s_cmp_lt_u32 s41, 4")
    E("  s_cbranch_scc1 L1_poll")
    E("L1_nopoll:")
    E("  s_mov_b64 exec, -1")
    E("  s_waitcnt lgkmcnt(0)")
    E("  s_barrier")
    stamp(1)
    E(f"  v_lshl_or_b32 v{t3}, s26, 6, v0")
    E(f"  v_lshlrev_b32 v{t3}, 2, v{t3}")
    E(f"  v_add_u32 v{t4}, {A_KV}, v{t3}")
    for j in range(4):
        E(f"  ds_read_b32 v{TM+j}, v{t4} offset:{1024*j}")
        E(f"  ds_read_b32 v{TM+4+j}, v{t4} offset:{4096+1024*j}")
    E("  s_mul_i32 s40, s25, 3360")
    E(f"  s_add_u32 s40, s40, {KV_OFF}")
    E("  s_waitcnt lgkmcnt(0)")
    for j in range(4):
        E(f"  v_add_f32 v{TM+j}, v{TM+j}, v{TM+4+j}")
    for j in range(3):
        E(f"  buffer_atomic_add_f32 v{TM+j}, v{t3}, s[16:19], s40 offen offset:{1024*j}")
    E(f"  v_cmp_gt_u32 vcc, {3360-3072}, v{t3}")
    E("  s_and_saveexec_b64 s[50:51], vcc")
    E("  s_cbranch_execz L1_fin")
    E(f"  buffer_atomic_add_f32 v{TM+3}, v{t3}, s[16:19], s40 offen offset:3072")
    E("L1_fin:")

def k3_epilogue():
    t0, t1, t2, t3, t4 = V_T, V_T + 1, V_T + 2, V_T + 3, V_T + 4
    MS, RS, CSV, PK, TM = 16, 24, 32, 48, 144
    E(f"  v_and_b32 v{t0}, 15, v0")
    E(f"  v_lshrrev_b32 v{t1}, 4, v0")
    E("  s_lshl_b32 s40, s27, 8")
    E(f"  s_add_u32 s40, s40, {A_MEAN}")
    E(f"  v_lshl_add_u32 v{t2}, v{t0}, 2, s40")
    for mt in range(4):
        E(f"  ds_read_b32 v{MS+2*mt}, v{t2} offset:{64*mt}")
        E(f"  ds_read_b32 v{RS+2*mt}, v{t2} offset:{512+64*mt}")
    E("  s_lshl_b32 s41, s28, 8")
    E(f"  s_add_u32 s41, s41, {A_CS}")
    E(f"  v_lshl_add_u32 v{t3}, v{t1}, 4, s41")
    for t in range(4):
        E(f"  ds_read_b128 {vr(CSV+4*t,4)}, v{t3} offset:{64*t}")
    E(f"  v_lshrrev_b32 v{t2}, 2, v{t0}")
    E(f"  v_sub_u32 v{t2}, 0, v{t2}")
    E(f"  v_lshrrev_b32 v{t4}, 1, v{t1}")
    E(f"  v_xor_b32 v{t2}, v{t2}, v{t4}")
    E(f"  v_and_b32 v{t2}, 3, v{t2}")
    E(f"  v_lshlrev_b32 v{t2}, 4, v{t2}")
    E(f"  v_lshl_add_u32 v{t2}, v{t0}, 6, v{t2}")
    E(f"  v_and_b32 v{t4}, 1, v{t1}")
    E("  s_lshl_b32 s40, s24, 1")
    E("  s_add_u32 s40, s40, s27")
    E("  s_mul_i32 s40, s40, 221184")
    E(f"  s_add_u32 s40, s40, {H1_OFF}")
    E("  s_mul_i32 s41, s25, 224")
    E("  s_lshl_b32 s43, s28, 7")
    E("  s_add_u32 s43, s43, s41")
    E("  s_mov_b32 s50, s45")
    E("  s_mov_b32 s51, s45")
    E("  s_waitcnt lgkmcnt(0)")
    for tp in range(2):
        for mt in range(4):
            for u in range(2):
                t = 2 * tp + u
                a = acc(mt, t)
                tm = TM + 4 * u
                for p in range(2):
                    E(f"  v_pk_fma_f32 {vr(a+2*p,2)}, {vr(CSV+4*t+2*p,2)}, {vr(MS+2*mt,2)}, {vr(a+2*p,2)} op_sel_hi:[1,0,1] neg_lo:[0,1,0] neg_hi:[0,1,0]")
                for p in range(2):
                    E(f"  v_pk_mul_f32 {vr(a+2*p,2)}, {vr(a+2*p,2)}, {vr(RS+2*mt,2)} op_sel_hi:[1,0]")
                for p in range(2):
                    E(f"  v_pk_mul_f32 {vr(tm+2*p,2)}, {vr(a+2*p,2)}, s[50:51]")
                for r in range(4): E(f"  v_exp_f32 v{tm+r}, -v{tm+r}")
                for p in range(2):
                    E(f"  v_pk_add_f32 {vr(tm+2*p,2)}, {vr(tm+2*p,2)}, 1.0 op_sel_hi:[1,0]")
                for r in range(4): E(f"  v_rcp_f32 v{tm+r}, v{tm+r}")
                E("  s_nop 0")
                for p in range(2): E(f"  v_pk_mul_f32 {vr(a+2*p,2)}, {vr(a+2*p,2)}, {vr(tm+2*p,2)}")
                d = PK + (tp * 4 + mt) * 4 + 2 * u
                E(f"  v_cvt_pk_bf16_f32 v{d}, v{a}, v{a+1}")
                E(f"  v_cvt_pk_bf16_f32 v{d+1}, v{a+2}, v{a+3}")
            d = PK + (tp * 4 + mt) * 4
            E("  s_nop 1")
            E(f"  v_permlane16_swap_b32 v{d}, v{d+2}")
            E(f"  v_permlane16_swap_b32 v{d+1}, v{d+3}")
        E(f"  s_add_u32 s46, s43, {64*tp}")
        E(f"  v_lshl_add_u32 v{t3}, v{t4}, 5, s46")
        E(f"  v_lshrrev_b32 v{TM+8}, 6, v{t3}")
        E(f"  v_lshlrev_b32 v{TM+8}, 12, v{TM+8}")
        E(f"  v_and_b32 v{TM+9}, 32, v{t3}")
        E(f"  v_xor_b32 v{TM+9}, v{TM+9}, v{t2}")
        E(f"  v_add_u32 v{TM+8}, v{TM+8}, v{TM+9}")
        E(f"  v_cmp_gt_u32 vcc, 3456, v{t3}")
        E(f"  v_subrev_u32 v{TM+9}, s41, v{t3}")
        E(f"  v_cmp_gt_u32 s[46:47], s42, v{TM+9}" if False else "  s_mov_b64 s[48:49], vcc")
        E(f"  v_cmp_gt_u32 vcc, 224, v{TM+9}")
        E("  s_and_b64 vcc, vcc, s[48:49]")
        E(f"  v_mov_b32 v{TM+9}, 0x7fffffff")
        E(f"  v_cndmask_b32 v{TM+8}, v{TM+9}, v{TM+8}, vcc")
        for mt in range(4):
            d = PK + (tp * 4 + mt) * 4
            E(f"  buffer_store_dwordx4 {vr(d,4)}, v{TM+8}, s[16:19], s40 offen offset:{mt*1024}{WT('1')}")

def head_6480(which):
    E("  s_cmp_ge_u32 s2, 256")
    E(f"  s_cbranch_scc1 L{which}_done")
    E("  s_load_dwordx4 s[36:39], s[0:1], 56")
    E("  s_load_dwordx2 s[4:5], s[0:1], 48")
    E(f"  s_load_dwordx2 s[6:7], s[0:1], {16 if which == 2 else 40}")
    E("  s_load_dwordx2 s[42:43], s[0:1], 0")
    stamp(which)
    E("  s_and_b32 s40, s2, 7")
    E("  s_lshr_b32 s41, s2, 3")
    if os.environ.get("OLDMAP"):
        E("  s_lshl_b32 s24, s40, 2")
        E("  s_and_b32 s44, s41, 3")
        E("  s_add_u32 s24, s24, s44")
        E("  s_lshr_b32 s25, s41, 2")
    else:
        E("  s_lshr_b32 s24, s40, 1")
        E("  s_lshl_b32 s24, s24, 3")
        E("  s_and_b32 s44, s41, 7")
        E("  s_add_u32 s24, s24, s44")
        E("  s_and_b32 s25, s40, 1")
        E("  s_lshl_b32 s25, s25, 2")
        E("  s_lshr_b32 s44, s41, 3")
        E("  s_add_u32 s25, s25, s44")
    E("  v_lshrrev_b32 v1, 6, v0")
    E("  v_mov_b32 v2, v0")
    E("  v_and_b32 v0, 63, v0")
    E("  v_readfirstlane_b32 s26, v1")
    E("  s_nop 3")

def res_addr():
    E("  v_lshrrev_b32 v3, 2, v2")
    E("  s_lshl_b32 s40, s24, 6")
    E("  v_add_u32 v3, s40, v3")
    E("  s_movk_i32 s41, 1280")
    E("  v_mul_lo_u32 v7, v3, s41")
    E("  v_and_b32 v4, 3, v2")
    E("  v_mad_u32_u24 v7, v4, 40, v7")
    E("  s_mul_i32 s40, s25, 160")
    E("  v_add_u32 v7, s40, v7")

def chunk_addr(vc, vrow, vcol, tmp):
    E("  s_movk_i32 s41, 6554")
    E(f"  v_mul_u32_u24 v{vrow}, s41, v{vc}")
    E(f"  v_lshrrev_b32 v{vrow}, 16, v{vrow}")
    E(f"  v_mul_u32_u24 v{tmp}, 10, v{vrow}")
    E(f"  v_sub_u32 v{vcol}, v{vc}, v{tmp}")

def res_load(rounds, res_srd, RES, GA):
    for r, add in enumerate(rounds):
        E(f"  v_add_u32 v3, {add}, v2")
        chunk_addr(3, 4, 5, 6)
        E("  s_lshl_b32 s40, s24, 6")
        E("  v_add_u32 v4, s40, v4")
        E("  s_movk_i32 s41, 1280")
        E(f"  v_mul_lo_u32 v{GA+r}, v4, s41")
        E(f"  v_lshl_add_u32 v{GA+r}, v5, 4, v{GA+r}")
        E("  s_mul_i32 s40, s25, 160")
        E(f"  v_add_u32 v{GA+r}, s40, v{GA+r}")
        E("  v_cmp_gt_u32 vcc, 640, v3")
        E(f"  v_cndmask_b32 v{GA+r}, -1, v{GA+r}, vcc")
        E(f"  buffer_load_dwordx4 {vr(RES+4*r,4)}, v{GA+r}, {sr(res_srd,4)}, 0 offen")

def final_sum(which, rounds, RES, GA, dst_srd, wstride, B):
    for r, add in enumerate(rounds):
        E(f"  v_add_u32 v3, {add}, v2")
        E("  v_min_u32 v3, 639, v3")
        chunk_addr(3, 4, 5, 6)
        E("  v_mul_u32_u24 v6, 336, v4")
        E("  v_lshl_add_u32 v6, v5, 5, v6")
        E(f"  v_add_u32 v3, {2*wstride}, v6")
        for w in range(4):
            for j in range(2):
                E(f"  ds_read_b128 {vr(B+w*8+j*4,4)}, {'v6' if w < 2 else 'v3'} offset:{(w&1)*wstride+j*16}")
        E("  s_waitcnt lgkmcnt(0)")
        for i in range(4):
            E(f"  v_pk_add_f32 {vr(B+2*i,2)}, {vr(B+2*i,2)}, {vr(B+8+2*i,2)}")
            E(f"  v_pk_add_f32 {vr(B+16+2*i,2)}, {vr(B+16+2*i,2)}, {vr(B+24+2*i,2)}")
        for i in range(4):
            E(f"  v_pk_add_f32 {vr(B+2*i,2)}, {vr(B+2*i,2)}, {vr(B+16+2*i,2)}")
        E("  s_waitcnt vmcnt(0)")
        T = B + 8
        for i in range(4):
            E(f"  v_lshlrev_b32 v{T}, 16, v{RES+4*r+i}")
            E(f"  v_and_b32 v{T+1}, 0xffff0000, v{RES+4*r+i}")
            if which == 2:
                E(f"  v_cvt_pk_bf16_f32 v{T+2}, v{B+2*i}, v{B+2*i+1}")
                E(f"  v_lshlrev_b32 v{B+2*i}, 16, v{T+2}")
                E(f"  v_and_b32 v{B+2*i+1}, 0xffff0000, v{T+2}")
            E(f"  v_pk_add_f32 {vr(B+2*i,2)}, {vr(B+2*i,2)}, {vr(T,2)}")
            E(f"  v_cvt_pk_bf16_f32 v{T+4+i}, v{B+2*i}, v{B+2*i+1}")
        E(f"  buffer_store_dwordx4 {vr(T+4,4)}, v{GA+r}, {sr(dst_srd,4)}, 0 offen")
        if which == 2:
            S = T + 8
            for i in range(4):
                E(f"  v_lshlrev_b32 v{T}, 16, v{T+4+i}")
                E(f"  v_and_b32 v{T+1}, 0xffff0000, v{T+4+i}")
                if i == 0:
                    E(f"  v_mov_b32 v{S}, v{T}")
                    E(f"  v_mov_b32 v{S+1}, v{T+1}")
                    E(f"  v_pk_mul_f32 {vr(S+2,2)}, {vr(T,2)}, {vr(T,2)}")
                else:
                    E(f"  v_pk_add_f32 {vr(S,2)}, {vr(S,2)}, {vr(T,2)}")
                    E(f"  v_pk_fma_f32 {vr(S+2,2)}, {vr(T,2)}, {vr(T,2)}, {vr(S+2,2)}")
            E(f"  v_add_f32 v{S}, v{S}, v{S+1}")
            E(f"  v_add_f32 v{S+1}, v{S+2}, v{S+3}")
            E("  v_mul_u32_u24 v6, 10, v4")
            E("  v_add_u32 v6, v6, v5")
            E("  v_lshlrev_b32 v6, 3, v6")
            E(f"  v_add_u32 v6, {K2_STAT}, v6")
            E(f"  v_add_u32 v3, {add}, v2")
            E("  v_cmp_gt_u32 vcc, 640, v3")
            E("  s_and_saveexec_b64 s[50:51], vcc")
            E(f"  ds_write_b64 v6, {vr(S,2)}")
            E("  s_mov_b64 exec, s[50:51]")

K2_STAT = 4 * 40960 - 5120 - 16

def k4(name):
    kernel_head(name)
    head_6480(4)
    E("  s_mul_i32 s40, s24, 221184")
    E(f"  s_add_u32 s40, s40, {H1_OFF}")
    E("  s_mul_i32 s41, s25, 276480")
    E(f"  s_add_u32 s41, s41, {W2T_OFF}")
    E("  s_waitcnt lgkmcnt(0)")
    E("  s_add_u32 s8, s38, s40")
    E("  s_addc_u32 s9, s39, 0")
    E("  s_mov_b32 s10, 221184")
    E("  s_mov_b32 s11, 0x00020000")
    E("  s_add_u32 s12, s38, s41")
    E("  s_addc_u32 s13, s39, 0")
    E("  s_mov_b32 s14, 276480")
    E("  s_mov_b32 s15, 0x00020000")
    srd(16, 38, 2048 * 1280, H_OFF)
    srd(20, 4, 2048 * 1280)
    res_load([0], 16, 12, 10)
    E("  s_cmp_ge_u32 s26, 4")
    E("  s_cbranch_scc1 L4_loader")
    if os.environ.get("PRIO"): E("  s_setprio 2")
    if os.environ.get("PF4"):
        E("  s_and_b32 s40, s25, 3")
        E("  s_mul_i32 s40, s40, 432")
        E("  s_and_b32 s41, s24, 7")
        E("  s_mul_i32 s41, s41, 270")
        E("  v_mov_b32 v6, 0x7fffffff")
        for r in range(2):
            E(f"  v_add_u32 v3, {256*r}, v2")
            E("  v_add_u32 v4, s40, v3")
            E("  v_lshlrev_b32 v4, 7, v4")
            E("  v_cmp_gt_u32 vcc, 432, v3")
            E("  v_cndmask_b32 v4, v6, v4, vcc")
            E(f"  buffer_load_dword v{100+r}, v4, s[8:11], 0 offen")
            E("  v_add_u32 v5, s41, v3")
            E("  v_lshlrev_b32 v5, 7, v5")
            E("  v_cmp_gt_u32 vcc, 270, v3")
            E("  v_cndmask_b32 v5, v6, v5, vcc")
            E(f"  buffer_load_dword v{102+r}, v5, s[12:15], 0 offen")
    E("  s_mul_i32 s34, s26, 36864")
    E("  v_and_b32 v3, 15, v0")
    E("  v_lshrrev_b32 v4, 4, v0")
    E("  v_lshrrev_b32 v5, 2, v3")
    E("  v_sub_u32 v6, 0, v5")
    E("  v_xor_b32 v6, v6, v4")
    E("  v_and_b32 v6, 3, v6")
    E("  v_lshlrev_b32 v6, 4, v6")
    E("  v_lshl_add_u32 v6, v3, 6, v6")
    E("  v_add_u32 v8, s34, v6")
    E("  v_lshrrev_b32 v6, 1, v4")
    E("  v_lshl_add_u32 v6, v6, 4, v5")
    E("  v_and_b32 v4, 1, v4")
    E("  v_lshl_add_u32 v6, v4, 2, v6")
    E("  v_mul_u32_u24 v6, 160, v6")
    E("  v_and_b32 v3, 3, v3")
    E("  v_lshl_add_u32 v6, v3, 3, v6")
    E("  v_add_u32 v6, 4096, v6")
    E("  v_add_u32 v9, s34, v6")
    ACC = 16
    def accf(mt, nt): return ACC + (mt * 5 + nt) * 4
    for i in range(80):
        E(f"  v_mov_b32 v{ACC+i}, 0")
    RES = 96
    X, Y = 96 + 12, 96 + 12 + 36
    X, Y = 96, 132
    RES = 168 - 0
    def reads(step, base):
        sl = step % 4
        r = []
        for mt in range(4):
            r.append(f"  ds_read_b128 {vr(base+4*mt,4)}, v8 offset:{sl*9216+mt*1024}")
        for nt in range(5):
            for h in range(2):
                r.append(f"  ds_read_b64_tr_b16 {vr(base+16+4*nt+2*h,2)}, v9 offset:{sl*9216+h*1280+nt*32}")
        return r
    NSTEP = 14
    E("  s_barrier")
    stamp(4)
    for r in reads(0, X): E(r)
    for i in range(NSTEP):
        cur, nxt = (X, Y) if i % 2 == 0 else (Y, X)
        E("  s_waitcnt lgkmcnt(0)")
        if i + 1 < NSTEP:
            E("  s_barrier")
        mfs = [f"  v_mfma_f32_16x16x32_bf16 {vr(accf(mt,nt),4)}, {vr(cur+16+4*nt,4)}, {vr(cur+4*mt,4)}, {vr(accf(mt,nt),4)}" for mt in range(4) for nt in range(5)]
        interleave(mfs, reads(i + 1, nxt) if i + 1 < NSTEP else [])
        if i == NSTEP - 2:
            pass
    stamp(4)
    pads_on()
    E("  v_and_b32 v3, 15, v0")
    E("  v_lshrrev_b32 v4, 4, v0")
    E("  v_mul_u32_u24 v5, 336, v3")
    E("  v_lshl_add_u32 v5, v4, 4, v5")
    E("  v_add_u32 v5, s34, v5")
    E("  s_nop 7")
    for mt in range(4):
        for nt in range(5):
            E(f"  ds_write_b128 v5, {vr(accf(mt,nt),4)} offset:{mt*16*336+nt*64}")
    E("  s_waitcnt lgkmcnt(0)")
    pads_off()
    E("  s_branch L4_fin")
    E("L4_loader:")
    E("  s_sub_u32 s27, s26, 4")
    E("  s_lshr_b32 s28, s27, 1")
    E("  s_and_b32 s27, s27, 1")
    E("  s_mul_i32 s34, s28, 36864")
    E(f"  s_mul_i32 s32, s28, {14*4096}")
    E(f"  s_mul_i32 s33, s28, {14*5120}")
    E("  v_lshlrev_b32 v8, 4, v0")
    for half in range(2):
        if half == 0:
            E("  s_cmp_eq_u32 s27, 1")
            E("  s_cbranch_scc1 L4_ld1")
        else:
            E("L4_ld1:")
        n = 5 if half == 0 else 4
        def dma(step):
            sl = step % 4
            if half == 0:
                E(f"  s_add_u32 s35, s34, {sl*9216}")
                E("  s_mov_b32 m0, s35")
                E("  s_add_u32 s35, s35, 8192")
                for j in range(4):
                    E(f"  buffer_load_dwordx4 v8, s[8:11], s32 offen offset:{j*1024} lds")
                E("  s_mov_b32 m0, s35")
                E("  s_add_u32 s32, s32, 4096")
                E("  s_add_u32 s35, s33, 4096")
                E("  buffer_load_dwordx4 v8, s[12:15], s35 offen lds")
            else:
                E(f"  s_add_u32 s35, s34, {sl*9216+4096}")
                E("  s_mov_b32 m0, s35")
                E("  s_nop 0")
                for j in range(4):
                    E(f"  buffer_load_dwordx4 v8, s[12:15], s33 offen offset:{j*1024} lds")
            E(f"  s_add_u32 s33, s33, 5120")
        for s in range(4): dma(s)
        last = 3
        if half == 0: pf_enter("L4", 4, "s28")
        PF = int(os.environ.get("K4PF", "0"))
        npf = 0
        if PF:
            E("  s_mov_b32 s48, s32")
            E("  s_mov_b32 s49, s33")
            for st in range(4, 4 + PF):
                if half == 0:
                    for j in range(4):
                        E(f"  buffer_load_dwordx4 v[20:23], v{8+j}, s[8:11], s48 offen offset:{j*1024}")
                    E("  buffer_load_dwordx4 v[20:23], v16, s[12:15], s49 offen")
                    E("  s_add_u32 s48, s48, 64")
                else:
                    for j in range(4):
                        E(f"  buffer_load_dwordx4 v[20:23], v{12+j}, s[12:15], s49 offen offset:{j*1024}")
                E(f"  s_add_u32 s49, s49, {32*1280}")
                npf += n
        E(f"  s_waitcnt vmcnt({3*n+npf})")
        E("  s_barrier")
        for i in range(NSTEP - 1):
            E(f"  s_waitcnt vmcnt({min(63,(last-(i+1))*n + (npf if i+1 <= 3 else 0))})")
            E("  s_barrier")
            if i + 4 < NSTEP:
                dma(i + 4); last = i + 4
            if i == NSTEP - 5:
                pass
        E("  s_branch L4_fin")
    E("L4_fin:")
    pad["on"] = True
    E("  s_barrier")
    final_sum(4, [0], 12, 10, 20, 36864, 24)
    pads_off()
    stamp(4)
    stamp_flush(4, 36)
    rt_end(4)
    E("L4_done:")
    E("  s_endpgm")

def k2(name):
    kernel_head(name)
    head_6480(2)
    E("  s_and_b32 s27, s26, 3")
    E("  s_lshr_b32 s33, s26, 2")
    E("  s_mul_i32 s34, s27, 40960")
    E("  v_lshlrev_b32 v8, 4, v0")
    E("  s_lshl_b32 s40, s24, 2")
    E("  s_add_u32 s40, s40, s27")
    E("  s_mul_i32 s44, s40, 21504")
    E("  s_mul_i32 s45, s33, 11264")
    E("  s_add_u32 s44, s44, s45")
    E("  s_add_u32 s35, s34, s45")
    E("  s_mov_b32 m0, s35")
    E("  s_waitcnt lgkmcnt(0)")
    srd(8, 38, 128 * 21504, PQT_OFF)
    srd(28, 38, 53760, KV_OFF)
    srd(12, 38, 8 * 102400, WOT_OFF)
    E("  s_mul_i32 s46, s27, 13440")
    E("  s_mul_i32 s45, s33, 7168")
    E("  s_add_u32 s46, s46, s45")
    E("  s_add_u32 s35, s34, 21504")
    E("  s_add_u32 s45, s45, s35")
    E("  s_mov_b32 s47, m0")
    E("  s_mov_b32 m0, s45")
    E("  s_nop 0")
    for j in range(7):
        E("  buffer_load_dwordx4 v8, s[28:31], s46 offen lds")
        E("  s_add_u32 m0, m0, 1024")
        E("  s_add_u32 s46, s46, 1024")
    E("  s_mov_b32 m0, s47")
    E("  s_nop 0")
    for j in range(11):
        if j == 10:
            E("  s_cmp_eq_u32 s33, 1")
            E("  s_cbranch_scc1 L2_pq10")
        E("  buffer_load_dwordx4 v8, s[8:11], s44 offen lds")
        E("  s_add_u32 m0, m0, 1024")
        E("  s_add_u32 s44, s44, 1024")
    E("L2_pq10:")
    WR = 196
    E("  s_mul_i32 s32, s27, 25600")
    E("  s_mul_i32 s45, s25, 102400")
    E("  s_add_u32 s32, s32, s45")
    E("  s_mul_i32 s45, s33, 13312")
    E("  s_add_u32 s32, s32, s45")
    E("  v_mov_b32 v7, v8")
    srd(16, 42, 2048 * 1280)
    srd(20, 38, 2048 * 1280, H_OFF)
    srd(28, 38, WS_BYTES)
    RES, GA = 248, 194
    E("  v_lshrrev_b32 v3, 3, v2")
    E("  s_lshl_b32 s40, s24, 6")
    E("  v_add_u32 v3, s40, v3")
    E("  s_movk_i32 s41, 1280")
    E(f"  v_mul_lo_u32 v{GA}, v3, s41")
    E("  v_and_b32 v4, 7, v2")
    E(f"  v_mad_u32_u24 v{GA}, v4, 20, v{GA}")
    E("  s_mul_i32 s40, s25, 160")
    E(f"  v_add_u32 v{GA}, s40, v{GA}")
    E(f"  buffer_load_dwordx4 {vr(RES,4)}, v{GA}, s[16:19], 0 offen")
    E(f"  buffer_load_dword v{RES+4}, v{GA}, s[16:19], 0 offen offset:16")
    E("  v_and_b32 v3, 15, v0")
    E("  v_lshrrev_b32 v4, 4, v0")
    E("  v_cmp_eq_u32 s[46:47], 0, v4")
    E("  v_lshrrev_b32 v5, 2, v3")
    for q in range(4):
        E(f"  v_cmp_eq_u32 s[{48+2*q}:{49+2*q}], {q}, v5")
        E(f"  v_cmp_eq_u32 s[{56+2*q}:{57+2*q}], {q}, v4")
    E("  v_mul_u32_u24 v8, 80, v3")
    E("  v_add_u32 v8, s35, v8")
    E("  v_lshl_add_u32 v9, v4, 4, v8")
    E("  v_and_b32 v10, 3, v3")
    E("  v_mul_u32_u24 v10, 80, v10")
    E("  v_add_u32 v10, s35, v10")
    E("  v_add_u32 v10, 1280, v10")
    E("  v_lshl_add_u32 v11, v4, 4, v10")
    E("  v_mov_b32 v12, s35")
    E("  v_add_u32 v12, 1600, v12")
    E("  v_lshl_add_u32 v13, v4, 4, v12")
    E("  s_mul_i32 s40, s33, 10752")
    E("  s_add_u32 s40, s40, s34")
    E("  v_mul_u32_u24 v14, 336, v3")
    E("  v_add_u32 v14, s40, v14")
    E("  v_add_u32 v15, 32, v14")
    E("  v_lshl_add_u32 v14, v4, 3, v14")
    pf_enter("L2", 8, "s26")
    E("  s_waitcnt vmcnt(12)")
    stamp(2)
    E("  s_barrier")
    stamp(2)
    KF, T = 32, 128
    def kvreads(hh):
        o = hh * 1680
        tt0 = T + 24 * (hh % 2)
        E(f"  ds_read_b128 {vr(tt0,4)}, v9 offset:{o}")
        E(f"  ds_read_b128 {vr(tt0+4,4)}, v8 offset:{o+64}")
        E(f"  ds_read_b128 {vr(tt0+8,4)}, v11 offset:{o}")
        E(f"  ds_read_b128 {vr(tt0+12,4)}, v10 offset:{o+64}")
        E(f"  ds_read_b128 {vr(tt0+16,4)}, v13 offset:{o}")
        E(f"  ds_read_b128 {vr(tt0+20,4)}, v12 offset:{o+64}")
    kvreads(0)
    for hh in range(8):
        if hh + 1 < 8:
            kvreads(hh + 1)
            E("  s_waitcnt lgkmcnt(6)")
        else:
            E("  s_waitcnt lgkmcnt(0)")
        f = KF + 12 * hh
        tt0 = T + 24 * (hh % 2)
        for tt in range(3):
            for p in range(4):
                E(f"  v_cvt_pk_bf16_f32 v{f+4*tt+p}, v{tt0+8*tt+2*p}, v{tt0+8*tt+2*p+1}")
        m = f"s[{48+2*(hh%4)}:{49+2*(hh%4)}]"
        for tt in range(3):
            E(f"  v_cndmask_b32 v{f+4*tt+2}, 0, v{f+4*tt+2}, s[46:47]")
            E(f"  v_cndmask_b32 v{f+4*tt+3}, 0, v{f+4*tt+3}, s[46:47]")
        for p in range(4):
            E(f"  v_cndmask_b32 v{f+4+p}, 0, v{f+4+p}, {m}")
        for j in range(2 * hh, min(13, 2 * hh + 2)):
            E(f"  buffer_load_dwordx4 {vr(WR+4*j,4)}, v7, s[12:15], s32 offen")
            E("  s_add_u32 s32, s32, 1024")
    E("  s_waitcnt vmcnt(15)")
    E("  s_barrier")
    stamp(2)
    OF = 128
    def of(u, ks): return OF + u * 20 + ks * 4
    PQa, PQb, N0, D, N1, RS = 168, 16, 176, 24, 184, 192
    E("  s_mov_b32 s45, 0x358637bd")
    def pqreads(hh):
        P = PQa if hh % 2 == 0 else PQb
        for u in range(2):
            E(f"  ds_read_b64 {vr(P+4*u,2)}, v14 offset:{u*16*336+40*hh}")
            E(f"  ds_read_b64 {vr(P+4*u+2,2)}, v15 offset:{u*16*336+40*hh}")
    pqreads(0)
    for hh in range(8):
        P = PQa if hh % 2 == 0 else PQb
        f = KF + 12 * hh
        if hh + 1 < 8:
            pqreads(hh + 1)
            E("  s_waitcnt lgkmcnt(4)")
        else:
            E("  s_waitcnt lgkmcnt(0)")
        for u in range(2):
            E(f"  v_mfma_f32_16x16x32_bf16 {vr(D+4*u,4)}, {vr(f+8,4)}, {vr(P+4*u,4)}, 0")
        for u in range(2):
            E(f"  v_mfma_f32_16x16x32_bf16 {vr(N0+4*u,4)}, {vr(f,4)}, {vr(P+4*u,4)}, 0")
        for u in range(2):
            c = "0" if hh % 4 == 0 else vr(N1 + 4 * u, 4)
            E(f"  v_mfma_f32_16x16x32_bf16 {vr(N1+4*u,4)}, {vr(f+4,4)}, {vr(P+4*u,4)}, {c}")
        E("  s_nop 4")
        for u in range(2):
            E(f"  v_add_f32 v{D+4*u}, s45, v{D+4*u}")
            E(f"  v_rcp_f32 v{D+4*u}, v{D+4*u}")
        E("  s_nop 1")
        for u in range(2):
            for r in range(4):
                E(f"  v_mul_f32 v{N0+4*u+r}, v{N0+4*u+r}, v{D+4*u}")
            dst = of(u, hh // 2) + 2 * (hh % 2)
            E(f"  v_cvt_pk_bf16_f32 v{dst}, v{N0+4*u}, v{N0+4*u+1}")
            E(f"  v_cvt_pk_bf16_f32 v{dst+1}, v{N0+4*u+2}, v{N0+4*u+3}")
            gm = f"s[{56+2*(hh%4)}:{57+2*(hh%4)}]"
            E(f"  v_cndmask_b32 v{RS+u}, v{RS+u}, v{D+4*u}, {gm}")
        if hh % 4 == 3:
            E("  s_nop 4")
            for u in range(2):
                for r in range(4):
                    E(f"  v_mul_f32 v{D+4*u+r}, v{N1+4*u+r}, v{RS+u}")
                dst = of(u, 4) + 2 * (hh // 4)
                E(f"  v_cvt_pk_bf16_f32 v{dst}, v{D+4*u}, v{D+4*u+1}")
                E(f"  v_cvt_pk_bf16_f32 v{dst+1}, v{D+4*u+2}, v{D+4*u+3}")
    stamp(2)
    E("  v_lshlrev_b32 v16, 4, v0")
    E("  s_mul_i32 s40, s33, 13312")
    E("  s_add_u32 s40, s40, s34")
    E("  v_add_u32 v16, s40, v16")
    E("  v_lshl_add_u32 v8, v4, 2, v5")
    E("  v_mul_u32_u24 v8, 160, v8")
    E("  v_and_b32 v6, 3, v3")
    E("  v_lshl_add_u32 v8, v6, 3, v8")
    E("  v_add_u32 v8, s34, v8")
    E("  v_mul_u32_u24 v9, 20, v4")
    E("  v_add_u32 v9, v9, v5")
    E("  v_add_u32 v9, 16, v9")
    E("  v_mul_u32_u24 v9, 160, v9")
    E("  v_lshl_add_u32 v9, v6, 3, v9")
    E("  v_add_u32 v9, s34, v9")
    E("  s_waitcnt vmcnt(0)")
    E("  s_barrier")
    for j in range(13):
        if j == 12:
            E("  s_cmp_eq_u32 s33, 1")
            E("  s_cbranch_scc1 L2_w12")
        E(f"  ds_write_b128 v16, {vr(WR+4*j,4)} offset:{1024*j}")
    E("L2_w12:")
    E("  s_waitcnt lgkmcnt(0)")
    E("  s_barrier")
    stamp(2)
    ACC = 32
    def accf(u, nt): return ACC + (u * 5 + nt) * 4
    WFS = [72, 92]
    def wreads(ks):
        W = WFS[ks % 2]
        r = []
        for nt in range(5):
            for h in range(2):
                if ks < 4:
                    r.append(f"  ds_read_b64_tr_b16 {vr(W+4*nt+2*h,2)}, v8 offset:{ks*6400+h*3200+nt*32}")
                else:
                    r.append(f"  ds_read_b64_tr_b16 {vr(W+4*nt+2*h,2)}, v9 offset:{h*12800+nt*32}")
        return r
    for r in wreads(0): E(r)
    for ks in range(5):
        W = WFS[ks % 2]
        E("  s_waitcnt lgkmcnt(0)")
        mfs = []
        for nt in range(5):
            for u in range(2):
                c = "0" if ks == 0 else vr(accf(u, nt), 4)
                mfs.append(f"  v_mfma_f32_16x16x32_bf16 {vr(accf(u,nt),4)}, {vr(W+4*nt,4)}, {vr(of(u,ks),4)}, {c}")
        interleave(mfs, wreads(ks + 1) if ks < 4 else [], per=1)
    stamp(2)
    E("  s_barrier")
    E("  s_mul_i32 s40, s33, 10752")
    E("  s_add_u32 s40, s40, s34")
    E("  v_mul_u32_u24 v5, 336, v3")
    E("  v_lshl_add_u32 v5, v4, 4, v5")
    E("  v_add_u32 v5, s40, v5")
    for u in range(2):
        for nt in range(5):
            E(f"  ds_write_b128 v5, {vr(accf(u,nt),4)} offset:{u*16*336+nt*64}")
    E("  s_waitcnt lgkmcnt(0)")
    E("  s_barrier")
    B = 32
    E("  v_lshrrev_b32 v3, 3, v2")
    E("  v_and_b32 v4, 7, v2")
    E("  v_mul_u32_u24 v6, 336, v3")
    E("  v_mad_u32_u24 v6, v4, 40, v6")
    E(f"  v_add_u32 v5, {2*40960}, v6")
    for w in range(4):
        for j in range(5):
            E(f"  ds_read_b64 {vr(B+w*10+j*2,2)}, {'v6' if w < 2 else 'v5'} offset:{(w&1)*40960+j*8}")
    E("  s_waitcnt lgkmcnt(0)")
    for i in range(5):
        E(f"  v_pk_add_f32 {vr(B+2*i,2)}, {vr(B+2*i,2)}, {vr(B+10+2*i,2)}")
        E(f"  v_pk_add_f32 {vr(B+20+2*i,2)}, {vr(B+20+2*i,2)}, {vr(B+30+2*i,2)}")
    for i in range(5):
        E(f"  v_pk_add_f32 {vr(B+2*i,2)}, {vr(B+2*i,2)}, {vr(B+20+2*i,2)}")
    E("  s_waitcnt vmcnt(0)")
    T = B + 10
    for i in range(5):
        E(f"  v_lshlrev_b32 v{T}, 16, v{RES+i}")
        E(f"  v_and_b32 v{T+1}, 0xffff0000, v{RES+i}")
        E(f"  v_cvt_pk_bf16_f32 v{T+2}, v{B+2*i}, v{B+2*i+1}")
        E(f"  v_lshlrev_b32 v{B+2*i}, 16, v{T+2}")
        E(f"  v_and_b32 v{B+2*i+1}, 0xffff0000, v{T+2}")
        E(f"  v_pk_add_f32 {vr(B+2*i,2)}, {vr(B+2*i,2)}, {vr(T,2)}")
        E(f"  v_cvt_pk_bf16_f32 v{T+4+i}, v{B+2*i}, v{B+2*i+1}")
    E(f"  buffer_store_dwordx4 {vr(T+4,4)}, v{GA}, s[20:23], 0 offen{WT('2')}")
    E(f"  buffer_store_dword v{T+8}, v{GA}, s[20:23], 0 offen offset:16{WT('2')}")
    S = T + 10
    for i in range(5):
        E(f"  v_lshlrev_b32 v{T}, 16, v{T+4+i}")
        E(f"  v_and_b32 v{T+1}, 0xffff0000, v{T+4+i}")
        if i == 0:
            E(f"  v_mov_b32 v{S}, v{T}")
            E(f"  v_mov_b32 v{S+1}, v{T+1}")
            E(f"  v_pk_mul_f32 {vr(S+2,2)}, {vr(T,2)}, {vr(T,2)}")
        else:
            E(f"  v_pk_add_f32 {vr(S,2)}, {vr(S,2)}, {vr(T,2)}")
            E(f"  v_pk_fma_f32 {vr(S+2,2)}, {vr(T,2)}, {vr(T,2)}, {vr(S+2,2)}")
    E(f"  v_add_f32 v{S}, v{S}, v{S+1}")
    E(f"  v_add_f32 v{S+1}, v{S+2}, v{S+3}")
    for ctl in ("quad_perm:[1,0,3,2]", "quad_perm:[2,3,0,1]", "row_half_mirror"):
        E("  s_nop 1")
        for r in (S, S + 1):
            E(f"  v_add_f32_dpp v{r}, v{r}, v{r} {ctl} row_mask:0xf bank_mask:0xf")
    E("  s_lshl_b32 s40, s24, 12")
    E("  s_lshl_b32 s41, s25, 3")
    E("  s_add_u32 s40, s40, s41")
    E(f"  s_add_u32 s40, s40, {RS_OFF}")
    E("  v_lshlrev_b32 v3, 6, v3")
    E("  v_cmp_eq_u32 vcc, 0, v4")
    E("  s_and_saveexec_b64 s[50:51], vcc")
    E(f"  buffer_store_dwordx2 {vr(S,2)}, v3, s[28:31], s40 offen")
    E("  s_mov_b64 exec, -1")
    E("L2_nost:")
    pads_off()
    stamp(2)
    stamp_flush(2, 36)
    rt_end(2)
    E("L2_done:")
    E("  s_endpgm")

def main():
    N = ["k1_qkv_kernel", "k2_attn_kernel", "k3_ffn1_kernel", "k4_ffn2_kernel"]
    hdr = open('cdna_kernels/' + NAME + '.s.ref').read().split("; Override")[0]
    E(hdr.rstrip())
    lds = [163840, 163840, 163840, 4 * 36864]
    blk = [768, 512, 768, 768]
    for i, n in enumerate(N):
        E(f"; @launch kernel={n} grid=(256,1,1) block=({blk[i]},1,1) lds={lds[i]}")
    E('.amdgcn_target "amdgcn-amd-amdhsa--gfx950"')
    E(".text")
    st = len(out); ln_gemm(N[0], 1); resolve_pads("L1", st)
    st = len(out); k2(N[1]); resolve_pads("L2", st)
    st = len(out); ln_gemm(N[2], 3); resolve_pads("L3", st)
    st = len(out); k4(N[3]); resolve_pads("L4", st)
    E("Lcode_end:")
    E('.section .rodata,"a"')
    E(kernel_desc(N[0]))
    E(kernel_desc(N[1], vgpr=256))
    E(kernel_desc(N[2]))
    E(kernel_desc(N[3]))
    open(sys.argv[1], 'w').write("\n".join(out) + "\n")
main()
```
